```python
import torch

def _softmax(x, axis=-1):
    return torch.softmax(x, dim=axis)

def _gelu(x):
    return torch.nn.functional.gelu(x, approximate='tanh')

def _silu(x):
    return torch.nn.functional.silu(x)

def _sigmoid(x):
    return torch.sigmoid(x)

def _layernorm(x, axis=-1, eps=1e-05):
    m = x.mean(dim=axis, keepdim=True)
    v = x.var(dim=axis, keepdim=True, unbiased=False)
    return (x - m) / torch.sqrt(v + eps)

def _scatter_add(tgt, idx, src, axis=0):
    return tgt.clone().index_add_(axis, idx, src)

def _segment_sum(src, seg, n):
    out = torch.zeros((n,) + src.shape[1:], dtype=src.dtype)
    return out.index_add_(0, seg, src)

def _pad(x, pw):
    flat = tuple((v for pair in reversed(pw) for v in pair))
    return torch.nn.functional.pad(x, flat)
kernel_name = 'gather_scatter__tensor_product_equiv_tfn__graph'

def setup_inputs():

    _w = lambda a: (lambda t: t.to(torch.bfloat16) if t.is_floating_point() else t)(torch.as_tensor(a))
    N, deg, C, L, DE = (10000, 64, 64, 1, 16)
    E = N * deg
    M = (L + 1) ** 2
    src = (lambda lo, hi, *s: torch.randint(lo, hi, s))(0, N, E).to(torch.int64)
    dst = (lambda lo, hi, *s: torch.randint(lo, hi, s))(0, N, E).to(torch.int64)
    r = (lambda *s: torch.randn(*s, dtype=torch.bfloat16) * 0.05)(E, 3)
    r = r / (torch.linalg.norm(r, dim=-1, keepdim=True) + 1e-09)
    rx, ry, rz = (r[:, 0].clone(), r[:, 1].clone(), r[:, 2].clone())
    Ys = [torch.ones((E, 1), dtype=float)]
    if L >= 1:
        Ys.append(r.to(float))
    if L >= 2:
        Ys.append(torch.stack([2 * rx * ry, 2 * ry * rz, (3 * rz * rz - 1.0) / (lambda _x: torch.sqrt(torch.as_tensor(_x)))(3.0), 2 * rx * rz, rx * rx - ry * ry], dim=-1).to(float))
    for _l in range(3, L + 1):
        Ys.append(((lambda *s: torch.randn(*s, dtype=torch.bfloat16) * 0.05)(E, 2 * _l + 1) * 0.3).to(float))
    Y = torch.cat(Ys, dim=-1)
    cg = torch.zeros((M, M, M), dtype=float)
    off = [_l * _l for _l in range(L + 2)]
    for l1 in range(L + 1):
        for l2 in range(L + 1):
            for l3 in range(abs(l1 - l2), min(L, l1 + l2) + 1):
                d1, d2, d3 = (2 * l1 + 1, 2 * l2 + 1, 2 * l3 + 1)
                cg[off[l1]:off[l1 + 1], off[l2]:off[l2 + 1], off[l3]:off[l3 + 1]] = (lambda *s: torch.randn(*s, dtype=torch.bfloat16) * 0.05)(d1, d2, d3) / (lambda _x: torch.sqrt(torch.as_tensor(_x)))(float(d1 * d2))
    return {'x': _w((lambda *s: torch.randn(*s, dtype=torch.bfloat16) * 0.05)(N, C, M) * 0.2), 'src': _w(src), 'dst': _w(dst), 'Y': _w(Y), 'edge_feat': _w((lambda *s: torch.randn(*s, dtype=torch.bfloat16) * 0.05)(E, DE)), 'w_rad': _w((lambda *s: torch.randn(*s, dtype=torch.bfloat16) * 0.05)(DE, C) * (1.0 / max(1.0, DE) ** 0.5)), 'cg': _w(cg), 'w_mix': _w((lambda *s: torch.randn(*s, dtype=torch.bfloat16) * 0.05)(C, C) * (1.0 / max(1.0, C) ** 0.5))}

def reference(x, src, dst, Y, edge_feat, w_rad, cg, w_mix):
    N, C, M = (x.shape[0], x.shape[1], x.shape[2])
    R = _silu(edge_feat @ w_rad)
    xs = x[src]
    tp = torch.einsum('eci,ef,ifo->eco', xs, Y, cg)
    msg = R[:, :, None] * tp
    agg = _segment_sum(msg.reshape(-1, C * M), dst, N).reshape(N, C, M)
    return torch.einsum('ncm,cd->ndm', agg, w_mix)
```

```python
import sys, argparse

NAME = "gather_scatter__tensor_product_equiv_tfn__graph"
E, N = 640000, 10000
G, CH = 256, 2500
BMUL = 26843
WS_EF = 0
WS_YI = E * 32
WS_TB = WS_YI + E * 12
TB_WR = 262144
TB_CG = TB_WR + 4096
TB_WM = TB_CG + 128
TB_SZ = TB_WM + 8192
WS_TM = WS_TB + 524288
L1_HIST, L1_ST, L1_EF, L1_YI = 0, 1024, 2048, 82048
L1_SZ = L1_YI + 32768
CAP, C = 2720, 2768
SEG = 176
L_AGG = 0
L_XS = 40960
XHALF = C // 2 * 4
L_CNT = L_XS + C * 4
L_YS = L_CNT + 256
L_EF = L_YS + C * 8
L_CG = L_EF + C * 32
L_SZ = L_CG + 128
L_TT = L_EF
assert L_SZ <= 163840 and L_CG % 64 == 0 and L_EF >= 65536 and XHALF % 16 == 0


class A:
    def __init__(s):
        s.l = []

    def __call__(s, t):
        for x in t.strip("\n").split("\n"):
            x = x.strip()
            if x:
                s.l.append(x if x.endswith(":") else "    " + x)

    def text(s):
        return "\n".join(s.l) + "\n"


def v(a, n=1):
    return f"v{a}" if n == 1 else f"v[{a}:{a+n-1}]"


def s(a, n=1):
    return f"s{a}" if n == 1 else f"s[{a}:{a+n-1}]"


def srd(a, r, ptr, off, nr):
    if off is None:
        a(f"s_mov_b32 s{r}, s{ptr}\ns_mov_b32 s{r+1}, s{ptr+1}")
    else:
        a(f"s_add_u32 s{r}, s{ptr}, {off}\ns_addc_u32 s{r+1}, s{ptr+1}, 0")
    a(f"s_mov_b32 s{r+2}, {nr}\ns_mov_b32 s{r+3}, 0x20000")


DPPS = ["row_shr:1 row_mask:0xf bank_mask:0xf bound_ctrl:1",
        "row_shr:2 row_mask:0xf bank_mask:0xf bound_ctrl:1",
        "row_shr:4 row_mask:0xf bank_mask:0xf bound_ctrl:1",
        "row_shr:8 row_mask:0xf bank_mask:0xf bound_ctrl:1",
        "row_bcast:15 row_mask:0xa bank_mask:0xf",
        "row_bcast:31 row_mask:0xc bank_mask:0xf"]


def scan(a, op, regs):
    for d in DPPS:
        for r in regs:
            a(f"{op}_dpp v{r}, v{r}, v{r} {d}")
        if len(regs) < 3:
            a(f"s_nop {2 - len(regs)}")


def stamp(a, o, i):
    if o.timing:
        a(f"{'s_memtime' if 'clk' in o.exp else 's_memrealtime'} s[{72+2*i}:{73+2*i}]")


def stamp_store(a, o, kern, n, ptr):
    if not o.timing:
        return
    a(f"""
    s_waitcnt lgkmcnt(0)
    s_lshl_b32 s3, s2, 6
    s_add_u32 s3, s3, {WS_TM + kern*32768}
    """)
    srd(a, 68, ptr, "s3", 64)
    a("s_nop 4\nv_mov_b32 v0, 0")
    for i in range(n):
        a(f"v_mov_b32 v1, s{72+2*i}\nbuffer_store_dword v1, v0, s[68:71], 0 offen offset:{4*i}\ns_nop 1")


def k1(o):
    a = A()
    LD = o.k1ld
    ST = o.k1st
    a(f"""
    s_cmp_ge_u32 s2, {G}
    s_cbranch_scc1 k1_end
    """)
    stamp(a, o, 0)
    a(f"""
    s_load_dwordx4 s[4:7], s[0:1], 8
    s_load_dwordx4 s[8:11], s[0:1], 24
    s_load_dwordx4 s[12:15], s[0:1], 40
    s_load_dwordx2 s[16:17], s[0:1], 56
    s_load_dwordx2 s[18:19], s[0:1], 80
    v_lshlrev_b32 v1, 2, v0
    v_lshlrev_b32 v2, 3, v0
    v_lshlrev_b32 v3, 5, v0
    v_and_b32 v46, 0x3fc, v1
    v_mov_b32 v47, 0
    v_lshrrev_b32 v62, 6, v0
    v_and_b32 v63, 63, v0
    ds_write_b32 v46, v47 offset:{L1_HIST}
    v_readfirstlane_b32 s62, v62
    v_cmp_gt_u32 vcc, {CH - 2048}, v0
    s_movk_i32 s52, 4096
    s_movk_i32 s53, 8192
    s_movk_i32 s54, 16384
    s_mov_b32 s55, 32768
    s_mov_b32 s56, 65536
    s_mov_b32 s57, 49152
    s_mov_b64 s[60:61], vcc
    s_mul_i32 s3, s2, {CH*4}
    s_mul_i32 s58, s2, {CH*8}
    s_mul_i32 s59, s2, {CH*32}
    s_waitcnt lgkmcnt(0)
    """)
    srd(a, 24, 6, "s3", CH * 4)
    srd(a, 20, 4, "s3", CH * 4)
    srd(a, 28, 8, "s58", CH * 8)
    srd(a, 32, 10, "s59", CH * 32)
    a(f"""
    s_cmp_eq_u32 s62, 15
    s_cselect_b32 s63, s2, 6
    s_cmp_ge_u32 s63, 6
    s_cbranch_scc1 k1_noimg0
    v_and_b32 v64, 31, v63
    v_lshrrev_b32 v65, 5, v63
    v_lshlrev_b32 v64, 2, v64
    s_cmp_eq_u32 s63, 4
    s_cbranch_scc1 k1_ldwr
    s_cmp_eq_u32 s63, 5
    s_cbranch_scc1 k1_ldcg
    """)
    srd(a, 48, 16, None, 8192)
    a(f"""
    v_lshl_add_u32 v64, v65, 11, v64
    s_and_b32 s64, s63, 1
    s_lshl_b32 s64, s64, 12
    s_lshr_b32 s65, s63, 1
    s_lshl_b32 s65, s65, 7
    s_add_u32 s64, s64, s65
    """)
    for i in range(8):
        a(f"buffer_load_dword v{66+i}, v64, s[48:51], s64 offen offset:{256*i}")
    a("s_branch k1_noimg0\nk1_ldwr:")
    srd(a, 48, 12, None, 2048)
    a("v_lshl_add_u32 v64, v65, 10, v64")
    for i in range(8):
        a(f"buffer_load_dword v{66+i}, v64, s[48:51], 0 offen offset:{128*i}")
    a("s_branch k1_noimg0\nk1_ldcg:")
    srd(a, 48, 14, None, 128)
    a("v_and_b32 v64, 3, v63\nv_lshlrev_b32 v64, 1, v64")
    for i in range(16):
        a(f"buffer_load_ushort v{66+i}, v64, s[48:51], 0 offen offset:{8*i}")
    a("k1_noimg0:")
    so4 = ["0", "s52", "s53"]
    so8 = ["0", "s53", "s54"]
    so32 = ["0", "s55", "s56"]
    for i in range(3):
        a(f"buffer_load_dword v{4+i}, v1, s[24:27], {so4[i]} offen {LD}")
    for i in range(3):
        a(f"buffer_load_dword v{7+i}, v1, s[20:23], {so4[i]} offen {LD}")
    for i in range(3):
        a(f"buffer_load_dwordx2 v[{10+2*i}:{11+2*i}], v2, s[28:31], {so8[i]} offen {LD}")
    for i in range(3):
        for u in range(2):
            r = 16 + 8 * i + 4 * u
            a(f"buffer_load_dwordx4 v[{r}:{r+3}], v3, s[32:35], {so32[i]} offen offset:{16*u} {LD}")
    a(f"s_add_u32 s59, s59, {WS_EF}")
    srd(a, 36, 18, "s59", CH * 32)
    a(f"s_mul_i32 s58, s2, {CH*12}\ns_add_u32 s58, s58, {WS_YI}")
    srd(a, 40, 18, "s58", CH * 12)
    srd(a, 44, 18, WS_TB, TB_SZ)
    a(f"""
    s_lshl_b32 s66, s2, 10
    s_mov_b32 s67, {L1_YI}
    v_mov_b32 v47, 1
    v_lshlrev_b32 v61, 4, v63
    s_barrier
    s_waitcnt vmcnt(12)
    """)
    stamp(a, o, 1)
    for i in range(3):
        a(f"v_mul_u32_u24 v{40+i}, {BMUL}, v{4+i}")
    for i in range(3):
        a(f"v_lshrrev_b32 v{40+i}, 20, v{40+i}")
    for i in range(3):
        a(f"v_lshlrev_b32 v{40+i}, 2, v{40+i}")
    a(f"""
    ds_add_rtn_u32 v43, v40, v47 offset:{L1_HIST}
    ds_add_rtn_u32 v44, v41, v47 offset:{L1_HIST}
    s_mov_b64 exec, s[60:61]
    s_cbranch_execz k1_a
    ds_add_rtn_u32 v45, v42, v47 offset:{L1_HIST}
    k1_a:
    s_mov_b64 exec, -1
    """)
    for i in range(3):
        a(f"v_lshlrev_b32 v{4+i}, 24, v{4+i}")
    a("s_waitcnt vmcnt(9)")
    for i in range(3):
        a(f"v_lshl_or_b32 v{7+i}, v{7+i}, 9, v{4+i}")
    a(f"""
    s_waitcnt lgkmcnt(0)
    s_barrier
    ds_read_b128 v[48:51], v61 offset:{L1_HIST}
    s_waitcnt lgkmcnt(0)
    v_add_u32 v54, v48, v49
    v_add_u32 v55, v54, v50
    v_add_u32 v56, v55, v51
    v_mov_b32 v57, v56
    s_nop 1
    """)
    scan(a, "v_add_u32", [57])
    a(f"""
    v_sub_u32 v52, v57, v56
    v_add_u32 v53, v52, v48
    v_add_u32 v54, v52, v54
    v_add_u32 v55, v52, v55
    ds_write_b128 v61, v[52:55] offset:{L1_ST}
    ds_read_b32 v56, v40 offset:{L1_ST}
    ds_read_b32 v57, v41 offset:{L1_ST}
    ds_read_b32 v58, v42 offset:{L1_ST}
    v_lshl_or_b32 v48, v48, 16, v52
    v_lshl_or_b32 v49, v49, 16, v53
    v_lshl_or_b32 v50, v50, 16, v54
    v_lshl_or_b32 v51, v51, 16, v55
    s_waitcnt lgkmcnt(0)
    """)
    for i in range(3):
        a(f"v_add_u32 v{43+i}, v{43+i}, v{56+i}")
    for i in range(3):
        a(f"v_mad_u32_u24 v{40+i}, v{43+i}, 12, s67")
        a(f"v_lshlrev_b32 v{43+i}, 5, v{43+i}")
    stamp(a, o, 2)
    a("s_waitcnt vmcnt(6)")
    for i in range(2):
        a(f"ds_write2_b32 v{40+i}, v{10+2*i}, v{11+2*i} offset0:0 offset1:1")
        a(f"ds_write_b32 v{40+i}, v{7+i} offset:8")
    for i in range(2):
        a(f"s_waitcnt vmcnt({4-2*i})")
        a(f"ds_write_b128 v{43+i}, v[{16+8*i}:{19+8*i}] offset:{L1_EF}")
        a(f"ds_write_b128 v{43+i}, v[{20+8*i}:{23+8*i}] offset:{L1_EF+16}")
    a(f"""
    s_mov_b64 exec, s[60:61]
    s_cbranch_execz k1_b
    ds_write2_b32 v42, v14, v15 offset0:0 offset1:1
    ds_write_b32 v42, v9 offset:8
    s_waitcnt vmcnt(0)
    ds_write_b128 v45, v[32:35] offset:{L1_EF}
    ds_write_b128 v45, v[36:39] offset:{L1_EF+16}
    k1_b:
    s_mov_b64 exec, -1
    s_waitcnt vmcnt(0)
    s_cmp_lg_u32 s62, 0
    s_cbranch_scc1 k1_c
    buffer_store_dwordx4 v[48:51], v61, s[44:47], s66 offen {ST}
    k1_c:
    v_lshlrev_b32 v1, 4, v0
    v_add_u32 v2, 0x10000, v1
    s_waitcnt lgkmcnt(0)
    s_barrier
    """)
    stamp(a, o, 3)
    rd = [(1, L1_EF + 16384 * p) for p in range(4)] + [(2, L1_EF), (2, L1_YI - 65536), (2, L1_YI - 65536 + 16384)]
    for p, (r, off) in enumerate(rd):
        a(f"ds_read_b128 v[{4+4*p}:{7+4*p}], v{r} offset:{off}")
    sos = ["0", "s54", "s55", "s57", "s56", "0", "s54"]
    for p in range(7):
        a(f"s_waitcnt lgkmcnt({6-p})")
        sr = "s[36:39]" if p < 5 else "s[40:43]"
        a(f"buffer_store_dwordx4 v[{4+4*p}:{7+4*p}], v1, {sr}, {sos[p]} offen {ST}")
    a(f"""
    s_cmp_ge_u32 s63, 6
    s_cbranch_scc1 k1_fin
    s_cmp_eq_u32 s63, 4
    s_cbranch_scc1 k1_wr
    s_cmp_eq_u32 s63, 5
    s_cbranch_scc1 k1_cg
    s_mov_b32 s64, 0x05040100
    s_mov_b32 s65, 0x07060302
    s_lshl_b32 s58, s63, 11
    s_add_u32 s58, s58, {TB_WM}
    """)
    for k in range(4):
        a(f"v_perm_b32 v{84+k}, v{67+2*k}, v{66+2*k}, s64")
        a(f"v_perm_b32 v{88+k}, v{67+2*k}, v{66+2*k}, s65")
    a(f"""
    buffer_store_dwordx4 v[84:87], v61, s[44:47], s58 offen {ST}
    buffer_store_dwordx4 v[88:91], v61, s[44:47], s58 offen offset:1024 {ST}
    s_branch k1_fin
    k1_wr:
    s_mov_b32 s64, 0xbfb8aa3b
    s_mov_b32 s65, 0xffff0000
    s_mov_b32 s58, {TB_WR}
    """)
    for par in range(2):
        for k in range(4):
            for u in range(2):
                if par == 0:
                    a(f"v_lshlrev_b32 v{76+u}, 16, v{66+2*k+u}")
                else:
                    a(f"v_and_b32 v{76+u}, s65, v{66+2*k+u}")
            a(f"""
            v_mul_f32 v76, s64, v76
            v_mul_f32 v77, s64, v77
            v_cvt_pk_bf16_f32 v{84+8*par+k}, v76, v77
            v_lshlrev_b32 v78, 16, v{84+8*par+k}
            v_and_b32 v79, s65, v{84+8*par+k}
            v_sub_f32 v76, v76, v78
            v_sub_f32 v77, v77, v79
            v_cvt_pk_bf16_f32 v{88+8*par+k}, v76, v77
            """)
    for q in range(4):
        a(f"buffer_store_dwordx4 v[{84+4*q}:{87+4*q}], v61, s[44:47], s58 offen offset:{1024*q} {ST}")
    a(f"""
    s_branch k1_fin
    k1_cg:
    s_mov_b32 s58, {TB_CG}
    """)
    for k in range(8):
        a(f"v_lshl_or_b32 v{84+k}, v{67+2*k}, 16, v{66+2*k}")
    a(f"""
    s_mov_b64 exec, 15
    buffer_store_dwordx4 v[84:87], v61, s[44:47], s58 offen {ST}
    buffer_store_dwordx4 v[88:91], v61, s[44:47], s58 offen offset:64 {ST}
    s_mov_b64 exec, -1
    k1_fin:
    """)
    if o.timing:
        a("s_waitcnt vmcnt(0)")
        stamp(a, o, 4)
        a("s_cmp_lg_u32 s62, 0\ns_cbranch_scc1 k1_end\ns_mov_b64 exec, 1")
        stamp_store(a, o, 0, 5, 18)
    a("k1_end:\ns_endpgm")
    return a.text()


X, ZE, ZO, TA, TP, ACC, EE, W, EF, YY, XI = 0, 32, 48, 64, 72, 80, 88, 92, 108, 112, 114
VXO, VX, VY, VEF, VJ4, VTID = 122, 123, 124, 125, 126, 127
sX, sEF, sYI, sTB, sOUT = 12, 16, 20, 24, 28
sWAVE, sB4, sN0, sW0, sTOT, sLIM, sP = 32, 33, 34, 35, 36, 37, 38
sNG = 39
sONE, sXNR, sREM, sBM, sNM, sCUR, sCG = 40, 42, 43, 44, 48, 50, 51
sM = 52
sRET = 60
sSLOW, sOPEN = 47, 70


def k2(o):
    a = A()
    LD = o.k2ld
    XF = o.xld
    vL = VXO
    a(f"""
    s_cmp_ge_u32 s2, {G}
    s_cbranch_scc1 k2_end
    """)
    stamp(a, o, 0)
    a(f"""
    s_load_dwordx2 s[4:5], s[0:1], 0
    s_load_dwordx2 s[6:7], s[0:1], 64
    s_load_dwordx2 s[8:9], s[0:1], 80
    v_mov_b32 v{VTID}, v0
    v_lshrrev_b32 v1, 6, v0
    v_and_b32 v{vL}, 63, v0
    v_readfirstlane_b32 s{sWAVE}, v1
    s_and_b32 s3, s2, 7
    s_lshl_b32 s3, s3, 5
    s_lshr_b32 s10, s2, 3
    s_or_b32 s3, s3, s10
    s_lshl_b32 s{sB4}, s3, 2
    s_mul_i32 s{sN0}, s3, 320007
    s_add_u32 s10, s{sN0}, {320007+8160}
    s_add_u32 s{sN0}, s{sN0}, 8160
    s_lshr_b32 s{sN0}, s{sN0}, 13
    s_lshr_b32 s10, s10, 13
    s_min_u32 s10, s10, {N}
    s_sub_u32 s10, s10, s{sN0}
    s_lshl_b32 s10, s10, 9
    s_lshl_b32 s11, s{sN0}, 9
    s_mov_b32 s{sW0}, 0
    s_mov_b32 s{sONE}, 1.0
    s_mov_b32 s{sONE+1}, 1.0
    s_mov_b32 s{sXNR}, {0 if "nox" in o.exp else N*512}
    s_mov_b32 s{sCG}, {L_CG}
    s_mov_b32 s58, {TB_WR}
    s_mov_b32 s59, {TB_CG}
    v_lshlrev_b32 v2, 10, v0
    v_lshlrev_b32 v3, 4, v{vL}
    s_waitcnt lgkmcnt(0)
    """)
    srd(a, sTB, 8, WS_TB, TB_SZ)
    a(f"""
    s_cmp_ge_u32 s{sWAVE}, 4
    s_cbranch_scc1 k2_not0
    buffer_load_dword v4, v2, s[{sTB}:{sTB+3}], s{sB4} offen
    k2_not0:
    s_cmp_lg_u32 s{sWAVE}, 4
    s_cbranch_scc1 k2_nocg0
    s_mov_b64 exec, 0xff
    buffer_load_dwordx4 v[4:7], v3, s[{sTB}:{sTB+3}], s59 offen
    s_mov_b64 exec, -1
    k2_nocg0:
    """)
    for q in range(4):
        a(f"buffer_load_dwordx4 {v(W+4*q,4)}, v3, s[{sTB}:{sTB+3}], s58 offen offset:{1024*q}")
    srd(a, sX, 4, None, N * 512)
    srd(a, sEF, 8, WS_EF, E * 32)
    srd(a, sYI, 8, WS_YI, E * 12)
    srd(a, sOUT, 6, "s11", "s10")
    a(f"""
    v_lshlrev_b32 v1, 4, v0
    v_mov_b64 v[8:9], 0
    v_mov_b64 v[10:11], 0
    """)
    for p in range(4):
        a(f"ds_write_b128 v1, v[8:11] offset:{16384*p}")
    a(f"""
    s_cmp_lg_u32 s{sWAVE}, 4
    s_cbranch_scc1 k2_nocg1
    v_add_u32 v3, s{sCG}, v3
    s_mov_b64 exec, 0xff
    s_waitcnt vmcnt(4)
    ds_write_b128 v3, v[4:7]
    s_mov_b64 exec, -1
    k2_nocg1:
    s_cmp_ge_u32 s{sWAVE}, 4
    s_cbranch_scc1 k2_p1
    v_lshlrev_b32 v1, 2, v0
    v_add_u32 v1, {L_TT}, v1
    s_waitcnt vmcnt(4)
    ds_write_b32 v1, v4
    k2_p1:
    v_lshlrev_b32 v1, 4, v{vL}
    v_add_u32 v1, {L_TT}, v1
    s_mul_i32 s58, s{sWAVE}, {SEG}
    s_add_u32 s59, s58, s{sW0}
    s_waitcnt lgkmcnt(0)
    s_barrier
    """)
    stamp(a, o, 1)
    a(f"""
    ds_read_b128 v[0:3], v1
    v_mul_u32_u24 v12, {4*CH}, v{vL}
    v_add_u32 v13, {CH}, v12
    v_add_u32 v14, {2*CH}, v12
    v_add_u32 v15, {3*CH}, v12
    s_waitcnt lgkmcnt(0)
    """)
    for i in range(4):
        a(f"v_lshrrev_b32 v{4+i}, 16, v{i}")
    for i in range(4):
        a(f"v_and_b32 v{i}, 0xffff, v{i}")
    a(f"""
    v_add_u32 v10, v4, v5
    v_add_u32 v11, v10, v6
    v_add_u32 v16, v11, v7
    v_mov_b32 v17, v16
    """)
    for i in range(4):
        a(f"v_add_u32 v{12+i}, v{12+i}, v{i}")
    scan(a, "v_add_u32", [17])
    a(f"""
    v_sub_u32 v8, v17, v16
    v_readlane_b32 s{sTOT}, v17, 63
    v_add_u32 v9, v8, v4
    v_add_u32 v10, v8, v10
    v_add_u32 v11, v8, v11
    """)
    for i in range(4):
        a(f"v_sub_u32 v{12+i}, v{12+i}, v{8+i}")
    for i in range(4):
        a(f"v_cmp_ge_u32 s[{62+2*i}:{63+2*i}], s59, v{8+i}")
    for i in range(4):
        a(f"v_subrev_u32 v{8+i}, s{sW0}, v{8+i}")
    for i in range(4):
        a(f"v_min_u32 v{8+i}, {CAP}, v{8+i}")
    for i in range(4):
        a(f"v_lshlrev_b32 v{8+i}, 2, v{8+i}")
    for i in range(4):
        a(f"ds_max_u32 v{8+i}, v{12+i} offset:{L_XS}")
    a(f"""
    v_add_u32 v16, s58, v{vL}
    v_lshlrev_b32 v17, 2, v16
    """)
    for i in range(3):
        a(f"ds_read_b32 v{i}, v17 offset:{L_XS+256*i}")
    for i in range(4):
        a(f"v_cndmask_b32 v{4+i}, 0, v{12+i}, s[{62+2*i}:{63+2*i}]")
    a(f"""
    v_max3_u32 v4, v4, v5, v6
    v_max_u32 v3, v4, v7
    s_sub_u32 s{sLIM}, s{sTOT}, s{sW0}
    s_min_u32 s{sLIM}, s{sLIM}, {CAP}
    s_add_u32 s10, s58, {SEG}
    s_min_u32 s10, s10, s{sLIM}
    v_add_u32 v17, 64, v16
    v_add_u32 v18, 128, v16
    v_cmp_gt_u32 s[{sM}:{sM+1}], s10, v16
    v_cmp_gt_u32 s[{sM+2}:{sM+3}], s10, v17
    v_cmp_gt_u32 s[{sM+4}:{sM+5}], s10, v18
    s_waitcnt lgkmcnt(0)
    """)
    scan(a, "v_max_u32", [3, 0, 1, 2])
    a(f"""
    v_readlane_b32 s62, v3, 63
    v_readlane_b32 s63, v0, 63
    v_readlane_b32 s64, v1, 63
    v_add_u32 v16, s{sW0}, v16
    v_add_u32 v17, s{sW0}, v17
    v_add_u32 v18, s{sW0}, v18
    s_max_u32 s63, s63, s62
    s_max_u32 s64, s64, s63
    v_max_u32 v0, s62, v0
    v_max_u32 v1, s63, v1
    v_max_u32 v2, s64, v2
    v_mov_b32 v3, 0xf00000
    """)
    for i in range(3):
        a(f"v_add_u32 v{i}, v{i}, v{16+i}")
    for i in range(3):
        a(f"v_cndmask_b32 v{i}, v3, v{i}, s[{sM+2*i}:{sM+2*i+1}]")
    for i in range(3):
        a(f"v_mul_u32_u24 v{4+i}, 12, v{i}")
        a(f"buffer_load_dwordx3 v[{20+4*i}:{22+4*i}], v{4+i}, s[{sYI}:{sYI+3}], 0 offen {LD}")
    for i in range(3):
        a(f"v_lshlrev_b32 v{i}, 5, v{i}")
        for u in range(2):
            r = 32 + 8 * i + 4 * u
            a(f"buffer_load_dwordx4 v[{r}:{r+3}], v{i}, s[{sEF}:{sEF+3}], 0 offen offset:{16*u} {LD}")
    stamp(a, o, 2)
    a("v_mov_b32 v62, 1\ns_waitcnt vmcnt(6)")
    for i in range(3):
        a(f"v_lshrrev_b32 v{56+i}, 24, v{22+4*i}")
    for i in range(3):
        a(f"v_subrev_u32 v{56+i}, s{sN0}, v{56+i}")
    for i in range(3):
        a(f"v_and_b32 v{56+i}, 63, v{56+i}")
    for i in range(3):
        a(f"v_lshlrev_b32 v{56+i}, 2, v{56+i}")
    for i in range(3):
        a(f"""
        s_mov_b64 exec, s[{sM+2*i}:{sM+2*i+1}]
        s_cbranch_execz k2_h
        ds_add_rtn_u32 v{59+i}, v{56+i}, v62 offset:{L_CNT}
        """)
    a(f"""
    k2_h:
    s_mov_b64 exec, -1
    """)
    for i in range(3):
        a(f"v_and_b32 v{22+4*i}, 0xffffff, v{22+4*i}")
    a(f"""
    v_lshlrev_b32 v0, 2, v{vL}
    s_waitcnt lgkmcnt(0)
    s_barrier
    """)
    stamp(a, o, 3)
    a(f"""
    ds_read_b32 v64, v0 offset:{L_CNT}
    s_mov_b32 s62, {XHALF}
    s_mov_b32 s63, {L_EF}
    s_waitcnt lgkmcnt(0)
    v_add_u32 v65, 1, v64
    v_and_b32 v65, -2, v65
    v_mov_b32 v66, v65
    s_nop 1
    """)
    scan(a, "v_add_u32", [66])
    a(f"""
    v_sub_u32 v67, v66, v65
    v_readlane_b32 s{sP}, v66, 63
    """)
    for i in range(3):
        a(f"ds_bpermute_b32 v{i}, v{56+i}, v67")
    a(f"""
    s_add_u32 s3, s{sP}, 7
    s_lshr_b32 s3, s3, 3
    s_lshr_b32 s10, s3, 4
    s_lshl_b32 s11, s10, 3
    v_cmp_lt_u32 vcc, s11, v65
    s_and_b32 s3, s3, 15
    s_cmp_lg_u64 vcc, 0
    s_cselect_b32 s{sSLOW}, 1, 0
    s_mul_i32 s11, s10, s{sWAVE}
    s_min_u32 s64, s3, s{sWAVE}
    s_add_u32 s11, s11, s64
    s_cmp_lt_u32 s{sWAVE}, s3
    s_addc_u32 s{sNG}, s10, 0
    s_lshl_b32 s65, s11, 2
    s_lshl_b32 s66, s11, 3
    s_waitcnt lgkmcnt(0)
    """)
    for i in range(3):
        a(f"v_add_u32 v{i}, v{i}, v{59+i}")
    for i in range(3):
        a(f"""
        v_and_b32 v{3+i}, 1, v{i}
        v_lshrrev_b32 v{6+i}, 1, v{i}
        v_lshlrev_b32 v{6+i}, 2, v{6+i}
        v_mad_u32_u24 v{3+i}, v{3+i}, s62, v{6+i}
        v_lshlrev_b32 v{6+i}, 3, v{i}
        v_lshl_add_u32 v{i}, v{i}, 5, s63
        """)
    for i in range(3):
        a(f"""
        s_mov_b64 exec, s[{sM+2*i}:{sM+2*i+1}]
        s_cbranch_execz k2_w0
        ds_write_b32 v{3+i}, v{22+4*i} offset:{L_XS}
        ds_write_b64 v{6+i}, v[{20+4*i}:{21+4*i}] offset:{L_YS}
        """)
    a(f"""
    k2_w0:
    s_mov_b64 exec, -1
    s_cmp_lg_u32 s{sWAVE}, 15
    s_cbranch_scc1 k2_nopad
    v_subrev_u32 v10, 40, v{vL}
    v_and_b32 v11, 1, v64
    v_cmp_gt_u32 vcc, 8, v10
    v_cmp_eq_u32 s[68:69], 1, v11
    v_max_i32 v10, 0, v10
    v_add3_u32 v10, v10, v67, v64
    s_or_b64 s[68:69], s[68:69], vcc
    v_and_b32 v11, 1, v10
    v_lshrrev_b32 v12, 1, v10
    v_lshlrev_b32 v12, 2, v12
    v_mad_u32_u24 v11, v11, s62, v12
    v_lshlrev_b32 v12, 3, v10
    v_lshl_add_u32 v10, v10, 5, s63
    v_mov_b32 v13, 0x7fff0000
    v_mov_b64 v[14:15], 0
    v_mov_b64 v[16:17], 0
    s_mov_b64 exec, s[68:69]
    ds_write_b32 v11, v13 offset:{L_XS}
    ds_write_b64 v12, v[14:15] offset:{L_YS}
    ds_write_b128 v10, v[14:17]
    ds_write_b128 v10, v[14:17] offset:16
    s_mov_b64 exec, -1
    k2_nopad:
    v_cmp_lt_u32 s[{sNM}:{sNM+1}], s66, v66
    v_cmp_lt_u32 vcc, 0, v64
    s_mov_b64 s[{sBM}:{sBM+1}], 0
    s_mov_b32 s{sBM+2}, 0
    s_lshl_b32 s64, s{sNG}, 2
    s_and_b64 s[{sNM}:{sNM+1}], s[{sNM}:{sNM+1}], vcc
    s_mov_b64 s[68:69], s[{sNM}:{sNM+1}]
    s_add_u32 s67, s65, 1
    k2_bl:
    s_ff1_i32_b64 s3, s[68:69]
    s_cmp_lt_i32 s3, 0
    s_cbranch_scc1 k2_bld
    v_readlane_b32 s10, v66, s3
    s_bitset0_b64 s[68:69], s3
    s_lshr_b32 s10, s10, 1
    s_sub_u32 s10, s10, s67
    s_cmp_ge_u32 s10, s64
    s_cbranch_scc1 k2_bld
    s_cmp_ge_u32 s10, 64
    s_cbranch_scc1 k2_bh
    s_bitset1_b64 s[{sBM}:{sBM+1}], s10
    s_branch k2_bl
    k2_bh:
    s_bitset1_b32 s{sBM+2}, s10
    s_branch k2_bl
    k2_bld:
    s_sub_u32 s10, s64, 1
    s_cmp_ge_u32 s10, 64
    s_cbranch_scc1 k2_bh2
    s_bitcmp0_b64 s[{sBM}:{sBM+1}], s10
    s_branch k2_bdone
    k2_bh2:
    s_bitcmp0_b32 s{sBM+2}, s10
    k2_bdone:
    s_cselect_b32 s{sOPEN}, s{sNG}, 0
    """)
    a(f"""
    v_and_b32 v10, 31, v{vL}
    v_lshrrev_b32 v11, 5, v{vL}
    s_lshl_b32 s3, s65, 2
    s_add_u32 s3, s3, {L_XS}
    v_mov_b32 v12, s3
    v_mad_u32_u24 v{VX}, v11, s62, v12
    s_lshl_b32 s3, s65, 4
    s_add_u32 s3, s3, {L_YS}
    v_lshlrev_b32 v12, 3, v11
    v_lshl_add_u32 v12, v10, 4, v12
    v_add_u32 v{VY}, s3, v12
    s_lshl_b32 s3, s65, 6
    s_add_u32 s3, s3, {L_EF}
    v_lshrrev_b32 v12, 3, v10
    v_lshlrev_b32 v12, 8, v12
    v_and_b32 v13, 3, v10
    v_lshl_add_u32 v12, v13, 6, v12
    v_and_b32 v13, 4, v10
    v_lshl_add_u32 v12, v13, 3, v12
    v_lshl_add_u32 v12, v11, 4, v12
    v_add_u32 v{VEF}, s3, v12
    v_lshlrev_b32 v{VJ4}, 4, v{vL}
    v_lshlrev_b32 v{VXO}, 4, v10
    """)
    for i in range(3):
        a(f"""
        s_mov_b64 exec, s[{sM+2*i}:{sM+2*i+1}]
        s_cbranch_execz k2_w1
        s_waitcnt vmcnt({4-2*i})
        ds_write_b128 v{i}, v[{32+8*i}:{35+8*i}]
        ds_write_b128 v{i}, v[{36+8*i}:{39+8*i}] offset:16
        """)
    a(f"""
    k2_w1:
    s_mov_b64 exec, -1
    s_waitcnt vmcnt(0)
    """)
    for k in range(4):
        a(f"v_mov_b64 {v(ACC+2*k,2)}, 0")
    a(f"""
    v_and_or_b32 v{ZE+8}, v{VXO}, 48, s{sCG}
    s_mov_b32 s{sREM}, s{sNG}
    s_waitcnt vmcnt(0) lgkmcnt(0)
    s_barrier
    """)
    stamp(a, o, 4)
    XS = f"s[{sX}:{sX+3}]"
    a(f"""
    s_cmp_eq_u32 s{sNG}, 0
    s_cbranch_scc1 k2_done
    ds_read_b128 {v(XI,4)}, v{VX}
    ds_read_b128 {v(XI+4,4)}, v{VX} offset:16
    ds_read_b64 {v(YY,2)}, v{VY}
    ds_read_b128 {v(ZE,4)}, v{ZE+8}
    ds_read_b128 {v(ZE+4,4)}, v{ZE+8} offset:64
    ds_read_b128 {v(EF,4)}, v{VEF}
    s_mov_b32 s{sX+2}, s{sXNR}
    s_waitcnt lgkmcnt(5)
    """)
    for k in range(4):
        a(f"v_add_u32 v{XI+k}, v{XI+k}, v{VXO}")
        a(f"buffer_load_dwordx4 {v(X+4*k,4)}, v{XI+k}, {XS}, 0 offen {XF}")
    a(f"""
    s_cmp_gt_u32 s{sREM}, 1
    s_cselect_b32 s{sX+2}, s{sXNR}, 0
    s_waitcnt lgkmcnt(4)
    """)
    for k in range(4, 8):
        a(f"v_add_u32 v{XI+k}, v{XI+k}, v{VXO}")
        a(f"buffer_load_dwordx4 {v(X+4*k,4)}, v{XI+k}, {XS}, 0 offen {XF}")
    a(f"ds_read_b128 {v(XI,4)}, v{VX} offset:32")

    def group_start(g):
        b = XI + 4 * (g % 2)
        nb = XI + 4 * ((g + 1) % 2)
        for k in range(4):
            a(f"v_add_u32 v{b+k}, v{b+k}, v{VXO}")
        a(f"ds_read_b128 {v(nb,4)}, v{VX} offset:{16*(g+3)}")
        a(f"s_cmp_gt_u32 s{sREM}, 2\ns_cselect_b32 s{sX+2}, s{sXNR}, 0")

    def mf(d, ar, br, c):
        a(f"v_mfma_f32_32x32x16_bf16 {v(d,16)}, {v(ar,4)}, {v(br,4)}, {c}")

    def rprol():
        a(f"""
        v_exp_f32 v{EE}, v{ZE}
        v_exp_f32 v{EE+1}, v{ZE+1}
        v_exp_f32 v{EE+2}, v{ZO}
        v_exp_f32 v{EE+3}, v{ZO+1}
        v_pk_add_f32 {v(EE,2)}, {v(EE,2)}, s[{sONE}:{sONE+1}]
        v_pk_add_f32 {v(EE+2,2)}, {v(EE+2,2)}, s[{sONE}:{sONE+1}]
        v_rcp_f32 v{EE}, v{EE}
        v_rcp_f32 v{EE+1}, v{EE+1}
        v_rcp_f32 v{EE+2}, v{EE+2}
        v_rcp_f32 v{EE+3}, v{EE+3}
        v_pk_mul_f32 {v(ZE,2)}, {v(ZE,2)}, {v(EE,2)}
        v_pk_mul_f32 {v(ZO,2)}, {v(ZO,2)}, {v(EE+2,2)}
        """)

    a("k2_blk:")
    for t in range(32):
        g, r = t // 4, t % 16
        if t == 0:
            a("s_waitcnt lgkmcnt(0)")
            for i in range(4):
                a(f"v_mfma_f32_4x4x4_16b_bf16 {v(ZO+4*i,4)}, {v(YY,2)}, {v(ZE+2*i,2)}, 0")
            a(f"ds_read_b64 {v(YY,2)}, v{VY} offset:512")
            a(f"v_add_u32 v{VY}, 512, v{VY}")
            mf(ZE, EF, W, "0")
            mf(ZE, EF, W + 4, v(ZE, 16))
            for m in range(4):
                a(f"v_cvt_pk_bf16_f32 v{TA+2*m}, v{ZO+m}, v{ZO+4+m}")
            for m in range(4):
                a(f"v_cvt_pk_bf16_f32 v{TA+2*m+1}, v{ZO+8+m}, v{ZO+12+m}")
            mf(ZO, EF, W + 8, "0")
            mf(ZO, EF, W + 12, v(ZO, 16))
            a(f"ds_read_b128 {v(EF,4)}, v{VEF} offset:1024")
            group_start(g)
            a("s_nop 3")
            rprol()
        elif t == 16:
            a("s_waitcnt lgkmcnt(0)")
            mf(ZE, EF, W, "0")
            mf(ZE, EF, W + 4, v(ZE, 16))
            mf(ZO, EF, W + 8, "0")
            mf(ZO, EF, W + 12, v(ZO, 16))
            a(f"ds_read_b128 {v(EF,4)}, v{VEF} offset:2048")
            a(f"v_add_u32 v{VEF}, 2048, v{VEF}")
            group_start(g)
            a("s_nop 2")
            rprol()
        elif t % 4 == 0:
            a("s_waitcnt lgkmcnt(0)")
            group_start(g)
            if t == 28:
                a(f"""
                v_and_or_b32 v{ZE+8}, v{VXO}, 48, s{sCG}
                ds_read_b128 {v(ZE,4)}, v{ZE+8}
                ds_read_b128 {v(ZE+4,4)}, v{ZE+8} offset:64
                """)
        k = t % 8
        xr = X + 4 * k
        ar = TA + 2 * (t % 4)
        p0 = r & ~1
        last = p0 == 14
        tr = "v_exp_f32" if r % 2 == 0 else "v_rcp_f32"

        def trn(e, z):
            if last or "notrans" in o.exp:
                return
            src = z if r % 2 == 0 else e
            a(f"{tr} v{e}, v{src}")

        def mid(e, z):
            if last:
                return
            if r % 2 == 0:
                a(f"v_pk_add_f32 {v(e,2)}, {v(e,2)}, s[{sONE}:{sONE+1}]")
            else:
                a(f"v_pk_mul_f32 {v(z,2)}, {v(z,2)}, {v(e,2)}")

        sel = "op_sel_hi:[0,1,1]" if r % 2 == 0 else "op_sel:[1,0,0] op_sel_hi:[1,1,1]"

        def fma(acc, z, tp):
            if "nofma" in o.exp:
                return
            a(f"v_pk_fma_f32 {v(acc,2)}, {v(z,2)}, {v(tp,2)}, {v(acc,2)} {sel}")

        cb = "" if "nocbsz" in o.exp else f"cbsz:3 abid:{t//4}"
        a("s_waitcnt vmcnt(7)")
        if "nomf" not in o.exp:
            a(f"v_mfma_f32_4x4x4_16b_bf16 {v(TP,4)}, {v(ar,2)}, {v(xr,2)}, 0 {cb}")
        trn(EE, ZE + p0 + 2)
        trn(EE + 1, ZE + p0 + 3)
        if "nomf" not in o.exp:
            a(f"v_mfma_f32_4x4x4_16b_bf16 {v(TP+4,4)}, {v(ar,2)}, {v(xr+2,2)}, 0 {cb}")
        if "noload" not in o.exp:
            a(f"buffer_load_dwordx4 {v(xr,4)}, v{XI+4*(g%2)+t%4}, {XS}, 0 offen {XF}")
        trn(EE + 2, ZO + p0 + 2)
        trn(EE + 3, ZO + p0 + 3)
        mid(EE, ZE + p0 + 2)
        if last:
            a("s_nop 2")
        fma(ACC, ZE + p0, TP)
        fma(ACC + 2, ZE + p0, TP + 2)
        mid(EE + 2, ZO + p0 + 2)
        fma(ACC + 4, ZO + p0, TP + 4)
        fma(ACC + 6, ZO + p0, TP + 6)
        if "nobr" in o.exp:
            a(f"k2_bk{t}:")
        else:
            a(f"s_bitcmp1_b32 s{sBM}, {t}\ns_cbranch_scc1 k2_fl{t}\nk2_bk{t}:")
        if t % 4 == 3:
            a(f"s_sub_u32 s{sREM}, s{sREM}, 1\ns_cmp_eq_u32 s{sREM}, 0\ns_cbranch_scc1 k2_done")
    a(f"""
    s_mov_b32 s{sBM}, s{sBM+1}
    s_mov_b32 s{sBM+1}, s{sBM+2}
    v_add_u32 v{VX}, 128, v{VX}
    s_branch k2_blk
    """)
    for t in range(32):
        a(f"k2_fl{t}:\ns_call_b64 s[{sRET}:{sRET+1}], k2_flush\ns_branch k2_bk{t}")
    a(f"""
    k2_flush:
    s_ff1_i32_b64 s{sCUR}, s[{sNM}:{sNM+1}]
    s_bitset0_b64 s[{sNM}:{sNM+1}], s{sCUR}
    s_lshl_b32 s58, s{sCUR}, 10
    s_and_b32 s59, s{sCUR}, 7
    s_lshl_b32 s59, s59, 4
    s_or_b32 s58, s58, s59
    v_xor_b32 v{TP}, s58, v{VJ4}
    ds_read_b128 {v(TP+4,4)}, v{TP} offset:{L_AGG}
    """)
    for q in range(4):
        a(f"v_permlane32_swap_b32 v{ACC+q}, v{ACC+4+q}")
    a(f"""
    v_pk_add_f32 {v(ACC,2)}, {v(ACC,2)}, {v(ACC+4,2)}
    v_pk_add_f32 {v(ACC+2,2)}, {v(ACC+2,2)}, {v(ACC+6,2)}
    v_mov_b64 {v(ACC+4,2)}, 0
    v_mov_b64 {v(ACC+6,2)}, 0
    s_waitcnt lgkmcnt(0)
    v_pk_add_f32 {v(TP+4,2)}, {v(TP+4,2)}, {v(ACC,2)}
    v_pk_add_f32 {v(TP+6,2)}, {v(TP+6,2)}, {v(ACC+2,2)}
    v_mov_b64 {v(ACC,2)}, 0
    v_mov_b64 {v(ACC+2,2)}, 0
    ds_write_b128 v{TP}, {v(TP+4,4)} offset:{L_AGG}
    s_setpc_b64 s[{sRET}:{sRET+1}]
    k2_open:
    s_cmp_eq_u32 s{sOPEN}, 0
    s_cbranch_scc1 k2_openret
    s_cmp_eq_u64 s[{sNM}:{sNM+1}], 0
    s_cbranch_scc1 k2_openret
    s_cmp_eq_u32 s{sSLOW}, 0
    s_cbranch_scc1 k2_flush
    s_ff1_i32_b64 s{sCUR}, s[{sNM}:{sNM+1}]
    s_lshl_b32 s58, s{sCUR}, 10
    s_and_b32 s59, s{sCUR}, 7
    s_lshl_b32 s59, s59, 4
    s_or_b32 s58, s58, s59
    v_xor_b32 v{TP}, s58, v{VJ4}
    """)
    for q in range(4):
        a(f"v_permlane32_swap_b32 v{ACC+q}, v{ACC+4+q}")
    a(f"""
    v_pk_add_f32 {v(ACC,2)}, {v(ACC,2)}, {v(ACC+4,2)}
    v_pk_add_f32 {v(ACC+2,2)}, {v(ACC+2,2)}, {v(ACC+6,2)}
    """)
    for q in range(4):
        a(f"ds_add_f32 v{TP}, v{ACC+q} offset:{L_AGG+4*q}")
    a(f"""
    k2_openret:
    s_setpc_b64 s[{sRET}:{sRET+1}]
    """)
    a(f"""
    k2_done:
    s_waitcnt vmcnt(0)
    s_add_u32 s{sW0}, s{sW0}, {CAP}
    v_and_b32 v{vL}, 63, v{VTID}
    s_cmp_lt_u32 s{sW0}, s{sTOT}
    s_cbranch_scc0 k2_last
    s_waitcnt lgkmcnt(0)
    s_barrier
    s_call_b64 s[{sRET}:{sRET+1}], k2_open
    v_lshlrev_b32 v1, 4, v{VTID}
    v_mov_b64 v[8:9], 0
    v_mov_b64 v[10:11], 0
    ds_write_b128 v1, v[8:11] offset:{L_XS}
    s_cmp_ge_u32 s{sWAVE}, 4
    s_cbranch_scc1 k2_p1
    v_lshlrev_b32 v2, 10, v{VTID}
    buffer_load_dword v4, v2, s[{sTB}:{sTB+3}], s{sB4} offen
    v_lshlrev_b32 v1, 2, v{VTID}
    v_add_u32 v1, {L_TT}, v1
    s_waitcnt vmcnt(0)
    ds_write_b32 v1, v4
    s_branch k2_p1
    k2_last:
    """)
    stamp(a, o, 5)
    a(f"""
    s_cmp_ge_u32 s{sWAVE}, 5
    s_cbranch_scc1 k2_nowm
    v_lshlrev_b32 v64, 4, v{vL}
    s_mov_b32 s58, {TB_WM}
    s_mov_b32 s59, {TB_WM+4096}
    """)
    for q in range(8):
        a(f"buffer_load_dwordx4 {v(4*q,4)}, v64, s[{sTB}:{sTB+3}], s{58+q//4} offen offset:{1024*(q%4)}")
    a(f"""
    k2_nowm:
    v_and_b32 v64, 31, v{vL}
    v_lshrrev_b32 v65, 5, v{vL}
    v_lshrrev_b32 v66, 2, v64
    v_mul_u32_u24 v66, 1040, v66
    v_lshl_add_u32 v66, v65, 7, v66
    v_and_b32 v67, 3, v64
    v_lshl_add_u32 v66, v67, 2, v66
    s_lshl_b32 s3, s{sWAVE}, 13
    v_add_u32 v113, s3, v66
    v_lshlrev_b32 v64, 4, v64
    v_lshl_add_u32 v112, v65, 9, v64
    """)
    for i in range(1, 8):
        a(f"v_xor_b32 v{113+i}, {16*i}, v113")
    a(f"""
    s_lshl_b32 s3, s{sWAVE}, 12
    s_mov_b32 s10, 0xbf317218
    s_mov_b32 s11, 0xbf317218
    s_waitcnt lgkmcnt(0)
    s_barrier
    """)
    stamp(a, o, 6)
    a(f"""
    s_call_b64 s[{sRET}:{sRET+1}], k2_open
    s_waitcnt lgkmcnt(0)
    s_barrier
    s_cmp_ge_u32 s{sWAVE}, 5
    s_cbranch_scc1 k2_end
    """)
    for i in range(8):
        for u in range(2):
            a(f"ds_read2st64_b32 {v(32+4*i+2*u,2)}, v{113+i} offset0:{2*u} offset1:{2*u+1}")
    for k in range(4):
        a(f"s_waitcnt lgkmcnt({12-4*k})")
        for r in range(32 + 8 * k, 40 + 8 * k, 2):
            a(f"v_pk_mul_f32 {v(r,2)}, {v(r,2)}, s[10:11]")
        for sx in range(4):
            a(f"v_cvt_pk_bf16_f32 v{64+4*sx+k}, v{32+8*k+sx}, v{36+8*k+sx}")
    a("s_waitcnt vmcnt(0)\ns_nop 0")
    for sx in range(4):
        mf(80, 64 + 4 * sx, 8 * sx, "0" if sx == 0 else v(80, 16))
        mf(96, 64 + 4 * sx, 8 * sx + 4, "0" if sx == 0 else v(96, 16))
    a("s_nop 10")
    for rq in range(4):
        b = 32 + 4 * rq
        a(f"""
        v_cvt_pk_bf16_f32 v{b}, v{80+4*rq}, v{81+4*rq}
        v_cvt_pk_bf16_f32 v{b+1}, v{82+4*rq}, v{83+4*rq}
        v_cvt_pk_bf16_f32 v{b+2}, v{96+4*rq}, v{97+4*rq}
        v_cvt_pk_bf16_f32 v{b+3}, v{98+4*rq}, v{99+4*rq}
        buffer_store_dwordx4 {v(b,4)}, v112, s[{sOUT}:{sOUT+3}], s3 offen offset:{1024*rq} {o.outst}
        """)
    if o.timing:
        a("s_waitcnt vmcnt(0)")
        stamp(a, o, 7)
        a(f"s_cmp_lg_u32 s{sWAVE}, 0\ns_cbranch_scc1 k2_end\ns_mov_b64 exec, 1")
        stamp_store(a, o, 1, 8, 8)
    a("k2_end:\ns_endpgm")
    return a.text()


def desc(name, vg, sg):
    return f""".p2align 6
.amdhsa_kernel {name}
  .amdhsa_next_free_vgpr {vg}
  .amdhsa_next_free_sgpr {sg}
  .amdhsa_accum_offset {(vg+3)//4*4}
  .amdhsa_group_segment_fixed_size 0
  .amdhsa_kernarg_size 88
  .amdhsa_user_sgpr_count 2
  .amdhsa_user_sgpr_kernarg_segment_ptr 1
  .amdhsa_system_sgpr_workgroup_id_x 1
.end_amdhsa_kernel
"""


def main():
    p = argparse.ArgumentParser()
    p.add_argument("-o", default="cdna_kernels/" + NAME + ".s")
    p.add_argument("--timing", action="store_true")
    p.add_argument("--k1ld", default="nt")
    p.add_argument("--k1st", default="sc1")
    p.add_argument("--k2ld", default="")
    p.add_argument("--xld", default="")
    p.add_argument("--outst", default="")
    p.add_argument("--exp", default="")
    o = p.parse_args()
    o.exp = set(o.exp.split(","))
    K1 = "tfn_partition_kernel"
    K2 = NAME + "_kernel"
    t = f"""; TFN tensor-product message passing: launch 1 groups edge payloads by destination bucket,
; @launch kernel={K1} grid=({G},1,1) block=(1024,1,1) lds={L1_SZ}
; @launch kernel={K2} grid=({G},1,1) block=(1024,1,1) lds={L_SZ}
.amdgcn_target "amdgcn-amd-amdhsa--gfx950"
.text
.globl {K1}
.p2align 8
.type {K1},@function
{K1}:
{k1(o)}
.globl {K2}
.p2align 8
.type {K2},@function
{K2}:
{k2(o)}
.section .rodata,"a"
{desc(K1, 104, 96)}{desc(K2, 128, 96)}"""
    open(o.o, "w").write(t)


main()
```

```python
import sys, argparse

NAME = "gather_scatter__tensor_product_equiv_tfn__graph"
E, N = 640000, 10000
G, CH = 256, 2500
BMUL = 26843
WS_EF = 0
WS_YI = E * 32
WS_TB = WS_YI + E * 12
TB_WR = 262144
TB_CG = TB_WR + 4096
TB_WM = TB_CG + 128
TB_SZ = TB_WM + 8192
WS_TM = WS_TB + 524288
L1_HIST, L1_ST, L1_EF, L1_YI = 0, 1024, 2048, 82048
L1_SZ = L1_YI + 32768
CAP, C = 2720, 2768
SEG = 176
L_AGG = 0
L_XS = 40960
XHALF = C // 2 * 4
L_CNT = L_XS + C * 4
L_YS = L_CNT + 256
L_EF = L_YS + C * 8
L_CG = L_EF + C * 32
L_SZ = L_CG + 128
L_TT = L_EF
assert L_SZ <= 163840 and L_CG % 64 == 0 and L_EF >= 65536 and XHALF % 16 == 0


class A:
    def __init__(s):
        s.l = []

    def __call__(s, t):
        for x in t.strip("\n").split("\n"):
            x = x.strip()
            if x:
                s.l.append(x if x.endswith(":") else "    " + x)

    def text(s):
        return "\n".join(s.l) + "\n"


def v(a, n=1):
    return f"v{a}" if n == 1 else f"v[{a}:{a+n-1}]"


def s(a, n=1):
    return f"s{a}" if n == 1 else f"s[{a}:{a+n-1}]"


def srd(a, r, ptr, off, nr):
    if off is None:
        a(f"s_mov_b32 s{r}, s{ptr}\ns_mov_b32 s{r+1}, s{ptr+1}")
    else:
        a(f"s_add_u32 s{r}, s{ptr}, {off}\ns_addc_u32 s{r+1}, s{ptr+1}, 0")
    a(f"s_mov_b32 s{r+2}, {nr}\ns_mov_b32 s{r+3}, 0x20000")


DPPS = ["row_shr:1 row_mask:0xf bank_mask:0xf bound_ctrl:1",
        "row_shr:2 row_mask:0xf bank_mask:0xf bound_ctrl:1",
        "row_shr:4 row_mask:0xf bank_mask:0xf bound_ctrl:1",
        "row_shr:8 row_mask:0xf bank_mask:0xf bound_ctrl:1",
        "row_bcast:15 row_mask:0xa bank_mask:0xf",
        "row_bcast:31 row_mask:0xc bank_mask:0xf"]


def scan(a, op, regs):
    for d in DPPS:
        for r in regs:
            a(f"{op}_dpp v{r}, v{r}, v{r} {d}")
        if len(regs) < 3:
            a(f"s_nop {2 - len(regs)}")


def stamp(a, o, i):
    if o.timing:
        a(f"{'s_memtime' if 'clk' in o.exp else 's_memrealtime'} s[{72+2*i}:{73+2*i}]")


def stamp_store(a, o, kern, n, ptr, sw):
    if not o.timing:
        return
    a(f"""
    s_waitcnt lgkmcnt(0)
    s_lshl_b32 s3, s2, 4
    s_add_u32 s3, s3, s{sw}
    s_lshl_b32 s3, s3, 6
    s_add_u32 s3, s3, {WS_TM + kern*262144}
    """)
    srd(a, 68, ptr, "s3", 64)
    a("s_nop 4\nv_mov_b32 v0, 0")
    for i in range(n):
        a(f"v_mov_b32 v1, s{72+2*i}\nbuffer_store_dword v1, v0, s[68:71], 0 offen offset:{4*i}\ns_nop 1")


def k1(o):
    a = A()
    LD = o.k1ld
    ST = o.k1st
    a(f"""
    s_cmp_ge_u32 s2, {G}
    s_cbranch_scc1 k1_end
    """)
    stamp(a, o, 0)
    a(f"""
    s_load_dwordx4 s[4:7], s[0:1], 8
    s_load_dwordx4 s[8:11], s[0:1], 24
    s_load_dwordx4 s[12:15], s[0:1], 40
    s_load_dwordx2 s[16:17], s[0:1], 56
    s_load_dwordx2 s[18:19], s[0:1], 80
    v_lshlrev_b32 v1, 2, v0
    v_lshlrev_b32 v2, 3, v0
    v_lshlrev_b32 v3, 5, v0
    v_and_b32 v46, 0x3fc, v1
    v_mov_b32 v47, 0
    v_lshrrev_b32 v62, 6, v0
    v_and_b32 v63, 63, v0
    ds_write_b32 v46, v47 offset:{L1_HIST}
    v_readfirstlane_b32 s62, v62
    v_cmp_gt_u32 vcc, {CH - 2048}, v0
    s_movk_i32 s52, 4096
    s_movk_i32 s53, 8192
    s_movk_i32 s54, 16384
    s_mov_b32 s55, 32768
    s_mov_b32 s56, 65536
    s_mov_b32 s57, 49152
    s_mov_b64 s[60:61], vcc
    s_mul_i32 s3, s2, {CH*4}
    s_mul_i32 s58, s2, {CH*8}
    s_mul_i32 s59, s2, {CH*32}
    s_waitcnt lgkmcnt(0)
    """)
    srd(a, 24, 6, "s3", CH * 4)
    srd(a, 20, 4, "s3", CH * 4)
    srd(a, 28, 8, "s58", CH * 8)
    srd(a, 32, 10, "s59", CH * 32)
    a(f"""
    s_cmp_eq_u32 s62, 15
    s_cselect_b32 s63, s2, 6
    s_cmp_ge_u32 s63, 6
    s_cbranch_scc1 k1_noimg0
    v_and_b32 v64, 31, v63
    v_lshrrev_b32 v65, 5, v63
    v_lshlrev_b32 v64, 2, v64
    s_cmp_eq_u32 s63, 4
    s_cbranch_scc1 k1_ldwr
    s_cmp_eq_u32 s63, 5
    s_cbranch_scc1 k1_ldcg
    """)
    srd(a, 48, 16, None, 8192)
    a(f"""
    v_lshl_add_u32 v64, v65, 11, v64
    s_and_b32 s64, s63, 1
    s_lshl_b32 s64, s64, 12
    s_lshr_b32 s65, s63, 1
    s_lshl_b32 s65, s65, 7
    s_add_u32 s64, s64, s65
    """)
    for i in range(8):
        a(f"buffer_load_dword v{66+i}, v64, s[48:51], s64 offen offset:{256*i}")
    a("s_branch k1_noimg0\nk1_ldwr:")
    srd(a, 48, 12, None, 2048)
    a("v_lshl_add_u32 v64, v65, 10, v64")
    for i in range(8):
        a(f"buffer_load_dword v{66+i}, v64, s[48:51], 0 offen offset:{128*i}")
    a("s_branch k1_noimg0\nk1_ldcg:")
    srd(a, 48, 14, None, 128)
    a("v_and_b32 v64, 3, v63\nv_lshlrev_b32 v64, 1, v64")
    for i in range(16):
        a(f"buffer_load_ushort v{66+i}, v64, s[48:51], 0 offen offset:{8*i}")
    a("k1_noimg0:")
    so4 = ["0", "s52", "s53"]
    so8 = ["0", "s53", "s54"]
    so32 = ["0", "s55", "s56"]
    for i in range(3):
        a(f"buffer_load_dword v{4+i}, v1, s[24:27], {so4[i]} offen {LD}")
    for i in range(3):
        a(f"buffer_load_dword v{7+i}, v1, s[20:23], {so4[i]} offen {LD}")
    for i in range(3):
        a(f"buffer_load_dwordx2 v[{10+2*i}:{11+2*i}], v2, s[28:31], {so8[i]} offen {LD}")
    for i in range(3):
        for u in range(2):
            r = 16 + 8 * i + 4 * u
            a(f"buffer_load_dwordx4 v[{r}:{r+3}], v3, s[32:35], {so32[i]} offen offset:{16*u} {LD}")
    a(f"s_add_u32 s59, s59, {WS_EF}")
    srd(a, 36, 18, "s59", CH * 32)
    a(f"s_mul_i32 s58, s2, {CH*12}\ns_add_u32 s58, s58, {WS_YI}")
    srd(a, 40, 18, "s58", CH * 12)
    srd(a, 44, 18, WS_TB, TB_SZ)
    a(f"""
    s_lshl_b32 s66, s2, 10
    s_mov_b32 s67, {L1_YI}
    v_mov_b32 v47, 1
    v_lshlrev_b32 v61, 4, v63
    s_barrier
    s_waitcnt vmcnt(12)
    """)
    stamp(a, o, 1)
    for i in range(3):
        a(f"v_mul_u32_u24 v{40+i}, {BMUL}, v{4+i}")
    for i in range(3):
        a(f"v_lshrrev_b32 v{40+i}, 20, v{40+i}")
    for i in range(3):
        a(f"v_lshlrev_b32 v{40+i}, 2, v{40+i}")
    a(f"""
    ds_add_rtn_u32 v43, v40, v47 offset:{L1_HIST}
    ds_add_rtn_u32 v44, v41, v47 offset:{L1_HIST}
    s_mov_b64 exec, s[60:61]
    s_cbranch_execz k1_a
    ds_add_rtn_u32 v45, v42, v47 offset:{L1_HIST}
    k1_a:
    s_mov_b64 exec, -1
    """)
    for i in range(3):
        a(f"v_lshlrev_b32 v{4+i}, 24, v{4+i}")
    a("s_waitcnt vmcnt(9)")
    for i in range(3):
        a(f"v_lshl_or_b32 v{7+i}, v{7+i}, 9, v{4+i}")
    a(f"""
    s_waitcnt lgkmcnt(0)
    s_barrier
    ds_read_b128 v[48:51], v61 offset:{L1_HIST}
    s_waitcnt lgkmcnt(0)
    v_add_u32 v54, v48, v49
    v_add_u32 v55, v54, v50
    v_add_u32 v56, v55, v51
    v_mov_b32 v57, v56
    s_nop 1
    """)
    scan(a, "v_add_u32", [57])
    a(f"""
    v_sub_u32 v52, v57, v56
    v_add_u32 v53, v52, v48
    v_add_u32 v54, v52, v54
    v_add_u32 v55, v52, v55
    ds_write_b128 v61, v[52:55] offset:{L1_ST}
    ds_read_b32 v56, v40 offset:{L1_ST}
    ds_read_b32 v57, v41 offset:{L1_ST}
    ds_read_b32 v58, v42 offset:{L1_ST}
    v_lshl_or_b32 v48, v48, 16, v52
    v_lshl_or_b32 v49, v49, 16, v53
    v_lshl_or_b32 v50, v50, 16, v54
    v_lshl_or_b32 v51, v51, 16, v55
    s_waitcnt lgkmcnt(0)
    """)
    for i in range(3):
        a(f"v_add_u32 v{43+i}, v{43+i}, v{56+i}")
    for i in range(3):
        a(f"v_mad_u32_u24 v{40+i}, v{43+i}, 12, s67")
        a(f"v_lshlrev_b32 v{43+i}, 5, v{43+i}")
    stamp(a, o, 2)
    a("s_waitcnt vmcnt(6)")
    for i in range(2):
        a(f"ds_write2_b32 v{40+i}, v{10+2*i}, v{11+2*i} offset0:0 offset1:1")
        a(f"ds_write_b32 v{40+i}, v{7+i} offset:8")
    for i in range(2):
        a(f"s_waitcnt vmcnt({4-2*i})")
        a(f"ds_write_b128 v{43+i}, v[{16+8*i}:{19+8*i}] offset:{L1_EF}")
        a(f"ds_write_b128 v{43+i}, v[{20+8*i}:{23+8*i}] offset:{L1_EF+16}")
    a(f"""
    s_mov_b64 exec, s[60:61]
    s_cbranch_execz k1_b
    ds_write2_b32 v42, v14, v15 offset0:0 offset1:1
    ds_write_b32 v42, v9 offset:8
    s_waitcnt vmcnt(0)
    ds_write_b128 v45, v[32:35] offset:{L1_EF}
    ds_write_b128 v45, v[36:39] offset:{L1_EF+16}
    k1_b:
    s_mov_b64 exec, -1
    s_waitcnt vmcnt(0)
    s_cmp_lg_u32 s62, 0
    s_cbranch_scc1 k1_c
    buffer_store_dwordx4 v[48:51], v61, s[44:47], s66 offen {ST}
    k1_c:
    v_lshlrev_b32 v1, 4, v0
    v_add_u32 v2, 0x10000, v1
    s_waitcnt lgkmcnt(0)
    s_barrier
    """)
    stamp(a, o, 3)
    rd = [(1, L1_EF + 16384 * p) for p in range(4)] + [(2, L1_EF), (2, L1_YI - 65536), (2, L1_YI - 65536 + 16384)]
    for p, (r, off) in enumerate(rd):
        a(f"ds_read_b128 v[{4+4*p}:{7+4*p}], v{r} offset:{off}")
    sos = ["0", "s54", "s55", "s57", "s56", "0", "s54"]
    for p in range(7):
        a(f"s_waitcnt lgkmcnt({6-p})")
        sr = "s[36:39]" if p < 5 else "s[40:43]"
        a(f"buffer_store_dwordx4 v[{4+4*p}:{7+4*p}], v1, {sr}, {sos[p]} offen {ST}")
    a(f"""
    s_cmp_ge_u32 s63, 6
    s_cbranch_scc1 k1_fin
    s_cmp_eq_u32 s63, 4
    s_cbranch_scc1 k1_wr
    s_cmp_eq_u32 s63, 5
    s_cbranch_scc1 k1_cg
    s_mov_b32 s64, 0x05040100
    s_mov_b32 s65, 0x07060302
    s_lshl_b32 s58, s63, 11
    s_add_u32 s58, s58, {TB_WM}
    """)
    for k in range(4):
        a(f"v_perm_b32 v{84+k}, v{67+2*k}, v{66+2*k}, s64")
        a(f"v_perm_b32 v{88+k}, v{67+2*k}, v{66+2*k}, s65")
    a(f"""
    buffer_store_dwordx4 v[84:87], v61, s[44:47], s58 offen {ST}
    buffer_store_dwordx4 v[88:91], v61, s[44:47], s58 offen offset:1024 {ST}
    s_branch k1_fin
    k1_wr:
    s_mov_b32 s64, 0xbfb8aa3b
    s_mov_b32 s65, 0xffff0000
    s_mov_b32 s58, {TB_WR}
    """)
    for par in range(2):
        for k in range(4):
            for u in range(2):
                if par == 0:
                    a(f"v_lshlrev_b32 v{76+u}, 16, v{66+2*k+u}")
                else:
                    a(f"v_and_b32 v{76+u}, s65, v{66+2*k+u}")
            a(f"""
            v_mul_f32 v76, s64, v76
            v_mul_f32 v77, s64, v77
            v_cvt_pk_bf16_f32 v{84+8*par+k}, v76, v77
            v_lshlrev_b32 v78, 16, v{84+8*par+k}
            v_and_b32 v79, s65, v{84+8*par+k}
            v_sub_f32 v76, v76, v78
            v_sub_f32 v77, v77, v79
            v_cvt_pk_bf16_f32 v{88+8*par+k}, v76, v77
            """)
    for q in range(4):
        a(f"buffer_store_dwordx4 v[{84+4*q}:{87+4*q}], v61, s[44:47], s58 offen offset:{1024*q} {ST}")
    a(f"""
    s_branch k1_fin
    k1_cg:
    s_mov_b32 s58, {TB_CG}
    """)
    for k in range(8):
        a(f"v_lshl_or_b32 v{84+k}, v{67+2*k}, 16, v{66+2*k}")
    a(f"""
    s_mov_b64 exec, 15
    buffer_store_dwordx4 v[84:87], v61, s[44:47], s58 offen {ST}
    buffer_store_dwordx4 v[88:91], v61, s[44:47], s58 offen offset:64 {ST}
    s_mov_b64 exec, -1
    k1_fin:
    """)
    if o.timing:
        a("s_waitcnt vmcnt(0)")
        stamp(a, o, 4)
        a("s_mov_b64 exec, 1")
        stamp_store(a, o, 0, 5, 18, 62)
    a("k1_end:\ns_endpgm")
    return a.text()


X, ZE, ZO, TA, TP, ACC, EE, W, EF, YY, XI = 0, 32, 48, 64, 72, 80, 88, 92, 108, 112, 114
VXO, VX, VY, VEF, VJ4, VTID = 122, 123, 124, 125, 126, 127
sX, sEF, sYI, sTB, sOUT = 12, 16, 20, 24, 28
sWAVE, sB4, sN0, sW0, sTOT, sLIM, sP = 32, 33, 34, 35, 36, 37, 38
sNG = 39
sONE, sXNR, sREM, sBM, sNM, sCUR, sCG = 40, 42, 43, 44, 48, 50, 51
sM = 52
sRET = 60
sSLOW, sOPEN = 47, 70
sTH, sPR = 71, 11


def k2(o):
    a = A()
    LD = o.k2ld
    XF = o.xld
    vL = VXO
    a(f"""
    s_cmp_ge_u32 s2, {G}
    s_cbranch_scc1 k2_end
    """)
    stamp(a, o, 0)
    a(f"""
    s_load_dwordx2 s[4:5], s[0:1], 0
    s_load_dwordx2 s[6:7], s[0:1], 64
    s_load_dwordx2 s[8:9], s[0:1], 80
    v_mov_b32 v{VTID}, v0
    v_lshrrev_b32 v1, 6, v0
    v_and_b32 v{vL}, 63, v0
    v_readfirstlane_b32 s{sWAVE}, v1
    s_and_b32 s3, s2, 7
    s_lshl_b32 s3, s3, 5
    s_lshr_b32 s10, s2, 3
    s_or_b32 s3, s3, s10
    s_lshl_b32 s{sB4}, s3, 2
    s_mul_i32 s{sN0}, s3, 320007
    s_add_u32 s10, s{sN0}, {320007+8160}
    s_add_u32 s{sN0}, s{sN0}, 8160
    s_lshr_b32 s{sN0}, s{sN0}, 13
    s_lshr_b32 s10, s10, 13
    s_min_u32 s10, s10, {N}
    s_sub_u32 s10, s10, s{sN0}
    s_lshl_b32 s10, s10, 9
    s_lshl_b32 s11, s{sN0}, 9
    s_mov_b32 s{sW0}, 0
    s_mov_b32 s{sONE}, 1.0
    s_mov_b32 s{sONE+1}, 1.0
    s_mov_b32 s{sXNR}, {0 if "nox" in o.exp else N*512}
    s_mov_b32 s{sCG}, {L_CG}
    s_mov_b32 s58, {TB_WR}
    s_mov_b32 s59, {TB_CG}
    v_lshlrev_b32 v2, 10, v0
    v_lshlrev_b32 v3, 4, v{vL}
    s_waitcnt lgkmcnt(0)
    """)
    srd(a, sTB, 8, WS_TB, TB_SZ)
    a(f"""
    s_cmp_ge_u32 s{sWAVE}, 4
    s_cbranch_scc1 k2_not0
    buffer_load_dword v4, v2, s[{sTB}:{sTB+3}], s{sB4} offen
    k2_not0:
    s_cmp_lg_u32 s{sWAVE}, 4
    s_cbranch_scc1 k2_nocg0
    s_mov_b64 exec, 0xff
    buffer_load_dwordx4 v[4:7], v3, s[{sTB}:{sTB+3}], s59 offen
    s_mov_b64 exec, -1
    k2_nocg0:
    """)
    for q in range(4):
        a(f"buffer_load_dwordx4 {v(W+4*q,4)}, v3, s[{sTB}:{sTB+3}], s58 offen offset:{1024*q}")
    srd(a, sX, 4, None, N * 512)
    srd(a, sEF, 8, WS_EF, E * 32)
    srd(a, sYI, 8, WS_YI, E * 12)
    srd(a, sOUT, 6, "s11", "s10")
    a(f"""
    v_lshlrev_b32 v1, 4, v0
    v_mov_b64 v[8:9], 0
    v_mov_b64 v[10:11], 0
    """)
    for p in range(4):
        a(f"ds_write_b128 v1, v[8:11] offset:{16384*p}")
    a(f"""
    s_cmp_lg_u32 s{sWAVE}, 4
    s_cbranch_scc1 k2_nocg1
    v_add_u32 v3, s{sCG}, v3
    s_mov_b64 exec, 0xff
    s_waitcnt vmcnt(4)
    ds_write_b128 v3, v[4:7]
    s_mov_b64 exec, -1
    k2_nocg1:
    s_cmp_ge_u32 s{sWAVE}, 4
    s_cbranch_scc1 k2_p1
    v_lshlrev_b32 v1, 2, v0
    v_add_u32 v1, {L_TT}, v1
    s_waitcnt vmcnt(4)
    ds_write_b32 v1, v4
    k2_p1:
    v_lshlrev_b32 v1, 4, v{vL}
    v_add_u32 v1, {L_TT}, v1
    s_mul_i32 s58, s{sWAVE}, {SEG}
    s_add_u32 s59, s58, s{sW0}
    s_waitcnt lgkmcnt(0)
    s_barrier
    """)
    stamp(a, o, 1)
    a(f"""
    ds_read_b128 v[0:3], v1
    v_mul_u32_u24 v12, {4*CH}, v{vL}
    v_add_u32 v13, {CH}, v12
    v_add_u32 v14, {2*CH}, v12
    v_add_u32 v15, {3*CH}, v12
    s_waitcnt lgkmcnt(0)
    """)
    for i in range(4):
        a(f"v_lshrrev_b32 v{4+i}, 16, v{i}")
    for i in range(4):
        a(f"v_and_b32 v{i}, 0xffff, v{i}")
    a(f"""
    v_add_u32 v10, v4, v5
    v_add_u32 v11, v10, v6
    v_add_u32 v16, v11, v7
    v_mov_b32 v17, v16
    """)
    for i in range(4):
        a(f"v_add_u32 v{12+i}, v{12+i}, v{i}")
    scan(a, "v_add_u32", [17])
    a(f"""
    v_sub_u32 v8, v17, v16
    v_readlane_b32 s{sTOT}, v17, 63
    v_add_u32 v9, v8, v4
    v_add_u32 v10, v8, v10
    v_add_u32 v11, v8, v11
    """)
    for i in range(4):
        a(f"v_sub_u32 v{12+i}, v{12+i}, v{8+i}")
    for i in range(4):
        a(f"v_cmp_ge_u32 s[{62+2*i}:{63+2*i}], s59, v{8+i}")
    for i in range(4):
        a(f"v_subrev_u32 v{8+i}, s{sW0}, v{8+i}")
    for i in range(4):
        a(f"v_min_u32 v{8+i}, {CAP}, v{8+i}")
    for i in range(4):
        a(f"v_lshlrev_b32 v{8+i}, 2, v{8+i}")
    for i in range(4):
        a(f"ds_max_u32 v{8+i}, v{12+i} offset:{L_XS}")
    a(f"""
    v_add_u32 v16, s58, v{vL}
    v_lshlrev_b32 v17, 2, v16
    """)
    for i in range(3):
        a(f"ds_read_b32 v{i}, v17 offset:{L_XS+256*i}")
    for i in range(4):
        a(f"v_cndmask_b32 v{4+i}, 0, v{12+i}, s[{62+2*i}:{63+2*i}]")
    a(f"""
    v_max3_u32 v4, v4, v5, v6
    v_max_u32 v3, v4, v7
    s_sub_u32 s{sLIM}, s{sTOT}, s{sW0}
    s_min_u32 s{sLIM}, s{sLIM}, {CAP}
    s_add_u32 s10, s58, {SEG}
    s_min_u32 s10, s10, s{sLIM}
    v_add_u32 v17, 64, v16
    v_add_u32 v18, 128, v16
    v_cmp_gt_u32 s[{sM}:{sM+1}], s10, v16
    v_cmp_gt_u32 s[{sM+2}:{sM+3}], s10, v17
    v_cmp_gt_u32 s[{sM+4}:{sM+5}], s10, v18
    s_waitcnt lgkmcnt(0)
    """)
    scan(a, "v_max_u32", [3, 0, 1, 2])
    a(f"""
    v_readlane_b32 s62, v3, 63
    v_readlane_b32 s63, v0, 63
    v_readlane_b32 s64, v1, 63
    v_add_u32 v16, s{sW0}, v16
    v_add_u32 v17, s{sW0}, v17
    v_add_u32 v18, s{sW0}, v18
    s_max_u32 s63, s63, s62
    s_max_u32 s64, s64, s63
    v_max_u32 v0, s62, v0
    v_max_u32 v1, s63, v1
    v_max_u32 v2, s64, v2
    v_mov_b32 v3, 0xf00000
    """)
    for i in range(3):
        a(f"v_add_u32 v{i}, v{i}, v{16+i}")
    for i in range(3):
        a(f"v_cndmask_b32 v{i}, v3, v{i}, s[{sM+2*i}:{sM+2*i+1}]")
    for i in range(3):
        a(f"v_mul_u32_u24 v{4+i}, 12, v{i}")
        a(f"buffer_load_dwordx3 v[{20+4*i}:{22+4*i}], v{4+i}, s[{sYI}:{sYI+3}], 0 offen {LD}")
    for i in range(3):
        a(f"v_lshlrev_b32 v{i}, 5, v{i}")
        for u in range(2):
            r = 32 + 8 * i + 4 * u
            a(f"buffer_load_dwordx4 v[{r}:{r+3}], v{i}, s[{sEF}:{sEF+3}], 0 offen offset:{16*u} {LD}")
    stamp(a, o, 2)
    a("v_mov_b32 v62, 1\ns_waitcnt vmcnt(6)")
    for i in range(3):
        a(f"v_lshrrev_b32 v{56+i}, 24, v{22+4*i}")
    for i in range(3):
        a(f"v_subrev_u32 v{56+i}, s{sN0}, v{56+i}")
    for i in range(3):
        a(f"v_and_b32 v{56+i}, 63, v{56+i}")
    for i in range(3):
        a(f"v_lshlrev_b32 v{56+i}, 2, v{56+i}")
    for i in range(3):
        a(f"""
        s_mov_b64 exec, s[{sM+2*i}:{sM+2*i+1}]
        s_cbranch_execz k2_h
        ds_add_rtn_u32 v{59+i}, v{56+i}, v62 offset:{L_CNT}
        """)
    a(f"""
    k2_h:
    s_mov_b64 exec, -1
    """)
    for i in range(3):
        a(f"v_and_b32 v{22+4*i}, 0xffffff, v{22+4*i}")
    a(f"""
    v_lshlrev_b32 v0, 2, v{vL}
    s_waitcnt lgkmcnt(0)
    s_barrier
    """)
    stamp(a, o, 3)
    a(f"""
    ds_read_b32 v64, v0 offset:{L_CNT}
    s_mov_b32 s62, {XHALF}
    s_mov_b32 s63, {L_EF}
    s_waitcnt lgkmcnt(0)
    v_add_u32 v65, 1, v64
    v_and_b32 v65, -2, v65
    v_mov_b32 v66, v65
    s_nop 1
    """)
    scan(a, "v_add_u32", [66])
    a(f"""
    v_sub_u32 v67, v66, v65
    v_readlane_b32 s{sP}, v66, 63
    """)
    for i in range(3):
        a(f"ds_bpermute_b32 v{i}, v{56+i}, v67")
    a(f"""
    s_add_u32 s3, s{sP}, 7
    s_lshr_b32 s3, s3, 3
    s_lshr_b32 s10, s3, 4
    s_lshl_b32 s11, s10, 3
    v_cmp_lt_u32 vcc, s11, v65
    s_and_b32 s3, s3, 15
    s_cmp_lg_u64 vcc, 0
    s_cselect_b32 s{sSLOW}, 1, 0
    s_mul_i32 s11, s10, s{sWAVE}
    s_min_u32 s64, s3, s{sWAVE}
    s_add_u32 s11, s11, s64
    s_cmp_lt_u32 s{sWAVE}, s3
    s_addc_u32 s{sNG}, s10, 0
    s_lshl_b32 s65, s11, 2
    s_lshl_b32 s66, s11, 3
    s_waitcnt lgkmcnt(0)
    """)
    for i in range(3):
        a(f"v_add_u32 v{i}, v{i}, v{59+i}")
    for i in range(3):
        a(f"""
        v_and_b32 v{3+i}, 1, v{i}
        v_lshrrev_b32 v{6+i}, 1, v{i}
        v_lshlrev_b32 v{6+i}, 2, v{6+i}
        v_mad_u32_u24 v{3+i}, v{3+i}, s62, v{6+i}
        v_lshlrev_b32 v{6+i}, 3, v{i}
        v_lshl_add_u32 v{i}, v{i}, 5, s63
        """)
    for i in range(3):
        a(f"""
        s_mov_b64 exec, s[{sM+2*i}:{sM+2*i+1}]
        s_cbranch_execz k2_w0
        ds_write_b32 v{3+i}, v{22+4*i} offset:{L_XS}
        ds_write_b64 v{6+i}, v[{20+4*i}:{21+4*i}] offset:{L_YS}
        """)
    a(f"""
    k2_w0:
    s_mov_b64 exec, -1
    s_cmp_lg_u32 s{sWAVE}, 15
    s_cbranch_scc1 k2_nopad
    v_subrev_u32 v10, 40, v{vL}
    v_and_b32 v11, 1, v64
    v_cmp_gt_u32 vcc, 8, v10
    v_cmp_eq_u32 s[68:69], 1, v11
    v_max_i32 v10, 0, v10
    v_add3_u32 v10, v10, v67, v64
    s_or_b64 s[68:69], s[68:69], vcc
    v_and_b32 v11, 1, v10
    v_lshrrev_b32 v12, 1, v10
    v_lshlrev_b32 v12, 2, v12
    v_mad_u32_u24 v11, v11, s62, v12
    v_lshlrev_b32 v12, 3, v10
    v_lshl_add_u32 v10, v10, 5, s63
    v_mov_b32 v13, 0x7fff0000
    v_mov_b64 v[14:15], 0
    v_mov_b64 v[16:17], 0
    s_mov_b64 exec, s[68:69]
    ds_write_b32 v11, v13 offset:{L_XS}
    ds_write_b64 v12, v[14:15] offset:{L_YS}
    ds_write_b128 v10, v[14:17]
    ds_write_b128 v10, v[14:17] offset:16
    s_mov_b64 exec, -1
    k2_nopad:
    v_cmp_lt_u32 s[{sNM}:{sNM+1}], s66, v66
    v_cmp_lt_u32 vcc, 0, v64
    s_mov_b64 s[{sBM}:{sBM+1}], 0
    s_mov_b32 s{sBM+2}, 0
    s_lshl_b32 s64, s{sNG}, 2
    s_and_b64 s[{sNM}:{sNM+1}], s[{sNM}:{sNM+1}], vcc
    s_mov_b64 s[68:69], s[{sNM}:{sNM+1}]
    s_add_u32 s67, s65, 1
    k2_bl:
    s_ff1_i32_b64 s3, s[68:69]
    s_cmp_lt_i32 s3, 0
    s_cbranch_scc1 k2_bld
    v_readlane_b32 s10, v66, s3
    s_bitset0_b64 s[68:69], s3
    s_lshr_b32 s10, s10, 1
    s_sub_u32 s10, s10, s67
    s_cmp_ge_u32 s10, s64
    s_cbranch_scc1 k2_bld
    s_cmp_ge_u32 s10, 64
    s_cbranch_scc1 k2_bh
    s_bitset1_b64 s[{sBM}:{sBM+1}], s10
    s_branch k2_bl
    k2_bh:
    s_bitset1_b32 s{sBM+2}, s10
    s_branch k2_bl
    k2_bld:
    s_sub_u32 s10, s64, 1
    s_cmp_ge_u32 s10, 64
    s_cbranch_scc1 k2_bh2
    s_bitcmp0_b64 s[{sBM}:{sBM+1}], s10
    s_branch k2_bdone
    k2_bh2:
    s_bitcmp0_b32 s{sBM+2}, s10
    k2_bdone:
    s_cselect_b32 s{sOPEN}, s{sNG}, 0
    """)
    a(f"""
    v_and_b32 v10, 31, v{vL}
    v_lshrrev_b32 v11, 5, v{vL}
    s_lshl_b32 s3, s65, 2
    s_add_u32 s3, s3, {L_XS}
    v_mov_b32 v12, s3
    v_mad_u32_u24 v{VX}, v11, s62, v12
    s_lshl_b32 s3, s65, 4
    s_add_u32 s3, s3, {L_YS}
    v_lshlrev_b32 v12, 3, v11
    v_lshl_add_u32 v12, v10, 4, v12
    v_add_u32 v{VY}, s3, v12
    s_lshl_b32 s3, s65, 6
    s_add_u32 s3, s3, {L_EF}
    v_lshrrev_b32 v12, 3, v10
    v_lshlrev_b32 v12, 8, v12
    v_and_b32 v13, 3, v10
    v_lshl_add_u32 v12, v13, 6, v12
    v_and_b32 v13, 4, v10
    v_lshl_add_u32 v12, v13, 3, v12
    v_lshl_add_u32 v12, v11, 4, v12
    v_add_u32 v{VEF}, s3, v12
    v_lshlrev_b32 v{VJ4}, 4, v{vL}
    v_lshlrev_b32 v{VXO}, 4, v10
    """)
    for i in range(3):
        a(f"""
        s_mov_b64 exec, s[{sM+2*i}:{sM+2*i+1}]
        s_cbranch_execz k2_w1
        s_waitcnt vmcnt({4-2*i})
        ds_write_b128 v{i}, v[{32+8*i}:{35+8*i}]
        ds_write_b128 v{i}, v[{36+8*i}:{39+8*i}] offset:16
        """)
    a(f"""
    k2_w1:
    s_mov_b64 exec, -1
    s_waitcnt vmcnt(0)
    """)
    for k in range(4):
        a(f"v_mov_b64 {v(ACC+2*k,2)}, 0")
    a(f"""
    v_and_or_b32 v{ZE+8}, v{VXO}, 48, s{sCG}
    s_mov_b32 s{sREM}, s{sNG}
    s_lshr_b32 s{sTH}, s{sNG}, 1
    s_mov_b32 s{sPR}, 3
    {"s_setprio 3" if "prio" in o.exp else ""}
    s_waitcnt vmcnt(0) lgkmcnt(0)
    s_barrier
    """)
    stamp(a, o, 4)
    XS = f"s[{sX}:{sX+3}]"
    a(f"""
    s_cmp_eq_u32 s{sNG}, 0
    s_cbranch_scc1 k2_done
    ds_read_b128 {v(XI,4)}, v{VX}
    ds_read_b128 {v(XI+4,4)}, v{VX} offset:16
    ds_read_b64 {v(YY,2)}, v{VY}
    ds_read_b128 {v(ZE,4)}, v{ZE+8}
    ds_read_b128 {v(ZE+4,4)}, v{ZE+8} offset:64
    ds_read_b128 {v(EF,4)}, v{VEF}
    s_mov_b32 s{sX+2}, s{sXNR}
    s_waitcnt lgkmcnt(5)
    """)
    for k in range(4):
        a(f"v_add_u32 v{XI+k}, v{XI+k}, v{VXO}")
        a(f"buffer_load_dwordx4 {v(X+4*k,4)}, v{XI+k}, {XS}, 0 offen {XF}")
    a(f"""
    s_cmp_gt_u32 s{sREM}, 1
    s_cselect_b32 s{sX+2}, s{sXNR}, 0
    s_waitcnt lgkmcnt(4)
    """)
    for k in range(4, 8):
        a(f"v_add_u32 v{XI+k}, v{XI+k}, v{VXO}")
        a(f"buffer_load_dwordx4 {v(X+4*k,4)}, v{XI+k}, {XS}, 0 offen {XF}")
    a(f"ds_read_b128 {v(XI,4)}, v{VX} offset:32")

    def group_start(g):
        b = XI + 4 * (g % 2)
        nb = XI + 4 * ((g + 1) % 2)
        if "noadd" in o.exp:
            a("s_nop 3")
        else:
            for k in range(4):
                a(f"v_add_u32 v{b+k}, v{b+k}, v{VXO}")
        a(f"ds_read_b128 {v(nb,4)}, v{VX} offset:{16*(g+3)}")
        a(f"s_cmp_gt_u32 s{sREM}, 2\ns_cselect_b32 s{sX+2}, s{sXNR}, 0")

    def mf(d, ar, br, c):
        a(f"v_mfma_f32_32x32x16_bf16 {v(d,16)}, {v(ar,4)}, {v(br,4)}, {c}")

    def rprol():
        a(f"""
        v_exp_f32 v{EE}, v{ZE}
        v_exp_f32 v{EE+1}, v{ZE+1}
        v_exp_f32 v{EE+2}, v{ZO}
        v_exp_f32 v{EE+3}, v{ZO+1}
        v_pk_add_f32 {v(EE,2)}, {v(EE,2)}, s[{sONE}:{sONE+1}]
        v_pk_add_f32 {v(EE+2,2)}, {v(EE+2,2)}, s[{sONE}:{sONE+1}]
        v_rcp_f32 v{EE}, v{EE}
        v_rcp_f32 v{EE+1}, v{EE+1}
        v_rcp_f32 v{EE+2}, v{EE+2}
        v_rcp_f32 v{EE+3}, v{EE+3}
        v_pk_mul_f32 {v(ZE,2)}, {v(ZE,2)}, {v(EE,2)}
        v_pk_mul_f32 {v(ZO,2)}, {v(ZO,2)}, {v(EE+2,2)}
        """)

    a("k2_blk:")
    for t in range(32):
        g, r = t // 4, t % 16
        if t == 0:
            a("s_waitcnt lgkmcnt(0)")
            for i in range(4):
                a(f"v_mfma_f32_4x4x4_16b_bf16 {v(ZO+4*i,4)}, {v(YY,2)}, {v(ZE+2*i,2)}, 0")
            a(f"ds_read_b64 {v(YY,2)}, v{VY} offset:512")
            a(f"v_add_u32 v{VY}, 512, v{VY}")
            mf(ZE, EF, W, "0")
            if "nolo" not in o.exp:
                mf(ZE, EF, W + 4, v(ZE, 16))
            for m in range(4):
                a(f"v_cvt_pk_bf16_f32 v{TA+2*m}, v{ZO+m}, v{ZO+4+m}")
            for m in range(4):
                a(f"v_cvt_pk_bf16_f32 v{TA+2*m+1}, v{ZO+8+m}, v{ZO+12+m}")
            mf(ZO, EF, W + 8, "0")
            if "nolo" not in o.exp:
                mf(ZO, EF, W + 12, v(ZO, 16))
            a(f"ds_read_b128 {v(EF,4)}, v{VEF} offset:1024")
            group_start(g)
            a("s_nop 3")
            rprol()
        elif t == 16:
            a("s_waitcnt lgkmcnt(0)")
            mf(ZE, EF, W, "0")
            if "nolo" not in o.exp:
                mf(ZE, EF, W + 4, v(ZE, 16))
            mf(ZO, EF, W + 8, "0")
            if "nolo" not in o.exp:
                mf(ZO, EF, W + 12, v(ZO, 16))
            a(f"ds_read_b128 {v(EF,4)}, v{VEF} offset:2048")
            a(f"v_add_u32 v{VEF}, 2048, v{VEF}")
            group_start(g)
            a("s_nop 2")
            rprol()
        elif t % 4 == 0:
            a("s_waitcnt lgkmcnt(0)")
            group_start(g)
            if t == 28:
                a(f"""
                v_and_or_b32 v{ZE+8}, v{VXO}, 48, s{sCG}
                ds_read_b128 {v(ZE,4)}, v{ZE+8}
                ds_read_b128 {v(ZE+4,4)}, v{ZE+8} offset:64
                """)
        k = t % 8
        xr = X + 4 * k
        ar = TA + 2 * (t % 4)
        p0 = r & ~1
        last = p0 == 14
        tr = "v_exp_f32" if r % 2 == 0 else "v_rcp_f32"

        def trn(e, z):
            if last or "notrans" in o.exp:
                return
            src = z if r % 2 == 0 else e
            a(f"{tr} v{e}, v{src}")

        def mid(e, z):
            if last:
                return
            if "v2mid" in o.exp:
                for u in range(2):
                    a(f"v_add_f32 v{e+u}, 1.0, v{e+u}" if r % 2 == 0 else f"v_mul_f32 v{z+u}, v{z+u}, v{e+u}")
            elif r % 2 == 0:
                a(f"v_pk_add_f32 {v(e,2)}, {v(e,2)}, s[{sONE}:{sONE+1}]")
            else:
                a(f"v_pk_mul_f32 {v(z,2)}, {v(z,2)}, {v(e,2)}")

        sel = "op_sel_hi:[0,1,1]" if r % 2 == 0 else "op_sel:[1,0,0] op_sel_hi:[1,1,1]"

        def fma(acc, z, tp):
            if "nofma" in o.exp:
                return
            if "v2fma" in o.exp:
                for u in range(2):
                    a(f"v_fmac_f32 v{acc+u}, v{z+r%2}, v{tp+u}")
                return
            a(f"v_pk_fma_f32 {v(acc,2)}, {v(z,2)}, {v(tp,2)}, {v(acc,2)} {sel}")

        cb = "" if "nocbsz" in o.exp else f"cbsz:3 abid:{t//4}"
        a("s_waitcnt vmcnt(7)")
        if "nomf" not in o.exp:
            a(f"v_mfma_f32_4x4x4_16b_bf16 {v(TP,4)}, {v(ar,2)}, {v(xr,2)}, 0 {cb}")
        trn(EE, ZE + p0 + 2)
        trn(EE + 1, ZE + p0 + 3)
        if "nomf" not in o.exp:
            a(f"v_mfma_f32_4x4x4_16b_bf16 {v(TP+4,4)}, {v(ar,2)}, {v(xr+2,2)}, 0 {cb}")
        if "noload" not in o.exp:
            a(f"buffer_load_dwordx4 {v(xr,4)}, v{XI+4*(g%2)+t%4}, {XS}, 0 offen {XF}")
        trn(EE + 2, ZO + p0 + 2)
        trn(EE + 3, ZO + p0 + 3)
        mid(EE, ZE + p0 + 2)
        if last:
            a("s_nop 2")
        fma(ACC, ZE + p0, TP)
        fma(ACC + 2, ZE + p0, TP + 2)
        mid(EE + 2, ZO + p0 + 2)
        fma(ACC + 4, ZO + p0, TP + 4)
        fma(ACC + 6, ZO + p0, TP + 6)
        if "nobr" in o.exp:
            a(f"k2_bk{t}:")
        else:
            a(f"s_bitcmp1_b32 s{sBM}, {t}\ns_cbranch_scc1 k2_fl{t}\nk2_bk{t}:")
        if t % 4 == 3:
            if "prio" in o.exp:
                a(f"s_sub_u32 s{sREM}, s{sREM}, 1\ns_cmp_eq_u32 s{sREM}, s{sTH}\ns_cbranch_scc1 k2_th{g}\nk2_tb{g}:")
            else:
                a(f"s_sub_u32 s{sREM}, s{sREM}, 1\ns_cmp_eq_u32 s{sREM}, 0\ns_cbranch_scc1 k2_done")
    a(f"""
    s_mov_b32 s{sBM}, s{sBM+1}
    s_mov_b32 s{sBM+1}, s{sBM+2}
    v_add_u32 v{VX}, 128, v{VX}
    s_branch k2_blk
    """)
    if "prio" in o.exp:
        for g in range(8):
            a(f"k2_th{g}:\ns_cmp_eq_u32 s{sTH}, 0\ns_cbranch_scc1 k2_done\ns_call_b64 s[{sRET}:{sRET+1}], k2_thr\ns_branch k2_tb{g}")
        a(f"""
        k2_thr:
        s_lshr_b32 s{sTH}, s{sTH}, 1
        s_sub_u32 s{sPR}, s{sPR}, 1
        s_cmp_eq_u32 s{sPR}, 2
        s_cbranch_scc1 k2_p2
        s_cmp_eq_u32 s{sPR}, 1
        s_cbranch_scc1 k2_p1x
        s_mov_b32 s{sTH}, 0
        s_setprio 0
        s_setpc_b64 s[{sRET}:{sRET+1}]
        k2_p2:
        s_setprio 2
        s_setpc_b64 s[{sRET}:{sRET+1}]
        k2_p1x:
        s_setprio 1
        s_setpc_b64 s[{sRET}:{sRET+1}]
        """)
    for t in range(32):
        a(f"k2_fl{t}:\ns_call_b64 s[{sRET}:{sRET+1}], k2_flush\ns_branch k2_bk{t}")
    a(f"""
    k2_flush:
    s_ff1_i32_b64 s{sCUR}, s[{sNM}:{sNM+1}]
    s_bitset0_b64 s[{sNM}:{sNM+1}], s{sCUR}
    s_lshl_b32 s58, s{sCUR}, 10
    s_and_b32 s59, s{sCUR}, 7
    s_lshl_b32 s59, s59, 4
    s_or_b32 s58, s58, s59
    v_xor_b32 v{TP}, s58, v{VJ4}
    ds_read_b128 {v(TP+4,4)}, v{TP} offset:{L_AGG}
    """)
    for q in range(4):
        a(f"v_permlane32_swap_b32 v{ACC+q}, v{ACC+4+q}")
    a(f"""
    v_pk_add_f32 {v(ACC,2)}, {v(ACC,2)}, {v(ACC+4,2)}
    v_pk_add_f32 {v(ACC+2,2)}, {v(ACC+2,2)}, {v(ACC+6,2)}
    v_mov_b64 {v(ACC+4,2)}, 0
    v_mov_b64 {v(ACC+6,2)}, 0
    s_waitcnt lgkmcnt(0)
    v_pk_add_f32 {v(TP+4,2)}, {v(TP+4,2)}, {v(ACC,2)}
    v_pk_add_f32 {v(TP+6,2)}, {v(TP+6,2)}, {v(ACC+2,2)}
    v_mov_b64 {v(ACC,2)}, 0
    v_mov_b64 {v(ACC+2,2)}, 0
    ds_write_b128 v{TP}, {v(TP+4,4)} offset:{L_AGG}
    s_setpc_b64 s[{sRET}:{sRET+1}]
    k2_open:
    s_cmp_eq_u32 s{sOPEN}, 0
    s_cbranch_scc1 k2_openret
    s_cmp_eq_u64 s[{sNM}:{sNM+1}], 0
    s_cbranch_scc1 k2_openret
    s_cmp_eq_u32 s{sSLOW}, 0
    s_cbranch_scc1 k2_flush
    s_ff1_i32_b64 s{sCUR}, s[{sNM}:{sNM+1}]
    s_lshl_b32 s58, s{sCUR}, 10
    s_and_b32 s59, s{sCUR}, 7
    s_lshl_b32 s59, s59, 4
    s_or_b32 s58, s58, s59
    v_xor_b32 v{TP}, s58, v{VJ4}
    """)
    for q in range(4):
        a(f"v_permlane32_swap_b32 v{ACC+q}, v{ACC+4+q}")
    a(f"""
    v_pk_add_f32 {v(ACC,2)}, {v(ACC,2)}, {v(ACC+4,2)}
    v_pk_add_f32 {v(ACC+2,2)}, {v(ACC+2,2)}, {v(ACC+6,2)}
    """)
    for q in range(4):
        a(f"ds_add_f32 v{TP}, v{ACC+q} offset:{L_AGG+4*q}")
    a(f"""
    k2_openret:
    s_setpc_b64 s[{sRET}:{sRET+1}]
    """)
    a(f"""
    k2_done:
    s_waitcnt vmcnt(0)
    s_add_u32 s{sW0}, s{sW0}, {CAP}
    v_and_b32 v{vL}, 63, v{VTID}
    s_cmp_lt_u32 s{sW0}, s{sTOT}
    s_cbranch_scc0 k2_last
    s_waitcnt lgkmcnt(0)
    s_barrier
    s_call_b64 s[{sRET}:{sRET+1}], k2_open
    v_lshlrev_b32 v1, 4, v{VTID}
    v_mov_b64 v[8:9], 0
    v_mov_b64 v[10:11], 0
    ds_write_b128 v1, v[8:11] offset:{L_XS}
    s_cmp_ge_u32 s{sWAVE}, 4
    s_cbranch_scc1 k2_p1
    v_lshlrev_b32 v2, 10, v{VTID}
    buffer_load_dword v4, v2, s[{sTB}:{sTB+3}], s{sB4} offen
    v_lshlrev_b32 v1, 2, v{VTID}
    v_add_u32 v1, {L_TT}, v1
    s_waitcnt vmcnt(0)
    ds_write_b32 v1, v4
    s_branch k2_p1
    k2_last:
    """)
    stamp(a, o, 5)
    a(f"""
    s_cmp_ge_u32 s{sWAVE}, 5
    s_cbranch_scc1 k2_nowm
    v_lshlrev_b32 v64, 4, v{vL}
    s_mov_b32 s58, {TB_WM}
    s_mov_b32 s59, {TB_WM+4096}
    """)
    for q in range(8):
        a(f"buffer_load_dwordx4 {v(4*q,4)}, v64, s[{sTB}:{sTB+3}], s{58+q//4} offen offset:{1024*(q%4)}")
    a(f"""
    k2_nowm:
    v_and_b32 v64, 31, v{vL}
    v_lshrrev_b32 v65, 5, v{vL}
    v_lshrrev_b32 v66, 2, v64
    v_mul_u32_u24 v66, 1040, v66
    v_lshl_add_u32 v66, v65, 7, v66
    v_and_b32 v67, 3, v64
    v_lshl_add_u32 v66, v67, 2, v66
    s_lshl_b32 s3, s{sWAVE}, 13
    v_add_u32 v113, s3, v66
    v_lshlrev_b32 v64, 4, v64
    v_lshl_add_u32 v112, v65, 9, v64
    """)
    for i in range(1, 8):
        a(f"v_xor_b32 v{113+i}, {16*i}, v113")
    a(f"""
    s_lshl_b32 s3, s{sWAVE}, 12
    s_mov_b32 s10, 0xbf317218
    s_mov_b32 s11, 0xbf317218
    s_waitcnt lgkmcnt(0)
    s_barrier
    """)
    stamp(a, o, 6)
    a(f"""
    s_call_b64 s[{sRET}:{sRET+1}], k2_open
    s_waitcnt lgkmcnt(0)
    s_barrier
    s_cmp_ge_u32 s{sWAVE}, 5
    s_cbranch_scc1 {"k2_tm" if o.timing else "k2_end"}
    """)
    for i in range(8):
        for u in range(2):
            a(f"ds_read2st64_b32 {v(32+4*i+2*u,2)}, v{113+i} offset0:{2*u} offset1:{2*u+1}")
    for k in range(4):
        a(f"s_waitcnt lgkmcnt({12-4*k})")
        for r in range(32 + 8 * k, 40 + 8 * k, 2):
            a(f"v_pk_mul_f32 {v(r,2)}, {v(r,2)}, s[10:11]")
        for sx in range(4):
            a(f"v_cvt_pk_bf16_f32 v{64+4*sx+k}, v{32+8*k+sx}, v{36+8*k+sx}")
    a("s_waitcnt vmcnt(0)\ns_nop 0")
    for sx in range(4):
        mf(80, 64 + 4 * sx, 8 * sx, "0" if sx == 0 else v(80, 16))
        mf(96, 64 + 4 * sx, 8 * sx + 4, "0" if sx == 0 else v(96, 16))
    a("s_nop 10")
    for rq in range(4):
        b = 32 + 4 * rq
        a(f"""
        v_cvt_pk_bf16_f32 v{b}, v{80+4*rq}, v{81+4*rq}
        v_cvt_pk_bf16_f32 v{b+1}, v{82+4*rq}, v{83+4*rq}
        v_cvt_pk_bf16_f32 v{b+2}, v{96+4*rq}, v{97+4*rq}
        v_cvt_pk_bf16_f32 v{b+3}, v{98+4*rq}, v{99+4*rq}
        buffer_store_dwordx4 {v(b,4)}, v112, s[{sOUT}:{sOUT+3}], s3 offen offset:{1024*rq} {o.outst}
        """)
    if o.timing:
        a("k2_tm:\ns_waitcnt vmcnt(0)")
        stamp(a, o, 7)
        a(f"s_mov_b64 exec, 1")
        stamp_store(a, o, 1, 8, 8, sWAVE)
    a("k2_end:\ns_endpgm")
    return a.text()


def desc(name, vg, sg):
    return f""".p2align 6
.amdhsa_kernel {name}
  .amdhsa_next_free_vgpr {vg}
  .amdhsa_next_free_sgpr {sg}
  .amdhsa_accum_offset {(vg+3)//4*4}
  .amdhsa_group_segment_fixed_size 0
  .amdhsa_kernarg_size 88
  .amdhsa_user_sgpr_count 2
  .amdhsa_user_sgpr_kernarg_segment_ptr 1
  .amdhsa_system_sgpr_workgroup_id_x 1
.end_amdhsa_kernel
"""


def main():
    p = argparse.ArgumentParser()
    p.add_argument("-o", default="cdna_kernels/" + NAME + ".s")
    p.add_argument("--timing", action="store_true")
    p.add_argument("--k1ld", default="nt")
    p.add_argument("--k1st", default="sc1")
    p.add_argument("--k2ld", default="")
    p.add_argument("--xld", default="")
    p.add_argument("--outst", default="")
    p.add_argument("--exp", default="")
    o = p.parse_args()
    o.exp = set(o.exp.split(","))
    K1 = "tfn_partition_kernel"
    K2 = NAME + "_kernel"
    t = f"""; TFN tensor-product message passing: launch 1 groups edge payloads by destination bucket,
; @launch kernel={K1} grid=({G},1,1) block=(1024,1,1) lds={L1_SZ}
; @launch kernel={K2} grid=({G},1,1) block=(1024,1,1) lds={L_SZ}
.amdgcn_target "amdgcn-amd-amdhsa--gfx950"
.text
.globl {K1}
.p2align 8
.type {K1},@function
{K1}:
{k1(o)}
.globl {K2}
.p2align 8
.type {K2},@function
{K2}:
{k2(o)}
.section .rodata,"a"
{desc(K1, 104, 96)}{desc(K2, 128, 96)}"""
    open(o.o, "w").write(t)


main()
```

```python
import sys, argparse

NAME = "gather_scatter__tensor_product_equiv_tfn__graph"
E, N = 640000, 10000
G, CH = 256, 2500
BMUL = 26843
WS_EF = 0
WS_YI = E * 32
WS_TB = WS_YI + E * 12
TB_WR = 262144
TB_CG = TB_WR + 4096
TB_WM = TB_CG + 128
TB_SZ = TB_WM + 8192
WS_TM = WS_TB + 524288
L1_HIST, L1_ST, L1_EF, L1_YI = 0, 1024, 2048, 82048
L1_SZ = L1_YI + 32768
CAP, C = 2720, 2768
SEG = 176
L_AGG = 0
L_XS = 40960
XHALF = C // 2 * 4
L_CNT = L_XS + C * 4
L_YS = L_CNT + 256
L_EF = L_YS + C * 8
L_CG = L_EF + C * 32
L_SZ = L_CG + 128
L_TT = L_EF
assert L_SZ <= 163840 and L_CG % 64 == 0 and L_EF >= 65536 and XHALF % 16 == 0


class A:
    def __init__(s):
        s.l = []

    def __call__(s, t):
        for x in t.strip("\n").split("\n"):
            x = x.strip()
            if x:
                s.l.append(x if x.endswith(":") else "    " + x)

    def text(s):
        return "\n".join(s.l) + "\n"


def v(a, n=1):
    return f"v{a}" if n == 1 else f"v[{a}:{a+n-1}]"


def s(a, n=1):
    return f"s{a}" if n == 1 else f"s[{a}:{a+n-1}]"


def srd(a, r, ptr, off, nr):
    if off is None:
        a(f"s_mov_b32 s{r}, s{ptr}\ns_mov_b32 s{r+1}, s{ptr+1}")
    else:
        a(f"s_add_u32 s{r}, s{ptr}, {off}\ns_addc_u32 s{r+1}, s{ptr+1}, 0")
    a(f"s_mov_b32 s{r+2}, {nr}\ns_mov_b32 s{r+3}, 0x20000")


DPPS = ["row_shr:1 row_mask:0xf bank_mask:0xf bound_ctrl:1",
        "row_shr:2 row_mask:0xf bank_mask:0xf bound_ctrl:1",
        "row_shr:4 row_mask:0xf bank_mask:0xf bound_ctrl:1",
        "row_shr:8 row_mask:0xf bank_mask:0xf bound_ctrl:1",
        "row_bcast:15 row_mask:0xa bank_mask:0xf",
        "row_bcast:31 row_mask:0xc bank_mask:0xf"]


def scan(a, op, regs):
    for d in DPPS:
        for r in regs:
            a(f"{op}_dpp v{r}, v{r}, v{r} {d}")
        if len(regs) < 3:
            a(f"s_nop {2 - len(regs)}")


def stamp(a, o, i):
    if o.timing:
        a(f"{'s_memtime' if 'clk' in o.exp else 's_memrealtime'} s[{72+2*i}:{73+2*i}]")


def stamp_store(a, o, kern, n, ptr, sw):
    if not o.timing:
        return
    a(f"""
    s_waitcnt lgkmcnt(0)
    s_lshl_b32 s3, s2, 4
    s_add_u32 s3, s3, s{sw}
    s_lshl_b32 s3, s3, 6
    s_add_u32 s3, s3, {WS_TM + kern*262144}
    """)
    srd(a, 68, ptr, "s3", 64)
    a("s_nop 4\nv_mov_b32 v0, 0")
    for i in range(n):
        a(f"v_mov_b32 v1, s{72+2*i}\nbuffer_store_dword v1, v0, s[68:71], 0 offen offset:{4*i}\ns_nop 1")


def k1(o):
    a = A()
    LD = o.k1ld
    ST = o.k1st
    a(f"""
    s_cmp_ge_u32 s2, {G}
    s_cbranch_scc1 k1_end
    """)
    stamp(a, o, 0)
    a(f"""
    s_load_dwordx4 s[4:7], s[0:1], 8
    s_load_dwordx4 s[8:11], s[0:1], 24
    s_load_dwordx4 s[12:15], s[0:1], 40
    s_load_dwordx2 s[16:17], s[0:1], 56
    s_load_dwordx2 s[18:19], s[0:1], 80
    v_lshlrev_b32 v1, 2, v0
    v_lshlrev_b32 v2, 3, v0
    v_lshlrev_b32 v3, 5, v0
    v_and_b32 v46, 0x3fc, v1
    v_mov_b32 v47, 0
    v_lshrrev_b32 v62, 6, v0
    v_and_b32 v63, 63, v0
    ds_write_b32 v46, v47 offset:{L1_HIST}
    v_readfirstlane_b32 s62, v62
    v_cmp_gt_u32 vcc, {CH - 2048}, v0
    s_movk_i32 s52, 4096
    s_movk_i32 s53, 8192
    s_movk_i32 s54, 16384
    s_mov_b32 s55, 32768
    s_mov_b32 s56, 65536
    s_mov_b32 s57, 49152
    s_mov_b64 s[60:61], vcc
    s_mul_i32 s3, s2, {CH*4}
    s_mul_i32 s58, s2, {CH*8}
    s_mul_i32 s59, s2, {CH*32}
    s_waitcnt lgkmcnt(0)
    """)
    srd(a, 24, 6, "s3", CH * 4)
    srd(a, 20, 4, "s3", CH * 4)
    srd(a, 28, 8, "s58", CH * 8)
    srd(a, 32, 10, "s59", CH * 32)
    a(f"""
    s_cmp_eq_u32 s62, 15
    s_cselect_b32 s63, s2, 6
    s_cmp_ge_u32 s63, 6
    s_cbranch_scc1 k1_noimg0
    v_and_b32 v64, 31, v63
    v_lshrrev_b32 v65, 5, v63
    v_lshlrev_b32 v64, 2, v64
    s_cmp_eq_u32 s63, 4
    s_cbranch_scc1 k1_ldwr
    s_cmp_eq_u32 s63, 5
    s_cbranch_scc1 k1_ldcg
    """)
    srd(a, 48, 16, None, 8192)
    a(f"""
    v_lshl_add_u32 v64, v65, 11, v64
    s_and_b32 s64, s63, 1
    s_lshl_b32 s64, s64, 12
    s_lshr_b32 s65, s63, 1
    s_lshl_b32 s65, s65, 7
    s_add_u32 s64, s64, s65
    """)
    for i in range(8):
        a(f"buffer_load_dword v{66+i}, v64, s[48:51], s64 offen offset:{256*i}")
    a("s_branch k1_noimg0\nk1_ldwr:")
    srd(a, 48, 12, None, 2048)
    a("v_lshl_add_u32 v64, v65, 10, v64")
    for i in range(8):
        a(f"buffer_load_dword v{66+i}, v64, s[48:51], 0 offen offset:{128*i}")
    a("s_branch k1_noimg0\nk1_ldcg:")
    srd(a, 48, 14, None, 128)
    a("v_and_b32 v64, 3, v63\nv_lshlrev_b32 v64, 1, v64")
    for i in range(16):
        a(f"buffer_load_ushort v{66+i}, v64, s[48:51], 0 offen offset:{8*i}")
    a("k1_noimg0:")
    so4 = ["0", "s52", "s53"]
    so8 = ["0", "s53", "s54"]
    so32 = ["0", "s55", "s56"]
    def ld_dst():
        for i in range(3):
            a(f"buffer_load_dword v{4+i}, v1, s[24:27], {so4[i]} offen {LD}")

    def ld_sy():
        for i in range(3):
            a(f"buffer_load_dword v{7+i}, v1, s[20:23], {so4[i]} offen {LD}")
        for i in range(3):
            a(f"buffer_load_dwordx2 v[{10+2*i}:{11+2*i}], v2, s[28:31], {so8[i]} offen {LD}")

    def ld_ef():
        for i in range(3):
            for u in range(2):
                r = 16 + 8 * i + 4 * u
                a(f"buffer_load_dwordx4 v[{r}:{r+3}], v3, s[32:35], {so32[i]} offen offset:{16*u} {LD}")
    ld_dst()
    if "ord1a" not in o.exp:
        ld_sy()
        if "ord1b" not in o.exp:
            ld_ef()
    a(f"s_add_u32 s59, s59, {WS_EF}")
    srd(a, 36, 18, "s59", CH * 32)
    a(f"s_mul_i32 s58, s2, {CH*12}\ns_add_u32 s58, s58, {WS_YI}")
    srd(a, 40, 18, "s58", CH * 12)
    srd(a, 44, 18, WS_TB, TB_SZ)
    a(f"""
    s_lshl_b32 s66, s2, 10
    s_mov_b32 s67, {L1_YI}
    v_mov_b32 v47, 1
    v_lshlrev_b32 v61, 4, v63
    s_barrier
    """)
    if "ord1a" in o.exp:
        ld_sy()
    if "ord1a" in o.exp or "ord1b" in o.exp:
        ld_ef()
    a("s_waitcnt vmcnt(12)")
    stamp(a, o, 1)
    for i in range(3):
        a(f"v_mul_u32_u24 v{40+i}, {BMUL}, v{4+i}")
    for i in range(3):
        a(f"v_lshrrev_b32 v{40+i}, 20, v{40+i}")
    for i in range(3):
        a(f"v_lshlrev_b32 v{40+i}, 2, v{40+i}")
    a(f"""
    ds_add_rtn_u32 v43, v40, v47 offset:{L1_HIST}
    ds_add_rtn_u32 v44, v41, v47 offset:{L1_HIST}
    s_mov_b64 exec, s[60:61]
    s_cbranch_execz k1_a
    ds_add_rtn_u32 v45, v42, v47 offset:{L1_HIST}
    k1_a:
    s_mov_b64 exec, -1
    """)
    for i in range(3):
        a(f"v_lshlrev_b32 v{4+i}, 24, v{4+i}")
    a("s_waitcnt vmcnt(9)")
    for i in range(3):
        a(f"v_lshl_or_b32 v{7+i}, v{7+i}, 9, v{4+i}")
    a(f"""
    s_waitcnt lgkmcnt(0)
    s_barrier
    ds_read_b128 v[48:51], v61 offset:{L1_HIST}
    s_waitcnt lgkmcnt(0)
    v_add_u32 v54, v48, v49
    v_add_u32 v55, v54, v50
    v_add_u32 v56, v55, v51
    v_mov_b32 v57, v56
    s_nop 1
    """)
    scan(a, "v_add_u32", [57])
    a(f"""
    v_sub_u32 v52, v57, v56
    v_add_u32 v53, v52, v48
    v_add_u32 v54, v52, v54
    v_add_u32 v55, v52, v55
    ds_write_b128 v61, v[52:55] offset:{L1_ST}
    ds_read_b32 v56, v40 offset:{L1_ST}
    ds_read_b32 v57, v41 offset:{L1_ST}
    ds_read_b32 v58, v42 offset:{L1_ST}
    v_lshl_or_b32 v48, v48, 16, v52
    v_lshl_or_b32 v49, v49, 16, v53
    v_lshl_or_b32 v50, v50, 16, v54
    v_lshl_or_b32 v51, v51, 16, v55
    s_waitcnt lgkmcnt(0)
    """)
    for i in range(3):
        a(f"v_add_u32 v{43+i}, v{43+i}, v{56+i}")
    for i in range(3):
        a(f"v_mad_u32_u24 v{40+i}, v{43+i}, 12, s67")
        a(f"v_lshlrev_b32 v{43+i}, 5, v{43+i}")
    stamp(a, o, 2)
    a("s_waitcnt vmcnt(6)")
    for i in range(2):
        a(f"ds_write2_b32 v{40+i}, v{10+2*i}, v{11+2*i} offset0:0 offset1:1")
        a(f"ds_write_b32 v{40+i}, v{7+i} offset:8")
    for i in range(2):
        a(f"s_waitcnt vmcnt({4-2*i})")
        a(f"ds_write_b128 v{43+i}, v[{16+8*i}:{19+8*i}] offset:{L1_EF}")
        a(f"ds_write_b128 v{43+i}, v[{20+8*i}:{23+8*i}] offset:{L1_EF+16}")
    a(f"""
    s_mov_b64 exec, s[60:61]
    s_cbranch_execz k1_b
    ds_write2_b32 v42, v14, v15 offset0:0 offset1:1
    ds_write_b32 v42, v9 offset:8
    s_waitcnt vmcnt(0)
    ds_write_b128 v45, v[32:35] offset:{L1_EF}
    ds_write_b128 v45, v[36:39] offset:{L1_EF+16}
    k1_b:
    s_mov_b64 exec, -1
    s_waitcnt vmcnt(0)
    s_cmp_lg_u32 s62, 0
    s_cbranch_scc1 k1_c
    buffer_store_dwordx4 v[48:51], v61, s[44:47], s66 offen {ST}
    k1_c:
    v_lshlrev_b32 v1, 4, v0
    v_add_u32 v2, 0x10000, v1
    s_waitcnt lgkmcnt(0)
    s_barrier
    """)
    stamp(a, o, 3)
    rd = [(1, L1_EF + 16384 * p) for p in range(4)] + [(2, L1_EF), (2, L1_YI - 65536), (2, L1_YI - 65536 + 16384)]
    for p, (r, off) in enumerate(rd):
        a(f"ds_read_b128 v[{4+4*p}:{7+4*p}], v{r} offset:{off}")
    sos = ["0", "s54", "s55", "s57", "s56", "0", "s54"]
    for p in range(7):
        a(f"s_waitcnt lgkmcnt({6-p})")
        sr = "s[36:39]" if p < 5 else "s[40:43]"
        a(f"buffer_store_dwordx4 v[{4+4*p}:{7+4*p}], v1, {sr}, {sos[p]} offen {ST}")
    a(f"""
    s_cmp_ge_u32 s63, 6
    s_cbranch_scc1 k1_fin
    s_cmp_eq_u32 s63, 4
    s_cbranch_scc1 k1_wr
    s_cmp_eq_u32 s63, 5
    s_cbranch_scc1 k1_cg
    s_mov_b32 s64, 0x05040100
    s_mov_b32 s65, 0x07060302
    s_lshl_b32 s58, s63, 11
    s_add_u32 s58, s58, {TB_WM}
    """)
    for k in range(4):
        a(f"v_perm_b32 v{84+k}, v{67+2*k}, v{66+2*k}, s64")
        a(f"v_perm_b32 v{88+k}, v{67+2*k}, v{66+2*k}, s65")
    a(f"""
    buffer_store_dwordx4 v[84:87], v61, s[44:47], s58 offen {ST}
    buffer_store_dwordx4 v[88:91], v61, s[44:47], s58 offen offset:1024 {ST}
    s_branch k1_fin
    k1_wr:
    s_mov_b32 s64, 0xbfb8aa3b
    s_mov_b32 s65, 0xffff0000
    s_mov_b32 s58, {TB_WR}
    """)
    for par in range(2):
        for k in range(4):
            for u in range(2):
                if par == 0:
                    a(f"v_lshlrev_b32 v{76+u}, 16, v{66+2*k+u}")
                else:
                    a(f"v_and_b32 v{76+u}, s65, v{66+2*k+u}")
            a(f"""
            v_mul_f32 v76, s64, v76
            v_mul_f32 v77, s64, v77
            v_cvt_pk_bf16_f32 v{84+8*par+k}, v76, v77
            v_lshlrev_b32 v78, 16, v{84+8*par+k}
            v_and_b32 v79, s65, v{84+8*par+k}
            v_sub_f32 v76, v76, v78
            v_sub_f32 v77, v77, v79
            v_cvt_pk_bf16_f32 v{88+8*par+k}, v76, v77
            """)
    for q in range(4):
        a(f"buffer_store_dwordx4 v[{84+4*q}:{87+4*q}], v61, s[44:47], s58 offen offset:{1024*q} {ST}")
    a(f"""
    s_branch k1_fin
    k1_cg:
    s_mov_b32 s58, {TB_CG}
    """)
    for k in range(8):
        a(f"v_lshl_or_b32 v{84+k}, v{67+2*k}, 16, v{66+2*k}")
    a(f"""
    s_mov_b64 exec, 15
    buffer_store_dwordx4 v[84:87], v61, s[44:47], s58 offen {ST}
    buffer_store_dwordx4 v[88:91], v61, s[44:47], s58 offen offset:64 {ST}
    s_mov_b64 exec, -1
    k1_fin:
    """)
    if o.timing:
        a("s_waitcnt vmcnt(0)")
        stamp(a, o, 4)
        a("s_mov_b64 exec, 1")
        stamp_store(a, o, 0, 5, 18, 62)
    a("k1_end:\ns_endpgm")
    return a.text()


X, ZE, ZO, TA, TP, ACC, EE, W, EF, YY, XI = 0, 32, 48, 64, 72, 80, 88, 92, 108, 112, 114
VXO, VX, VY, VEF, VJ4, VTID = 122, 123, 124, 125, 126, 127
sX, sEF, sYI, sTB, sOUT = 12, 16, 20, 24, 28
sWAVE, sB4, sN0, sW0, sTOT, sLIM, sP = 32, 33, 34, 35, 36, 37, 38
sNG = 39
sONE, sXNR, sREM, sBM, sNM, sCUR, sCG = 40, 42, 43, 44, 48, 50, 51
sM = 52
sRET = 60
sSLOW, sOPEN = 47, 70
sTH, sPR = 71, 11


def k2(o):
    a = A()
    LD = o.k2ld
    XF = o.xld
    vL = VXO
    a(f"""
    s_cmp_ge_u32 s2, {G}
    s_cbranch_scc1 k2_end
    """)
    stamp(a, o, 0)
    a(f"""
    s_load_dwordx2 s[4:5], s[0:1], 0
    s_load_dwordx2 s[6:7], s[0:1], 64
    s_load_dwordx2 s[8:9], s[0:1], 80
    v_mov_b32 v{VTID}, v0
    v_lshrrev_b32 v1, 6, v0
    v_and_b32 v{vL}, 63, v0
    v_readfirstlane_b32 s{sWAVE}, v1
    s_and_b32 s3, s2, 7
    s_lshl_b32 s3, s3, 5
    s_lshr_b32 s10, s2, 3
    s_or_b32 s3, s3, s10
    s_lshl_b32 s{sB4}, s3, 2
    s_mul_i32 s{sN0}, s3, 320007
    s_add_u32 s10, s{sN0}, {320007+8160}
    s_add_u32 s{sN0}, s{sN0}, 8160
    s_lshr_b32 s{sN0}, s{sN0}, 13
    s_lshr_b32 s10, s10, 13
    s_min_u32 s10, s10, {N}
    s_sub_u32 s10, s10, s{sN0}
    s_lshl_b32 s10, s10, 9
    s_lshl_b32 s11, s{sN0}, 9
    s_mov_b32 s{sW0}, 0
    s_mov_b32 s{sONE}, 1.0
    s_mov_b32 s{sONE+1}, 1.0
    s_mov_b32 s{sXNR}, {0 if "nox" in o.exp else N*512}
    s_mov_b32 s{sCG}, {L_CG}
    s_mov_b32 s58, {TB_WR}
    s_mov_b32 s59, {TB_CG}
    v_lshlrev_b32 v2, 10, v0
    v_lshlrev_b32 v3, 4, v{vL}
    s_waitcnt lgkmcnt(0)
    """)
    srd(a, sTB, 8, WS_TB, TB_SZ)
    a(f"""
    s_cmp_ge_u32 s{sWAVE}, 4
    s_cbranch_scc1 k2_not0
    buffer_load_dword v4, v2, s[{sTB}:{sTB+3}], s{sB4} offen
    k2_not0:
    s_cmp_lg_u32 s{sWAVE}, 4
    s_cbranch_scc1 k2_nocg0
    s_mov_b64 exec, 0xff
    buffer_load_dwordx4 v[4:7], v3, s[{sTB}:{sTB+3}], s59 offen
    s_mov_b64 exec, -1
    k2_nocg0:
    """)
    for q in range(4):
        a(f"buffer_load_dwordx4 {v(W+4*q,4)}, v3, s[{sTB}:{sTB+3}], s58 offen offset:{1024*q}")
    srd(a, sX, 4, None, N * 512)
    srd(a, sEF, 8, WS_EF, E * 32)
    srd(a, sYI, 8, WS_YI, E * 12)
    srd(a, sOUT, 6, "s11", "s10")
    a(f"""
    v_lshlrev_b32 v1, 4, v0
    v_mov_b64 v[8:9], 0
    v_mov_b64 v[10:11], 0
    """)
    for p in range(4):
        a(f"ds_write_b128 v1, v[8:11] offset:{16384*p}")
    a(f"""
    s_cmp_lg_u32 s{sWAVE}, 4
    s_cbranch_scc1 k2_nocg1
    v_add_u32 v3, s{sCG}, v3
    s_mov_b64 exec, 0xff
    s_waitcnt vmcnt(4)
    ds_write_b128 v3, v[4:7]
    s_mov_b64 exec, -1
    k2_nocg1:
    s_cmp_ge_u32 s{sWAVE}, 4
    s_cbranch_scc1 k2_p1
    v_lshlrev_b32 v1, 2, v0
    v_add_u32 v1, {L_TT}, v1
    s_waitcnt vmcnt(4)
    ds_write_b32 v1, v4
    k2_p1:
    v_lshlrev_b32 v1, 4, v{vL}
    v_add_u32 v1, {L_TT}, v1
    s_mul_i32 s58, s{sWAVE}, {SEG}
    s_add_u32 s59, s58, s{sW0}
    s_waitcnt lgkmcnt(0)
    s_barrier
    """)
    stamp(a, o, 1)
    a(f"""
    ds_read_b128 v[0:3], v1
    v_mul_u32_u24 v12, {4*CH}, v{vL}
    v_add_u32 v13, {CH}, v12
    v_add_u32 v14, {2*CH}, v12
    v_add_u32 v15, {3*CH}, v12
    s_waitcnt lgkmcnt(0)
    """)
    for i in range(4):
        a(f"v_lshrrev_b32 v{4+i}, 16, v{i}")
    for i in range(4):
        a(f"v_and_b32 v{i}, 0xffff, v{i}")
    a(f"""
    v_add_u32 v10, v4, v5
    v_add_u32 v11, v10, v6
    v_add_u32 v16, v11, v7
    v_mov_b32 v17, v16
    """)
    for i in range(4):
        a(f"v_add_u32 v{12+i}, v{12+i}, v{i}")
    scan(a, "v_add_u32", [17])
    a(f"""
    v_sub_u32 v8, v17, v16
    v_readlane_b32 s{sTOT}, v17, 63
    v_add_u32 v9, v8, v4
    v_add_u32 v10, v8, v10
    v_add_u32 v11, v8, v11
    """)
    for i in range(4):
        a(f"v_sub_u32 v{12+i}, v{12+i}, v{8+i}")
    for i in range(4):
        a(f"v_cmp_ge_u32 s[{62+2*i}:{63+2*i}], s59, v{8+i}")
    for i in range(4):
        a(f"v_subrev_u32 v{8+i}, s{sW0}, v{8+i}")
    for i in range(4):
        a(f"v_min_u32 v{8+i}, {CAP}, v{8+i}")
    for i in range(4):
        a(f"v_lshlrev_b32 v{8+i}, 2, v{8+i}")
    for i in range(4):
        a(f"ds_max_u32 v{8+i}, v{12+i} offset:{L_XS}")
    a(f"""
    v_add_u32 v16, s58, v{vL}
    v_lshlrev_b32 v17, 2, v16
    """)
    for i in range(3):
        a(f"ds_read_b32 v{i}, v17 offset:{L_XS+256*i}")
    for i in range(4):
        a(f"v_cndmask_b32 v{4+i}, 0, v{12+i}, s[{62+2*i}:{63+2*i}]")
    a(f"""
    v_max3_u32 v4, v4, v5, v6
    v_max_u32 v3, v4, v7
    s_sub_u32 s{sLIM}, s{sTOT}, s{sW0}
    s_min_u32 s{sLIM}, s{sLIM}, {CAP}
    s_add_u32 s10, s58, {SEG}
    s_min_u32 s10, s10, s{sLIM}
    v_add_u32 v17, 64, v16
    v_add_u32 v18, 128, v16
    v_cmp_gt_u32 s[{sM}:{sM+1}], s10, v16
    v_cmp_gt_u32 s[{sM+2}:{sM+3}], s10, v17
    v_cmp_gt_u32 s[{sM+4}:{sM+5}], s10, v18
    s_waitcnt lgkmcnt(0)
    """)
    scan(a, "v_max_u32", [3, 0, 1, 2])
    a(f"""
    v_readlane_b32 s62, v3, 63
    v_readlane_b32 s63, v0, 63
    v_readlane_b32 s64, v1, 63
    v_add_u32 v16, s{sW0}, v16
    v_add_u32 v17, s{sW0}, v17
    v_add_u32 v18, s{sW0}, v18
    s_max_u32 s63, s63, s62
    s_max_u32 s64, s64, s63
    v_max_u32 v0, s62, v0
    v_max_u32 v1, s63, v1
    v_max_u32 v2, s64, v2
    v_mov_b32 v3, 0xf00000
    """)
    for i in range(3):
        a(f"v_add_u32 v{i}, v{i}, v{16+i}")
    for i in range(3):
        a(f"v_cndmask_b32 v{i}, v3, v{i}, s[{sM+2*i}:{sM+2*i+1}]")
    for i in range(3):
        a(f"v_mul_u32_u24 v{4+i}, 12, v{i}")
        a(f"buffer_load_dwordx3 v[{20+4*i}:{22+4*i}], v{4+i}, s[{sYI}:{sYI+3}], 0 offen {LD}")
    if "ord2" in o.exp:
        a("s_barrier")
    for i in range(3):
        a(f"v_lshlrev_b32 v{i}, 5, v{i}")
        for u in range(2):
            r = 32 + 8 * i + 4 * u
            a(f"buffer_load_dwordx4 v[{r}:{r+3}], v{i}, s[{sEF}:{sEF+3}], 0 offen offset:{16*u} {LD}")
    stamp(a, o, 2)
    a("v_mov_b32 v62, 1\ns_waitcnt vmcnt(6)")
    for i in range(3):
        a(f"v_lshrrev_b32 v{56+i}, 24, v{22+4*i}")
    for i in range(3):
        a(f"v_subrev_u32 v{56+i}, s{sN0}, v{56+i}")
    for i in range(3):
        a(f"v_and_b32 v{56+i}, 63, v{56+i}")
    for i in range(3):
        a(f"v_lshlrev_b32 v{56+i}, 2, v{56+i}")
    for i in range(3):
        a(f"""
        s_mov_b64 exec, s[{sM+2*i}:{sM+2*i+1}]
        s_cbranch_execz k2_h
        ds_add_rtn_u32 v{59+i}, v{56+i}, v62 offset:{L_CNT}
        """)
    a(f"""
    k2_h:
    s_mov_b64 exec, -1
    """)
    for i in range(3):
        a(f"v_and_b32 v{22+4*i}, 0xffffff, v{22+4*i}")
    a(f"""
    v_lshlrev_b32 v0, 2, v{vL}
    s_waitcnt lgkmcnt(0)
    s_barrier
    """)
    stamp(a, o, 3)
    a(f"""
    ds_read_b32 v64, v0 offset:{L_CNT}
    s_mov_b32 s62, {XHALF}
    s_mov_b32 s63, {L_EF}
    s_waitcnt lgkmcnt(0)
    v_add_u32 v65, 1, v64
    v_and_b32 v65, -2, v65
    v_mov_b32 v66, v65
    s_nop 1
    """)
    scan(a, "v_add_u32", [66])
    a(f"""
    v_sub_u32 v67, v66, v65
    v_readlane_b32 s{sP}, v66, 63
    """)
    for i in range(3):
        a(f"ds_bpermute_b32 v{i}, v{56+i}, v67")
    a(f"""
    s_add_u32 s3, s{sP}, 7
    s_lshr_b32 s3, s3, 3
    s_lshr_b32 s10, s3, 4
    s_lshl_b32 s11, s10, 3
    v_cmp_lt_u32 vcc, s11, v65
    s_and_b32 s3, s3, 15
    s_cmp_lg_u64 vcc, 0
    s_cselect_b32 s{sSLOW}, 1, 0
    s_mul_i32 s11, s10, s{sWAVE}
    s_min_u32 s64, s3, s{sWAVE}
    s_add_u32 s11, s11, s64
    s_cmp_lt_u32 s{sWAVE}, s3
    s_addc_u32 s{sNG}, s10, 0
    s_lshl_b32 s65, s11, 2
    s_lshl_b32 s66, s11, 3
    s_waitcnt lgkmcnt(0)
    """)
    for i in range(3):
        a(f"v_add_u32 v{i}, v{i}, v{59+i}")
    for i in range(3):
        a(f"""
        v_and_b32 v{3+i}, 1, v{i}
        v_lshrrev_b32 v{6+i}, 1, v{i}
        v_lshlrev_b32 v{6+i}, 2, v{6+i}
        v_mad_u32_u24 v{3+i}, v{3+i}, s62, v{6+i}
        v_lshlrev_b32 v{6+i}, 3, v{i}
        v_lshl_add_u32 v{i}, v{i}, 5, s63
        """)
    for i in range(3):
        a(f"""
        s_mov_b64 exec, s[{sM+2*i}:{sM+2*i+1}]
        s_cbranch_execz k2_w0
        ds_write_b32 v{3+i}, v{22+4*i} offset:{L_XS}
        ds_write_b64 v{6+i}, v[{20+4*i}:{21+4*i}] offset:{L_YS}
        """)
    a(f"""
    k2_w0:
    s_mov_b64 exec, -1
    s_cmp_lg_u32 s{sWAVE}, 15
    s_cbranch_scc1 k2_nopad
    v_subrev_u32 v10, 40, v{vL}
    v_and_b32 v11, 1, v64
    v_cmp_gt_u32 vcc, 8, v10
    v_cmp_eq_u32 s[68:69], 1, v11
    v_max_i32 v10, 0, v10
    v_add3_u32 v10, v10, v67, v64
    s_or_b64 s[68:69], s[68:69], vcc
    v_and_b32 v11, 1, v10
    v_lshrrev_b32 v12, 1, v10
    v_lshlrev_b32 v12, 2, v12
    v_mad_u32_u24 v11, v11, s62, v12
    v_lshlrev_b32 v12, 3, v10
    v_lshl_add_u32 v10, v10, 5, s63
    v_mov_b32 v13, 0x7fff0000
    v_mov_b64 v[14:15], 0
    v_mov_b64 v[16:17], 0
    s_mov_b64 exec, s[68:69]
    ds_write_b32 v11, v13 offset:{L_XS}
    ds_write_b64 v12, v[14:15] offset:{L_YS}
    ds_write_b128 v10, v[14:17]
    ds_write_b128 v10, v[14:17] offset:16
    s_mov_b64 exec, -1
    k2_nopad:
    v_cmp_lt_u32 s[{sNM}:{sNM+1}], s66, v66
    v_cmp_lt_u32 vcc, 0, v64
    s_mov_b64 s[{sBM}:{sBM+1}], 0
    s_mov_b32 s{sBM+2}, 0
    s_lshl_b32 s64, s{sNG}, 2
    s_and_b64 s[{sNM}:{sNM+1}], s[{sNM}:{sNM+1}], vcc
    s_mov_b64 s[68:69], s[{sNM}:{sNM+1}]
    s_add_u32 s67, s65, 1
    k2_bl:
    s_ff1_i32_b64 s3, s[68:69]
    s_cmp_lt_i32 s3, 0
    s_cbranch_scc1 k2_bld
    v_readlane_b32 s10, v66, s3
    s_bitset0_b64 s[68:69], s3
    s_lshr_b32 s10, s10, 1
    s_sub_u32 s10, s10, s67
    s_cmp_ge_u32 s10, s64
    s_cbranch_scc1 k2_bld
    s_cmp_ge_u32 s10, 64
    s_cbranch_scc1 k2_bh
    s_bitset1_b64 s[{sBM}:{sBM+1}], s10
    s_branch k2_bl
    k2_bh:
    s_bitset1_b32 s{sBM+2}, s10
    s_branch k2_bl
    k2_bld:
    s_sub_u32 s10, s64, 1
    s_cmp_ge_u32 s10, 64
    s_cbranch_scc1 k2_bh2
    s_bitcmp0_b64 s[{sBM}:{sBM+1}], s10
    s_branch k2_bdone
    k2_bh2:
    s_bitcmp0_b32 s{sBM+2}, s10
    k2_bdone:
    s_cselect_b32 s{sOPEN}, s{sNG}, 0
    """)
    a(f"""
    v_and_b32 v10, 31, v{vL}
    v_lshrrev_b32 v11, 5, v{vL}
    s_lshl_b32 s3, s65, 2
    s_add_u32 s3, s3, {L_XS}
    v_mov_b32 v12, s3
    v_mad_u32_u24 v{VX}, v11, s62, v12
    s_lshl_b32 s3, s65, 4
    s_add_u32 s3, s3, {L_YS}
    v_lshlrev_b32 v12, 3, v11
    v_lshl_add_u32 v12, v10, 4, v12
    v_add_u32 v{VY}, s3, v12
    s_lshl_b32 s3, s65, 6
    s_add_u32 s3, s3, {L_EF}
    v_lshrrev_b32 v12, 3, v10
    v_lshlrev_b32 v12, 8, v12
    v_and_b32 v13, 3, v10
    v_lshl_add_u32 v12, v13, 6, v12
    v_and_b32 v13, 4, v10
    v_lshl_add_u32 v12, v13, 3, v12
    v_lshl_add_u32 v12, v11, 4, v12
    v_add_u32 v{VEF}, s3, v12
    v_lshlrev_b32 v{VJ4}, 4, v{vL}
    v_lshlrev_b32 v{VXO}, 4, v10
    """)
    for i in range(3):
        a(f"""
        s_mov_b64 exec, s[{sM+2*i}:{sM+2*i+1}]
        s_cbranch_execz k2_w1
        s_waitcnt vmcnt({4-2*i})
        ds_write_b128 v{i}, v[{32+8*i}:{35+8*i}]
        ds_write_b128 v{i}, v[{36+8*i}:{39+8*i}] offset:16
        """)
    a(f"""
    k2_w1:
    s_mov_b64 exec, -1
    s_waitcnt vmcnt(0)
    """)
    for k in range(4):
        a(f"v_mov_b64 {v(ACC+2*k,2)}, 0")
    a(f"""
    v_and_or_b32 v{ZE+8}, v{VXO}, 48, s{sCG}
    s_mov_b32 s{sREM}, s{sNG}
    s_lshr_b32 s{sTH}, s{sNG}, 1
    s_mov_b32 s{sPR}, 3
    {"s_setprio 3" if "prio" in o.exp else ""}
    s_waitcnt vmcnt(0) lgkmcnt(0)
    s_barrier
    """)
    stamp(a, o, 4)
    XS = f"s[{sX}:{sX+3}]"
    a(f"""
    s_cmp_eq_u32 s{sNG}, 0
    s_cbranch_scc1 k2_done
    ds_read_b128 {v(XI,4)}, v{VX}
    ds_read_b128 {v(XI+4,4)}, v{VX} offset:16
    ds_read_b64 {v(YY,2)}, v{VY}
    ds_read_b128 {v(ZE,4)}, v{ZE+8}
    ds_read_b128 {v(ZE+4,4)}, v{ZE+8} offset:64
    ds_read_b128 {v(EF,4)}, v{VEF}
    s_mov_b32 s{sX+2}, s{sXNR}
    s_waitcnt lgkmcnt(5)
    """)
    for k in range(4):
        a(f"v_add_u32 v{XI+k}, v{XI+k}, v{VXO}")
        a(f"buffer_load_dwordx4 {v(X+4*k,4)}, v{XI+k}, {XS}, 0 offen {XF}")
    a(f"""
    s_cmp_gt_u32 s{sREM}, 1
    s_cselect_b32 s{sX+2}, s{sXNR}, 0
    s_waitcnt lgkmcnt(4)
    """)
    for k in range(4, 8):
        a(f"v_add_u32 v{XI+k}, v{XI+k}, v{VXO}")
        a(f"buffer_load_dwordx4 {v(X+4*k,4)}, v{XI+k}, {XS}, 0 offen {XF}")
    a(f"ds_read_b128 {v(XI,4)}, v{VX} offset:32")

    def group_start(g):
        b = XI + 4 * (g % 2)
        nb = XI + 4 * ((g + 1) % 2)
        if "noadd" in o.exp:
            a("s_nop 3")
        else:
            for k in range(4):
                a(f"v_add_u32 v{b+k}, v{b+k}, v{VXO}")
        a(f"ds_read_b128 {v(nb,4)}, v{VX} offset:{16*(g+3)}")
        a(f"s_cmp_gt_u32 s{sREM}, 2\ns_cselect_b32 s{sX+2}, s{sXNR}, 0")

    def mf(d, ar, br, c):
        a(f"v_mfma_f32_32x32x16_bf16 {v(d,16)}, {v(ar,4)}, {v(br,4)}, {c}")

    def rprol():
        a(f"""
        v_exp_f32 v{EE}, v{ZE}
        v_exp_f32 v{EE+1}, v{ZE+1}
        v_exp_f32 v{EE+2}, v{ZO}
        v_exp_f32 v{EE+3}, v{ZO+1}
        v_pk_add_f32 {v(EE,2)}, {v(EE,2)}, s[{sONE}:{sONE+1}]
        v_pk_add_f32 {v(EE+2,2)}, {v(EE+2,2)}, s[{sONE}:{sONE+1}]
        v_rcp_f32 v{EE}, v{EE}
        v_rcp_f32 v{EE+1}, v{EE+1}
        v_rcp_f32 v{EE+2}, v{EE+2}
        v_rcp_f32 v{EE+3}, v{EE+3}
        v_pk_mul_f32 {v(ZE,2)}, {v(ZE,2)}, {v(EE,2)}
        v_pk_mul_f32 {v(ZO,2)}, {v(ZO,2)}, {v(EE+2,2)}
        """)

    a("k2_blk:")
    for t in range(32):
        g, r = t // 4, t % 16
        if t == 0:
            a("s_waitcnt lgkmcnt(0)")
            for i in range(4):
                a(f"v_mfma_f32_4x4x4_16b_bf16 {v(ZO+4*i,4)}, {v(YY,2)}, {v(ZE+2*i,2)}, 0")
            a(f"ds_read_b64 {v(YY,2)}, v{VY} offset:512")
            a(f"v_add_u32 v{VY}, 512, v{VY}")
            mf(ZE, EF, W, "0")
            if "nolo" not in o.exp:
                mf(ZE, EF, W + 4, v(ZE, 16))
            for m in range(4):
                a(f"v_cvt_pk_bf16_f32 v{TA+2*m}, v{ZO+m}, v{ZO+4+m}")
            for m in range(4):
                a(f"v_cvt_pk_bf16_f32 v{TA+2*m+1}, v{ZO+8+m}, v{ZO+12+m}")
            mf(ZO, EF, W + 8, "0")
            if "nolo" not in o.exp:
                mf(ZO, EF, W + 12, v(ZO, 16))
            a(f"ds_read_b128 {v(EF,4)}, v{VEF} offset:1024")
            group_start(g)
            a("s_nop 3")
            rprol()
        elif t == 16:
            a("s_waitcnt lgkmcnt(0)")
            mf(ZE, EF, W, "0")
            if "nolo" not in o.exp:
                mf(ZE, EF, W + 4, v(ZE, 16))
            mf(ZO, EF, W + 8, "0")
            if "nolo" not in o.exp:
                mf(ZO, EF, W + 12, v(ZO, 16))
            a(f"ds_read_b128 {v(EF,4)}, v{VEF} offset:2048")
            a(f"v_add_u32 v{VEF}, 2048, v{VEF}")
            group_start(g)
            a("s_nop 2")
            rprol()
        elif t % 4 == 0:
            a("s_waitcnt lgkmcnt(0)")
            group_start(g)
            if t == 28:
                a(f"""
                v_and_or_b32 v{ZE+8}, v{VXO}, 48, s{sCG}
                ds_read_b128 {v(ZE,4)}, v{ZE+8}
                ds_read_b128 {v(ZE+4,4)}, v{ZE+8} offset:64
                """)
        k = t % 8
        xr = X + 4 * k
        ar = TA + 2 * (t % 4)
        p0 = r & ~1
        last = p0 == 14
        tr = "v_exp_f32" if r % 2 == 0 else "v_rcp_f32"

        def trn(e, z):
            if last or "notrans" in o.exp:
                return
            src = z if r % 2 == 0 else e
            a(f"{tr} v{e}, v{src}")

        def mid(e, z):
            if last:
                return
            if "v2mid" in o.exp:
                for u in range(2):
                    a(f"v_add_f32 v{e+u}, 1.0, v{e+u}" if r % 2 == 0 else f"v_mul_f32 v{z+u}, v{z+u}, v{e+u}")
            elif r % 2 == 0:
                a(f"v_pk_add_f32 {v(e,2)}, {v(e,2)}, s[{sONE}:{sONE+1}]")
            else:
                a(f"v_pk_mul_f32 {v(z,2)}, {v(z,2)}, {v(e,2)}")

        sel = "op_sel_hi:[0,1,1]" if r % 2 == 0 else "op_sel:[1,0,0] op_sel_hi:[1,1,1]"

        def fma(acc, z, tp):
            if "nofma" in o.exp:
                return
            if "v2fma" in o.exp:
                for u in range(2):
                    a(f"v_fmac_f32 v{acc+u}, v{z+r%2}, v{tp+u}")
                return
            a(f"v_pk_fma_f32 {v(acc,2)}, {v(z,2)}, {v(tp,2)}, {v(acc,2)} {sel}")

        cb = "" if "nocbsz" in o.exp else f"cbsz:3 abid:{t//4}"
        a("s_waitcnt vmcnt(7)")
        if "nomf" not in o.exp:
            a(f"v_mfma_f32_4x4x4_16b_bf16 {v(TP,4)}, {v(ar,2)}, {v(xr,2)}, 0 {cb}")
        trn(EE, ZE + p0 + 2)
        trn(EE + 1, ZE + p0 + 3)
        if "nomf" not in o.exp:
            a(f"v_mfma_f32_4x4x4_16b_bf16 {v(TP+4,4)}, {v(ar,2)}, {v(xr+2,2)}, 0 {cb}")
        if "noload" not in o.exp:
            a(f"buffer_load_dwordx4 {v(xr,4)}, v{XI+4*(g%2)+t%4}, {XS}, 0 offen {XF}")
        trn(EE + 2, ZO + p0 + 2)
        trn(EE + 3, ZO + p0 + 3)
        mid(EE, ZE + p0 + 2)
        if last:
            a("s_nop 2")
        fma(ACC, ZE + p0, TP)
        fma(ACC + 2, ZE + p0, TP + 2)
        mid(EE + 2, ZO + p0 + 2)
        fma(ACC + 4, ZO + p0, TP + 4)
        fma(ACC + 6, ZO + p0, TP + 6)
        if "nobr" in o.exp:
            a(f"k2_bk{t}:")
        else:
            a(f"s_bitcmp1_b32 s{sBM}, {t}\ns_cbranch_scc1 k2_fl{t}\nk2_bk{t}:")
        if t % 4 == 3:
            if "prio" in o.exp:
                a(f"s_sub_u32 s{sREM}, s{sREM}, 1\ns_cmp_eq_u32 s{sREM}, s{sTH}\ns_cbranch_scc1 k2_th{g}\nk2_tb{g}:")
            else:
                a(f"s_sub_u32 s{sREM}, s{sREM}, 1\ns_cmp_eq_u32 s{sREM}, 0\ns_cbranch_scc1 k2_done")
    a(f"""
    s_mov_b32 s{sBM}, s{sBM+1}
    s_mov_b32 s{sBM+1}, s{sBM+2}
    v_add_u32 v{VX}, 128, v{VX}
    s_branch k2_blk
    """)
    if "prio" in o.exp:
        for g in range(8):
            a(f"k2_th{g}:\ns_cmp_eq_u32 s{sTH}, 0\ns_cbranch_scc1 k2_done\ns_call_b64 s[{sRET}:{sRET+1}], k2_thr\ns_branch k2_tb{g}")
        a(f"""
        k2_thr:
        s_lshr_b32 s{sTH}, s{sTH}, 1
        s_sub_u32 s{sPR}, s{sPR}, 1
        s_cmp_eq_u32 s{sPR}, 2
        s_cbranch_scc1 k2_p2
        s_cmp_eq_u32 s{sPR}, 1
        s_cbranch_scc1 k2_p1x
        s_mov_b32 s{sTH}, 0
        s_setprio 0
        s_setpc_b64 s[{sRET}:{sRET+1}]
        k2_p2:
        s_setprio 2
        s_setpc_b64 s[{sRET}:{sRET+1}]
        k2_p1x:
        s_setprio 1
        s_setpc_b64 s[{sRET}:{sRET+1}]
        """)
    for t in range(32):
        a(f"k2_fl{t}:\ns_call_b64 s[{sRET}:{sRET+1}], k2_flush\ns_branch k2_bk{t}")
    a(f"""
    k2_flush:
    s_ff1_i32_b64 s{sCUR}, s[{sNM}:{sNM+1}]
    s_bitset0_b64 s[{sNM}:{sNM+1}], s{sCUR}
    s_lshl_b32 s58, s{sCUR}, 10
    s_and_b32 s59, s{sCUR}, 7
    s_lshl_b32 s59, s59, 4
    s_or_b32 s58, s58, s59
    v_xor_b32 v{TP}, s58, v{VJ4}
    ds_read_b128 {v(TP+4,4)}, v{TP} offset:{L_AGG}
    """)
    for q in range(4):
        a(f"v_permlane32_swap_b32 v{ACC+q}, v{ACC+4+q}")
    a(f"""
    v_pk_add_f32 {v(ACC,2)}, {v(ACC,2)}, {v(ACC+4,2)}
    v_pk_add_f32 {v(ACC+2,2)}, {v(ACC+2,2)}, {v(ACC+6,2)}
    v_mov_b64 {v(ACC+4,2)}, 0
    v_mov_b64 {v(ACC+6,2)}, 0
    s_waitcnt lgkmcnt(0)
    v_pk_add_f32 {v(TP+4,2)}, {v(TP+4,2)}, {v(ACC,2)}
    v_pk_add_f32 {v(TP+6,2)}, {v(TP+6,2)}, {v(ACC+2,2)}
    v_mov_b64 {v(ACC,2)}, 0
    v_mov_b64 {v(ACC+2,2)}, 0
    ds_write_b128 v{TP}, {v(TP+4,4)} offset:{L_AGG}
    s_setpc_b64 s[{sRET}:{sRET+1}]
    k2_open:
    s_cmp_eq_u32 s{sOPEN}, 0
    s_cbranch_scc1 k2_openret
    s_cmp_eq_u64 s[{sNM}:{sNM+1}], 0
    s_cbranch_scc1 k2_openret
    s_cmp_eq_u32 s{sSLOW}, 0
    s_cbranch_scc1 k2_flush
    s_ff1_i32_b64 s{sCUR}, s[{sNM}:{sNM+1}]
    s_lshl_b32 s58, s{sCUR}, 10
    s_and_b32 s59, s{sCUR}, 7
    s_lshl_b32 s59, s59, 4
    s_or_b32 s58, s58, s59
    v_xor_b32 v{TP}, s58, v{VJ4}
    """)
    for q in range(4):
        a(f"v_permlane32_swap_b32 v{ACC+q}, v{ACC+4+q}")
    a(f"""
    v_pk_add_f32 {v(ACC,2)}, {v(ACC,2)}, {v(ACC+4,2)}
    v_pk_add_f32 {v(ACC+2,2)}, {v(ACC+2,2)}, {v(ACC+6,2)}
    """)
    for q in range(4):
        a(f"ds_add_f32 v{TP}, v{ACC+q} offset:{L_AGG+4*q}")
    a(f"""
    k2_openret:
    s_setpc_b64 s[{sRET}:{sRET+1}]
    """)
    a(f"""
    k2_done:
    s_waitcnt vmcnt(0)
    s_add_u32 s{sW0}, s{sW0}, {CAP}
    v_and_b32 v{vL}, 63, v{VTID}
    s_cmp_lt_u32 s{sW0}, s{sTOT}
    s_cbranch_scc0 k2_last
    s_waitcnt lgkmcnt(0)
    s_barrier
    s_call_b64 s[{sRET}:{sRET+1}], k2_open
    v_lshlrev_b32 v1, 4, v{VTID}
    v_mov_b64 v[8:9], 0
    v_mov_b64 v[10:11], 0
    ds_write_b128 v1, v[8:11] offset:{L_XS}
    s_cmp_ge_u32 s{sWAVE}, 4
    s_cbranch_scc1 k2_p1
    v_lshlrev_b32 v2, 10, v{VTID}
    buffer_load_dword v4, v2, s[{sTB}:{sTB+3}], s{sB4} offen
    v_lshlrev_b32 v1, 2, v{VTID}
    v_add_u32 v1, {L_TT}, v1
    s_waitcnt vmcnt(0)
    ds_write_b32 v1, v4
    s_branch k2_p1
    k2_last:
    """)
    stamp(a, o, 5)
    a(f"""
    s_cmp_ge_u32 s{sWAVE}, 5
    s_cbranch_scc1 k2_nowm
    v_lshlrev_b32 v64, 4, v{vL}
    s_mov_b32 s58, {TB_WM}
    s_mov_b32 s59, {TB_WM+4096}
    """)
    for q in range(8):
        a(f"buffer_load_dwordx4 {v(4*q,4)}, v64, s[{sTB}:{sTB+3}], s{58+q//4} offen offset:{1024*(q%4)}")
    a(f"""
    k2_nowm:
    v_and_b32 v64, 31, v{vL}
    v_lshrrev_b32 v65, 5, v{vL}
    v_lshrrev_b32 v66, 2, v64
    v_mul_u32_u24 v66, 1040, v66
    v_lshl_add_u32 v66, v65, 7, v66
    v_and_b32 v67, 3, v64
    v_lshl_add_u32 v66, v67, 2, v66
    s_lshl_b32 s3, s{sWAVE}, 13
    v_add_u32 v113, s3, v66
    v_lshlrev_b32 v64, 4, v64
    v_lshl_add_u32 v112, v65, 9, v64
    """)
    for i in range(1, 8):
        a(f"v_xor_b32 v{113+i}, {16*i}, v113")
    a(f"""
    s_lshl_b32 s3, s{sWAVE}, 12
    s_mov_b32 s10, 0xbf317218
    s_mov_b32 s11, 0xbf317218
    s_waitcnt lgkmcnt(0)
    s_barrier
    """)
    stamp(a, o, 6)
    a(f"""
    s_call_b64 s[{sRET}:{sRET+1}], k2_open
    s_waitcnt lgkmcnt(0)
    s_barrier
    s_cmp_ge_u32 s{sWAVE}, 5
    s_cbranch_scc1 {"k2_tm" if o.timing else "k2_end"}
    """)
    for i in range(8):
        for u in range(2):
            a(f"ds_read2st64_b32 {v(32+4*i+2*u,2)}, v{113+i} offset0:{2*u} offset1:{2*u+1}")
    for k in range(4):
        a(f"s_waitcnt lgkmcnt({12-4*k})")
        for r in range(32 + 8 * k, 40 + 8 * k, 2):
            a(f"v_pk_mul_f32 {v(r,2)}, {v(r,2)}, s[10:11]")
        for sx in range(4):
            a(f"v_cvt_pk_bf16_f32 v{64+4*sx+k}, v{32+8*k+sx}, v{36+8*k+sx}")
    a("s_waitcnt vmcnt(0)\ns_nop 0")
    for sx in range(4):
        mf(80, 64 + 4 * sx, 8 * sx, "0" if sx == 0 else v(80, 16))
        mf(96, 64 + 4 * sx, 8 * sx + 4, "0" if sx == 0 else v(96, 16))
    a("s_nop 10")
    for rq in range(4):
        b = 32 + 4 * rq
        a(f"""
        v_cvt_pk_bf16_f32 v{b}, v{80+4*rq}, v{81+4*rq}
        v_cvt_pk_bf16_f32 v{b+1}, v{82+4*rq}, v{83+4*rq}
        v_cvt_pk_bf16_f32 v{b+2}, v{96+4*rq}, v{97+4*rq}
        v_cvt_pk_bf16_f32 v{b+3}, v{98+4*rq}, v{99+4*rq}
        buffer_store_dwordx4 {v(b,4)}, v112, s[{sOUT}:{sOUT+3}], s3 offen offset:{1024*rq} {o.outst}
        """)
    if o.timing:
        a("k2_tm:\ns_waitcnt vmcnt(0)")
        stamp(a, o, 7)
        a(f"s_mov_b64 exec, 1")
        stamp_store(a, o, 1, 8, 8, sWAVE)
    a("k2_end:\ns_endpgm")
    return a.text()


def desc(name, vg, sg):
    return f""".p2align 6
.amdhsa_kernel {name}
  .amdhsa_next_free_vgpr {vg}
  .amdhsa_next_free_sgpr {sg}
  .amdhsa_accum_offset {(vg+3)//4*4}
  .amdhsa_group_segment_fixed_size 0
  .amdhsa_kernarg_size 88
  .amdhsa_user_sgpr_count 2
  .amdhsa_user_sgpr_kernarg_segment_ptr 1
  .amdhsa_system_sgpr_workgroup_id_x 1
.end_amdhsa_kernel
"""


def main():
    p = argparse.ArgumentParser()
    p.add_argument("-o", default="cdna_kernels/" + NAME + ".s")
    p.add_argument("--timing", action="store_true")
    p.add_argument("--k1ld", default="nt")
    p.add_argument("--k1st", default="sc1")
    p.add_argument("--k2ld", default="")
    p.add_argument("--xld", default="")
    p.add_argument("--outst", default="")
    p.add_argument("--exp", default="")
    o = p.parse_args()
    o.exp = set(o.exp.split(","))
    K1 = "tfn_partition_kernel"
    K2 = NAME + "_kernel"
    t = f"""; TFN tensor-product message passing: launch 1 groups edge payloads by destination bucket,
; @launch kernel={K1} grid=({G},1,1) block=(1024,1,1) lds={L1_SZ}
; @launch kernel={K2} grid=({G},1,1) block=(1024,1,1) lds={L_SZ}
.amdgcn_target "amdgcn-amd-amdhsa--gfx950"
.text
.globl {K1}
.p2align 8
.type {K1},@function
{K1}:
{k1(o)}
.globl {K2}
.p2align 8
.type {K2},@function
{K2}:
{k2(o)}
.section .rodata,"a"
{desc(K1, 104, 96)}{desc(K2, 128, 96)}"""
    open(o.o, "w").write(t)


main()
```

```python
import sys, argparse

NAME = "gather_scatter__tensor_product_equiv_tfn__graph"
E, N = 640000, 10000
G, CH = 256, 2500
BMUL = 26843
WS_EF = 0
WS_YI = E * 32
WS_TB = WS_YI + E * 12
TB_WR = 262144
TB_CG = TB_WR + 4096
TB_WM = TB_CG + 128
TB_SZ = TB_WM + 8192
WS_TM = WS_TB + 524288
HALF = 5000
L1_HIST, L1_ST, L1_INV, L1_YI = 0, 1024, 2048, 7168
L1_RAW = L1_YI + 32768
L1_SZ = L1_RAW + 81920
CAP, C = 2720, 2816
SEG = 170
L_AGG = 0
L_XS = 40960
XHALF = C // 2 * 4
L_CNT = L_XS + C * 4
L_FLAG = L_CNT + 256
L_SH = L_FLAG + 256
L_YS = L_SH + C // 8 * 2
L_CG = L_YS + C * 8
L_EF = L_CG + 128
L_SZ = L_EF + (CAP + 1) * 32
L_TT = L_EF
assert L_SZ <= 163840 and L_CG % 64 == 0 and XHALF % 16 == 0 and L_YS % 16 == 0 and L_EF % 16 == 0
assert L_CG >= 65536 and SEG * 16 == CAP


class A:
    def __init__(s):
        s.l = []

    def __call__(s, t):
        for x in t.strip("\n").split("\n"):
            x = x.strip()
            if x:
                s.l.append(x if x.endswith(":") else "    " + x)

    def text(s):
        return "\n".join(s.l) + "\n"


def v(a, n=1):
    return f"v{a}" if n == 1 else f"v[{a}:{a+n-1}]"


def s(a, n=1):
    return f"s{a}" if n == 1 else f"s[{a}:{a+n-1}]"


def srd(a, r, ptr, off, nr):
    if off is None:
        a(f"s_mov_b32 s{r}, s{ptr}\ns_mov_b32 s{r+1}, s{ptr+1}")
    else:
        a(f"s_add_u32 s{r}, s{ptr}, {off}\ns_addc_u32 s{r+1}, s{ptr+1}, 0")
    a(f"s_mov_b32 s{r+2}, {nr}\ns_mov_b32 s{r+3}, 0x20000")


DPPS = ["row_shr:1 row_mask:0xf bank_mask:0xf bound_ctrl:1",
        "row_shr:2 row_mask:0xf bank_mask:0xf bound_ctrl:1",
        "row_shr:4 row_mask:0xf bank_mask:0xf bound_ctrl:1",
        "row_shr:8 row_mask:0xf bank_mask:0xf bound_ctrl:1",
        "row_bcast:15 row_mask:0xa bank_mask:0xf",
        "row_bcast:31 row_mask:0xc bank_mask:0xf"]


def scan(a, op, regs):
    for d in DPPS:
        for r in regs:
            a(f"{op}_dpp v{r}, v{r}, v{r} {d}")
        if len(regs) < 3:
            a(f"s_nop {2 - len(regs)}")


def stamp(a, o, i):
    if o.timing:
        a(f"{'s_memtime' if 'clk' in o.exp else 's_memrealtime'} s[{72+2*i}:{73+2*i}]")


def stamp_store(a, o, kern, n, ptr, sw):
    if not o.timing:
        return
    a(f"""
    s_waitcnt lgkmcnt(0)
    s_lshl_b32 s3, s2, 4
    s_add_u32 s3, s3, s{sw}
    s_lshl_b32 s3, s3, 6
    s_add_u32 s3, s3, {WS_TM + kern*262144}
    """)
    srd(a, 68, ptr, "s3", 64)
    a("s_nop 4\nv_mov_b32 v0, 0")
    for i in range(n):
        a(f"v_mov_b32 v1, s{72+2*i}\nbuffer_store_dword v1, v0, s[68:71], 0 offen offset:{4*i}\ns_nop 1")


def k1(o):
    a = A()
    LD = o.k1ld
    ST = o.k1st
    a(f"""
    s_cmp_ge_u32 s2, {G}
    s_cbranch_scc1 k1_end
    """)
    stamp(a, o, 0)
    a(f"""
    s_load_dwordx4 s[4:7], s[0:1], 8
    s_load_dwordx4 s[8:11], s[0:1], 24
    s_load_dwordx4 s[12:15], s[0:1], 40
    s_load_dwordx2 s[16:17], s[0:1], 56
    s_load_dwordx2 s[18:19], s[0:1], 80
    v_lshlrev_b32 v1, 2, v0
    v_lshlrev_b32 v2, 3, v0
    v_lshlrev_b32 v3, 4, v0
    v_and_b32 v46, 0x3fc, v1
    v_mov_b32 v47, 0
    v_lshrrev_b32 v62, 6, v0
    v_and_b32 v63, 63, v0
    ds_write_b32 v46, v47 offset:{L1_HIST}
    v_readfirstlane_b32 s62, v62
    v_cmp_gt_u32 vcc, {CH - 2048}, v0
    s_movk_i32 s52, 4096
    s_movk_i32 s53, 8192
    s_movk_i32 s54, 16384
    s_mov_b32 s55, 32768
    s_mov_b32 s56, 65536
    s_mov_b32 s57, 49152
    s_mov_b64 s[60:61], vcc
    s_mul_i32 s3, s2, {CH*4}
    s_mul_i32 s58, s2, {CH*8}
    s_mul_i32 s59, s2, {CH*32}
    s_waitcnt lgkmcnt(0)
    """)
    srd(a, 24, 6, "s3", CH * 4)
    srd(a, 20, 4, "s3", CH * 4)
    srd(a, 28, 8, "s58", CH * 8)
    srd(a, 32, 10, "s59", CH * 32)
    a(f"""
    s_cmp_eq_u32 s62, 15
    s_cselect_b32 s63, s2, 6
    s_cmp_ge_u32 s63, 6
    s_cbranch_scc1 k1_noimg0
    v_and_b32 v64, 31, v63
    v_lshrrev_b32 v65, 5, v63
    v_lshlrev_b32 v64, 2, v64
    s_cmp_eq_u32 s63, 4
    s_cbranch_scc1 k1_ldwr
    s_cmp_eq_u32 s63, 5
    s_cbranch_scc1 k1_ldcg
    """)
    srd(a, 48, 16, None, 8192)
    a(f"""
    v_lshl_add_u32 v64, v65, 11, v64
    s_and_b32 s64, s63, 1
    s_lshl_b32 s64, s64, 12
    s_lshr_b32 s65, s63, 1
    s_lshl_b32 s65, s65, 7
    s_add_u32 s64, s64, s65
    """)
    for i in range(8):
        a(f"buffer_load_dword v{66+i}, v64, s[48:51], s64 offen offset:{256*i}")
    a("s_branch k1_noimg0\nk1_ldwr:")
    srd(a, 48, 12, None, 2048)
    a("v_lshl_add_u32 v64, v65, 10, v64")
    for i in range(8):
        a(f"buffer_load_dword v{66+i}, v64, s[48:51], 0 offen offset:{128*i}")
    a("s_branch k1_noimg0\nk1_ldcg:")
    srd(a, 48, 14, None, 128)
    a("v_and_b32 v64, 3, v63\nv_lshlrev_b32 v64, 1, v64")
    for i in range(16):
        a(f"buffer_load_ushort v{66+i}, v64, s[48:51], 0 offen offset:{8*i}")
    a("k1_noimg0:")
    so4 = ["0", "s52", "s53"]
    so8 = ["0", "s53", "s54"]
    so16 = ["0", "s54", "s55", "s57", "s56"]
    for i in range(3):
        a(f"buffer_load_dword v{4+i}, v1, s[24:27], {so4[i]} offen {LD}")
    for i in range(3):
        a(f"buffer_load_dword v{7+i}, v1, s[20:23], {so4[i]} offen {LD}")
    for i in range(3):
        a(f"buffer_load_dwordx2 v[{10+2*i}:{11+2*i}], v2, s[28:31], {so8[i]} offen {LD}")

    def ld_ef(j):
        a(f"buffer_load_dwordx4 v3, s[32:35], {so16[j]} offen {LD} lds")
        a("s_add_u32 m0, m0, 16384")
    a(f"s_add_u32 s59, s59, {WS_EF}")
    srd(a, 36, 18, "s59", CH * 32)
    a(f"s_mul_i32 s58, s2, {CH*12}\ns_add_u32 s58, s58, {WS_YI}")
    srd(a, 40, 18, "s58", CH * 12)
    srd(a, 44, 18, WS_TB, TB_SZ)
    n1 = o.k1n
    a(f"""
    s_lshl_b32 s3, s62, 10
    s_add_u32 m0, s3, {L1_RAW}
    s_lshl_b32 s66, s2, 10
    s_mov_b32 s67, {L1_YI}
    v_mov_b32 v47, 1
    v_lshlrev_b32 v61, 4, v63
    v_mov_b32 v60, {1<<28}
    s_movk_i32 s10, {HALF}
    s_barrier
    """)
    for j in range(n1):
        ld_ef(j)
        a("s_nop 0")
    a(f"s_waitcnt vmcnt({6+n1})")
    stamp(a, o, 1)
    for i in range(3):
        a(f"v_mul_u32_u24 v{16+i}, {BMUL}, v{4+i}")
    for i in range(3):
        a(f"v_lshrrev_b32 v{16+i}, 20, v{16+i}")
    for i in range(3):
        a(f"v_lshlrev_b32 v{40+i}, 2, v{16+i}")
    a(f"""
    ds_add_rtn_u32 v43, v40, v47 offset:{L1_HIST}
    ds_add_rtn_u32 v44, v41, v47 offset:{L1_HIST}
    s_mov_b64 exec, s[60:61]
    s_cbranch_execz k1_a
    ds_add_rtn_u32 v45, v42, v47 offset:{L1_HIST}
    k1_a:
    s_mov_b64 exec, -1
    """)
    for j in range(n1, 5):
        ld_ef(j)
        a("s_nop 0")
    for i in range(3):
        a(f"v_mul_u32_u24 v{16+i}, 320007, v{16+i}")
    for i in range(3):
        a(f"v_add_u32 v{16+i}, 8160, v{16+i}")
    for i in range(3):
        a(f"v_lshrrev_b32 v{16+i}, 13, v{16+i}")
    for i in range(3):
        a(f"v_sub_u32 v{4+i}, v{4+i}, v{16+i}")
    for i in range(3):
        a(f"v_lshlrev_b32 v{4+i}, 18, v{4+i}")
    a(f"""
    s_waitcnt lgkmcnt(0)
    s_barrier
    ds_read_b128 v[48:51], v61 offset:{L1_HIST}
    s_waitcnt vmcnt(8)
    """)
    for i in range(3):
        a(f"v_cmp_le_u32 s[{4+2*i}:{5+2*i}], s10, v{7+i}")
    for i in range(3):
        a(f"v_cndmask_b32 v{16+i}, 0, v60, s[{4+2*i}:{5+2*i}]")
    for i in range(3):
        a(f"v_or3_b32 v{7+i}, v{7+i}, v{4+i}, v{16+i}")
    a(f"""
    s_waitcnt lgkmcnt(0)
    v_add_u32 v54, v48, v49
    v_add_u32 v55, v54, v50
    v_add_u32 v56, v55, v51
    v_mov_b32 v57, v56
    s_nop 1
    """)
    scan(a, "v_add_u32", [57])
    a(f"""
    v_sub_u32 v52, v57, v56
    v_add_u32 v53, v52, v48
    v_add_u32 v54, v52, v54
    v_add_u32 v55, v52, v55
    ds_write_b128 v61, v[52:55] offset:{L1_ST}
    ds_read_b32 v56, v40 offset:{L1_ST}
    ds_read_b32 v57, v41 offset:{L1_ST}
    ds_read_b32 v58, v42 offset:{L1_ST}
    v_lshl_or_b32 v48, v48, 16, v52
    v_lshl_or_b32 v49, v49, 16, v53
    v_lshl_or_b32 v50, v50, 16, v54
    v_lshl_or_b32 v51, v51, 16, v55
    v_add_u32 v17, 1024, v0
    v_add_u32 v18, 2048, v0
    s_waitcnt lgkmcnt(0)
    """)
    for i in range(3):
        a(f"v_add_u32 v{43+i}, v{43+i}, v{56+i}")
    for i in range(3):
        a(f"v_mad_u32_u24 v{40+i}, v{43+i}, 12, s67")
        a(f"v_lshlrev_b32 v{43+i}, 1, v{43+i}")
    stamp(a, o, 2)
    a(f"""
    ds_write_b16 v43, v0 offset:{L1_INV}
    ds_write_b16 v44, v17 offset:{L1_INV}
    s_waitcnt vmcnt(5)
    """)
    for i in range(2):
        a(f"ds_write2_b32 v{40+i}, v{10+2*i}, v{11+2*i} offset0:0 offset1:1")
        a(f"ds_write_b32 v{40+i}, v{7+i} offset:8")
    a(f"""
    s_mov_b64 exec, s[60:61]
    s_cbranch_execz k1_b
    ds_write_b16 v45, v18 offset:{L1_INV}
    ds_write2_b32 v42, v14, v15 offset0:0 offset1:1
    ds_write_b32 v42, v9 offset:8
    k1_b:
    s_mov_b64 exec, -1
    s_cmp_lg_u32 s62, 0
    s_cbranch_scc1 k1_c
    buffer_store_dwordx4 v[48:51], v61, s[44:47], s66 offen {ST}
    k1_c:
    v_and_b32 v1, -2, v0
    v_and_b32 v2, 1, v0
    v_lshlrev_b32 v2, 4, v2
    s_waitcnt lgkmcnt(0)
    s_barrier
    ds_read_b128 v[24:27], v3 offset:{L1_YI}
    ds_read_b128 v[28:31], v3 offset:{L1_YI+16384}
    """)
    for j in range(5):
        a(f"ds_read_u16 v{32+j}, v1 offset:{L1_INV+1024*j}")
    a(f"""
    s_waitcnt lgkmcnt(6)
    buffer_store_dwordx4 v[24:27], v3, s[40:43], 0 offen {ST}
    s_waitcnt lgkmcnt(5)
    buffer_store_dwordx4 v[28:31], v3, s[40:43], s54 offen {ST}
    s_waitcnt lgkmcnt(0)
    """)
    for j in range(5):
        a(f"v_lshl_or_b32 v{32+j}, v{32+j}, 5, v2")
    a("s_waitcnt vmcnt(2)\ns_barrier")
    stamp(a, o, 3)
    for j in range(5):
        a(f"ds_read_b128 v[{4+4*j}:{7+4*j}], v{32+j} offset:{L1_RAW}")
    for j in range(5):
        a(f"s_waitcnt lgkmcnt({4-j})")
        a(f"buffer_store_dwordx4 v[{4+4*j}:{7+4*j}], v3, s[36:39], {so16[j]} offen {ST}")
    a(f"""
    s_cmp_ge_u32 s63, 6
    s_cbranch_scc1 k1_fin
    s_cmp_eq_u32 s63, 4
    s_cbranch_scc1 k1_wr
    s_cmp_eq_u32 s63, 5
    s_cbranch_scc1 k1_cg
    s_mov_b32 s64, 0x05040100
    s_mov_b32 s65, 0x07060302
    s_lshl_b32 s58, s63, 11
    s_add_u32 s58, s58, {TB_WM}
    """)
    for k in range(4):
        a(f"v_perm_b32 v{84+k}, v{67+2*k}, v{66+2*k}, s64")
        a(f"v_perm_b32 v{88+k}, v{67+2*k}, v{66+2*k}, s65")
    a(f"""
    buffer_store_dwordx4 v[84:87], v61, s[44:47], s58 offen {ST}
    buffer_store_dwordx4 v[88:91], v61, s[44:47], s58 offen offset:1024 {ST}
    s_branch k1_fin
    k1_wr:
    s_mov_b32 s64, 0xbfb8aa3b
    s_mov_b32 s65, 0xffff0000
    s_mov_b32 s58, {TB_WR}
    """)
    for par in range(2):
        for k in range(4):
            for u in range(2):
                if par == 0:
                    a(f"v_lshlrev_b32 v{76+u}, 16, v{66+2*k+u}")
                else:
                    a(f"v_and_b32 v{76+u}, s65, v{66+2*k+u}")
            a(f"""
            v_mul_f32 v76, s64, v76
            v_mul_f32 v77, s64, v77
            v_cvt_pk_bf16_f32 v{84+4*par+k}, v76, v77
            """)
    for q in range(2):
        a(f"buffer_store_dwordx4 v[{84+4*q}:{87+4*q}], v61, s[44:47], s58 offen offset:{1024*q} {ST}")
    a(f"""
    s_branch k1_fin
    k1_cg:
    s_mov_b32 s58, {TB_CG}
    """)
    for k in range(8):
        a(f"v_lshl_or_b32 v{84+k}, v{67+2*k}, 16, v{66+2*k}")
    a(f"""
    s_mov_b64 exec, 15
    buffer_store_dwordx4 v[84:87], v61, s[44:47], s58 offen {ST}
    buffer_store_dwordx4 v[88:91], v61, s[44:47], s58 offen offset:64 {ST}
    s_mov_b64 exec, -1
    k1_fin:
    """)
    if o.timing:
        a("s_waitcnt vmcnt(0)")
        stamp(a, o, 4)
        a("s_mov_b64 exec, 1")
        stamp_store(a, o, 0, 5, 18, 62)
    a("k1_end:\ns_endpgm")
    return a.text()


X, ZE, ZO, TA, TP, ACC, EE, W, EF, YY, XI = 0, 32, 48, 64, 72, 80, 88, 92, 108, 112, 114
PARK, VRI, VHB = 100, 104, 105
VXO, VX, VY, VEF, VJ4, VTID = 122, 123, 124, 125, 126, 127
sX, sEF, sYI, sTB, sOUT = 12, 16, 20, 24, 28
sWAVE, sB4, sN0, sW0, sTOT, sLIM, sP = 32, 33, 34, 35, 36, 37, 38
sNG = 39
sONE, sXNR, sREM, sBM, sNM, sCUR, sCG = 40, 42, 43, 44, 48, 50, 51
sM = 52
sRET = 60
sSLOW, sOPEN = 47, 70
sTH, sPR = 71, 11
sNB, sEA, sOPA, sPK, s512 = 88, 90, 91, 92, 93


def k2(o):
    a = A()
    LD = o.k2ld
    XF = o.xld
    vL = VXO
    a(f"""
    s_cmp_ge_u32 s2, {G}
    s_cbranch_scc1 k2_end
    """)
    stamp(a, o, 0)
    a(f"""
    s_load_dwordx2 s[4:5], s[0:1], 0
    s_load_dwordx2 s[6:7], s[0:1], 64
    s_load_dwordx2 s[8:9], s[0:1], 80
    v_mov_b32 v{VTID}, v0
    v_lshrrev_b32 v1, 6, v0
    v_and_b32 v{vL}, 63, v0
    v_readfirstlane_b32 s{sWAVE}, v1
    s_and_b32 s3, s2, 7
    s_lshl_b32 s3, s3, 5
    s_lshr_b32 s10, s2, 3
    s_or_b32 s3, s3, s10
    s_lshl_b32 s{sB4}, s3, 2
    s_mul_i32 s{sN0}, s3, 320007
    s_add_u32 s10, s{sN0}, {320007+8160}
    s_add_u32 s{sN0}, s{sN0}, 8160
    s_lshr_b32 s{sN0}, s{sN0}, 13
    s_lshr_b32 s10, s10, 13
    s_min_u32 s10, s10, {N}
    s_sub_u32 s10, s10, s{sN0}
    s_lshl_b32 s10, s10, 9
    s_lshl_b32 s11, s{sN0}, 9
    s_mov_b32 s{sW0}, 0
    s_mov_b32 s{sONE}, 1.0
    s_mov_b32 s{sONE+1}, 1.0
    s_mov_b32 s{sXNR}, {0 if "nox" in o.exp else N*512}
    s_mov_b32 s{sCG}, {L_CG}
    s_movk_i32 s{s512}, 512
    s_mov_b32 s94, 0
    s_mov_b32 s58, {TB_WR}
    s_mov_b32 s59, {TB_CG}
    v_lshlrev_b32 v2, 10, v0
    v_lshlrev_b32 v3, 4, v{vL}
    s_waitcnt lgkmcnt(0)
    """)
    srd(a, sTB, 8, WS_TB, TB_SZ)
    a(f"""
    s_cmp_ge_u32 s{sWAVE}, 4
    s_cbranch_scc1 k2_not0
    buffer_load_dword v4, v2, s[{sTB}:{sTB+3}], s{sB4} offen
    k2_not0:
    s_cmp_lg_u32 s{sWAVE}, 4
    s_cbranch_scc1 k2_nocg0
    s_mov_b64 exec, 0xff
    buffer_load_dwordx4 v[4:7], v3, s[{sTB}:{sTB+3}], s59 offen
    s_mov_b64 exec, -1
    k2_nocg0:
    """)
    for q in range(2):
        a(f"buffer_load_dwordx4 {v(W+4*q,4)}, v3, s[{sTB}:{sTB+3}], s58 offen offset:{1024*q}")
    srd(a, sX, 4, None, N * 512)
    srd(a, sEF, 8, WS_EF, E * 32)
    srd(a, sYI, 8, WS_YI, E * 12)
    srd(a, sOUT, 6, "s11", "s10")
    a(f"""
    v_lshlrev_b32 v1, 4, v0
    v_mov_b64 v[8:9], 0
    v_mov_b64 v[10:11], 0
    """)
    for p in range(4):
        a(f"ds_write_b128 v1, v[8:11] offset:{16384*p}")
    a(f"""
    s_cmp_lg_u32 s{sWAVE}, 4
    s_cbranch_scc1 k2_nocg1
    v_add_u32 v3, s{sCG}, v3
    s_mov_b64 exec, 3
    v_add_u32 v12, {L_EF + CAP*32 - L_CG}, v3
    ds_write_b128 v12, v[8:11]
    s_mov_b64 exec, 0xff
    s_waitcnt vmcnt(2)
    ds_write_b128 v3, v[4:7]
    s_mov_b64 exec, -1
    k2_nocg1:
    s_cmp_ge_u32 s{sWAVE}, 4
    s_cbranch_scc1 k2_p1
    v_lshlrev_b32 v1, 2, v0
    v_add_u32 v1, {L_TT}, v1
    s_waitcnt vmcnt(2)
    ds_write_b32 v1, v4
    k2_p1:
    v_lshlrev_b32 v1, 4, v{vL}
    v_add_u32 v1, {L_TT}, v1
    s_mul_i32 s58, s{sWAVE}, {SEG}
    s_add_u32 s59, s58, s{sW0}
    s_waitcnt lgkmcnt(0)
    s_barrier
    """)
    stamp(a, o, 1)
    a(f"""
    ds_read_b128 v[0:3], v1
    v_mul_u32_u24 v12, {4*CH}, v{vL}
    v_add_u32 v13, {CH}, v12
    v_add_u32 v14, {2*CH}, v12
    v_add_u32 v15, {3*CH}, v12
    s_waitcnt lgkmcnt(0)
    """)
    for i in range(4):
        a(f"v_lshrrev_b32 v{4+i}, 16, v{i}")
    for i in range(4):
        a(f"v_and_b32 v{i}, 0xffff, v{i}")
    a(f"""
    v_add_u32 v10, v4, v5
    v_add_u32 v11, v10, v6
    v_add_u32 v16, v11, v7
    v_mov_b32 v17, v16
    """)
    for i in range(4):
        a(f"v_add_u32 v{12+i}, v{12+i}, v{i}")
    scan(a, "v_add_u32", [17])
    a(f"""
    v_sub_u32 v8, v17, v16
    v_readlane_b32 s{sTOT}, v17, 63
    v_add_u32 v9, v8, v4
    v_add_u32 v10, v8, v10
    v_add_u32 v11, v8, v11
    """)
    for i in range(4):
        a(f"v_sub_u32 v{12+i}, v{12+i}, v{8+i}")
    for i in range(4):
        a(f"v_cmp_ge_u32 s[{62+2*i}:{63+2*i}], s59, v{8+i}")
    for i in range(4):
        a(f"v_subrev_u32 v{8+i}, s{sW0}, v{8+i}")
    for i in range(4):
        a(f"v_min_u32 v{8+i}, {CAP}, v{8+i}")
    for i in range(4):
        a(f"v_lshlrev_b32 v{8+i}, 2, v{8+i}")
    for i in range(4):
        a(f"ds_max_u32 v{8+i}, v{12+i} offset:{L_XS}")
    a(f"""
    v_add_u32 v16, s58, v{vL}
    v_lshlrev_b32 v17, 2, v16
    """)
    for i in range(3):
        a(f"ds_read_b32 v{i}, v17 offset:{L_XS+256*i}")
    for i in range(4):
        a(f"v_cndmask_b32 v{4+i}, 0, v{12+i}, s[{62+2*i}:{63+2*i}]")
    a(f"""
    v_max3_u32 v4, v4, v5, v6
    v_max_u32 v3, v4, v7
    s_sub_u32 s{sLIM}, s{sTOT}, s{sW0}
    s_min_u32 s{sLIM}, s{sLIM}, {CAP}
    s_add_u32 s10, s58, {SEG}
    s_min_u32 s10, s10, s{sLIM}
    v_add_u32 v17, 64, v16
    v_add_u32 v18, 128, v16
    v_cmp_gt_u32 s[{sM}:{sM+1}], s10, v16
    v_cmp_gt_u32 s[{sM+2}:{sM+3}], s10, v17
    v_cmp_gt_u32 s[{sM+4}:{sM+5}], s10, v18
    s_waitcnt lgkmcnt(0)
    """)
    scan(a, "v_max_u32", [3, 0, 1, 2])
    a(f"""
    v_readlane_b32 s62, v3, 63
    v_readlane_b32 s63, v0, 63
    v_readlane_b32 s64, v1, 63
    v_lshrrev_b32 v7, 1, v{vL}
    v_lshlrev_b32 v7, 2, v7
    v_add_u32 v8, 128, v7
    s_max_u32 s63, s63, s62
    s_max_u32 s64, s64, s63
    v_max_u32 v0, s62, v0
    v_max_u32 v1, s63, v1
    v_max_u32 v2, s64, v2
    v_mov_b32 v3, 0xf00000
    """)
    for i in range(3):
        a(f"v_add3_u32 v{i}, v{i}, v{16+i}, s{sW0}")
    for i in range(3):
        a(f"v_cndmask_b32 v{i}, v3, v{i}, s[{sM+2*i}:{sM+2*i+1}]")
    for i in range(3):
        a(f"v_mul_u32_u24 v{4+i}, 12, v{i}")
        a(f"buffer_load_dwordx3 v[{20+4*i}:{22+4*i}], v{4+i}, s[{sYI}:{sYI+3}], 0 offen {LD}")
    for j in range(6):
        a(f"ds_bpermute_b32 v{32+j}, v{7+j%2}, v{j//2}")
    a(f"""
    v_and_b32 v9, 1, v{vL}
    v_lshlrev_b32 v9, 4, v9
    s_lshl_b32 s3, s58, 5
    s_add_u32 m0, s3, {L_EF}
    v_mov_b32 v62, 1
    s_waitcnt lgkmcnt(0)
    """)
    for j in range(6):
        a(f"v_lshl_or_b32 v{32+j}, v{32+j}, 5, v9")
    a("s_barrier")

    def dma(j):
        if j == 5:
            a(f"s_mov_b64 exec, {hex((1 << (2*(SEG-160))) - 1)}")
        a(f"buffer_load_dwordx4 v{32+j}, s[{sEF}:{sEF+3}], 0 offen {LD} lds")
        a("s_add_u32 m0, m0, 1024" if j < 5 else "s_mov_b64 exec, -1")
        a("s_nop 0")
    n1 = o.k2n
    for j in range(n1):
        dma(j)
    stamp(a, o, 2)
    a(f"s_waitcnt vmcnt({n1})")
    for i in range(3):
        a(f"v_lshrrev_b32 v{40+i}, 24, v{22+4*i}")
    for i in range(3):
        a(f"v_bfe_u32 v{56+i}, v{22+4*i}, 16, 8")
    for i in range(3):
        a(f"v_lshlrev_b32 v{44+i}, v{40+i}, v62")
    for i in range(3):
        a(f"""
        s_mov_b64 exec, s[{sM+2*i}:{sM+2*i+1}]
        s_cbranch_execz k2_h
        ds_add_rtn_u32 v{59+i}, v{56+i}, v{44+i} offset:{L_CNT}
        """)
    a(f"""
    k2_h:
    s_mov_b64 exec, -1
    s_mov_b32 s3, 0x05040100
    """)
    for j in range(n1, 6):
        dma(j)
    for i in range(3):
        a(f"v_perm_b32 v{22+4*i}, v{16+i}, v{22+4*i}, s3")
    a(f"""
    v_lshlrev_b32 v0, 2, v{vL}
    s_waitcnt lgkmcnt(0)
    s_barrier
    """)
    stamp(a, o, 3)
    a(f"""
    ds_read_b32 v64, v0 offset:{L_CNT}
    s_mov_b32 s62, {XHALF}
    """)
    for i in range(3):
        a(f"v_bfe_u32 v{59+i}, v{59+i}, v{40+i}, 16")
    a(f"""
    v_and_b32 v10, 31, v{vL}
    v_lshrrev_b32 v11, 5, v{vL}
    s_waitcnt lgkmcnt(0)
    v_add_u32 v65, 0x10001, v64
    v_and_b32 v65, 0xfffefffe, v65
    v_mov_b32 v66, v65
    v_and_b32 v68, 0xffff, v64
    v_and_b32 v70, 0xffff, v65
    """)
    scan(a, "v_add_u32", [66])
    a(f"""
    v_sub_u32 v67, v66, v65
    v_readlane_b32 s{sP}, v66, 63
    v_lshrrev_b32 v69, 16, v64
    v_lshrrev_b32 v71, 16, v65
    v_cmp_eq_u32 vcc, 0, v68
    s_and_b32 s4, s{sP}, 0xffff
    s_lshr_b32 s5, s{sP}, 16
    s_add_u32 s4, s4, 7
    s_add_u32 s5, s5, 7
    s_lshr_b32 s4, s4, 3
    s_lshr_b32 s5, s5, 3
    v_cndmask_b32 v12, 0, v62, vcc
    s_lshl_b32 s3, s4, 19
    v_add_u32 v67, s3, v67
    ds_write_b32 v0, v12 offset:{L_FLAG}
    """)
    for i in range(3):
        a(f"ds_bpermute_b32 v{i}, v{56+i}, v67")
    a(f"""
    s_lshr_b32 s6, s4, 4
    s_lshr_b32 s7, s5, 4
    s_lshl_b32 s10, s6, 3
    s_lshl_b32 s11, s7, 3
    v_cmp_lt_u32 vcc, s10, v70
    v_cmp_lt_u32 s[68:69], s11, v71
    s_and_b32 s3, s4, 15
    s_mul_i32 s63, s6, s{sWAVE}
    s_min_u32 s10, s3, s{sWAVE}
    s_add_u32 s63, s63, s10
    s_cmp_lt_u32 s{sWAVE}, s3
    s_addc_u32 s64, s6, 0
    s_and_b32 s3, s5, 15
    s_add_u32 s3, s3, s{sWAVE}
    s_mul_i32 s65, s7, s{sWAVE}
    s_sub_u32 s10, s3, 16
    s_max_i32 s10, s10, 0
    s_add_u32 s65, s65, s10
    s_cmp_ge_u32 s3, 16
    s_addc_u32 s66, s7, 0
    s_or_b64 vcc, vcc, s[68:69]
    s_cmp_lg_u64 vcc, 0
    s_cselect_b32 s{sSLOW}, 1, 0
    s_add_u32 s{sNG}, s64, s66
    s_add_u32 s3, s4, s65
    s_add_u32 s10, s63, s64
    s_sub_u32 s10, s10, s4
    s_lshl_b32 s10, s10, 3
    s_lshl_b32 s11, s65, 3
    s_bfm_b64 s[68:69], s64, 0
    s_bfm_b64 vcc, s66, 32
    s_mov_b64 exec, 0xffffffff
    v_add_u32 v12, s63, v10
    v_mov_b32 v13, s11
    s_not_b64 exec, exec
    v_add_u32 v12, s3, v10
    v_mov_b32 v13, s10
    s_mov_b64 exec, -1
    v_lshlrev_b32 v12, 1, v12
    s_or_b64 exec, vcc, s[68:69]
    s_cbranch_execz k2_nosh
    ds_write_b16 v12, v13 offset:{L_SH}
    k2_nosh:
    s_mov_b64 exec, -1
    s_waitcnt lgkmcnt(0)
    """)
    for i in range(3):
        a(f"v_bfe_u32 v{i}, v{i}, v{40+i}, 16")
    for i in range(3):
        a(f"v_add_u32 v{i}, v{i}, v{59+i}")
    a(f"""
    s_mov_b64 s[6:7], 0
    s_cmp_lt_u32 s{sWAVE}, 14
    s_cbranch_scc1 k2_nopad0
    s_sub_u32 s3, s{sWAVE}, 14
    s_mul_i32 s10, s3, s5
    s_add_u32 s10, s10, s4
    s_lshl_b32 s10, s10, 3
    s_lshl_b32 s3, s3, 4
    v_bfe_u32 v12, v64, s3, 16
    v_bfe_u32 v13, v67, s3, 16
    v_subrev_u32 v14, 40, v{vL}
    v_cmp_gt_u32 vcc, 8, v14
    v_max_i32 v14, 0, v14
    v_add3_u32 v3, v12, v13, v14
    v_and_b32 v12, 1, v12
    v_cmp_gt_u32 s[68:69], s10, v3
    v_cmp_eq_u32 s[6:7], 1, v12
    s_and_b64 vcc, vcc, s[68:69]
    s_or_b64 s[6:7], s[6:7], vcc
    k2_nopad0:
    """)
    for i in range(4):
        a(f"v_lshrrev_b32 v{4+i}, 2, v{i}")
    for i in range(4):
        a(f"v_and_b32 v{4+i}, 0x7fe, v{4+i}")
    a("s_barrier")
    for i in range(4):
        a(f"ds_read_i16 v{4+i}, v{4+i} offset:{L_SH}")
    a(f"""
    v_and_b32 v70, 0xffff, v66
    v_lshrrev_b32 v71, 16, v66
    s_lshl_b32 s10, s63, 3
    s_lshl_b32 s11, s65, 3
    v_cmp_lt_u32 s[{sNM}:{sNM+1}], s10, v70
    v_cmp_lt_u32 vcc, 0, v68
    v_cmp_lt_u32 s[{sNB}:{sNB+1}], s11, v71
    v_cmp_lt_u32 s[68:69], 0, v69
    s_mov_b64 s[{sBM}:{sBM+1}], 0
    s_mov_b32 s{sBM+2}, 0
    s_mov_b32 s{sEA}, 0
    s_and_b64 s[{sNM}:{sNM+1}], s[{sNM}:{sNM+1}], vcc
    s_and_b64 s[{sNB}:{sNB+1}], s[{sNB}:{sNB+1}], s[68:69]
    s_mov_b64 s[68:69], s[{sNM}:{sNM+1}]
    s_lshl_b32 s67, s63, 2
    s_add_u32 s67, s67, 1
    s_lshl_b32 s11, s64, 2
    """)

    def bm(tag, vend, cnt):
        a(f"""
        k2_bl{tag}:
        s_ff1_i32_b64 s3, s[68:69]
        s_cmp_lt_i32 s3, 0
        s_cbranch_scc1 k2_bld{tag}
        v_readlane_b32 s10, v{vend}, s3
        s_bitset0_b64 s[68:69], s3
        s_lshr_b32 s10, s10, 1
        s_sub_u32 s10, s10, s67
        s_cmp_ge_u32 s10, s11
        s_cbranch_scc1 k2_bld{tag}
        {f"s_add_u32 s{sEA}, s{sEA}, 1" if cnt else ""}
        s_cmp_ge_u32 s10, 64
        s_cbranch_scc1 k2_bh{tag}
        s_bitset1_b64 s[{sBM}:{sBM+1}], s10
        s_branch k2_bl{tag}
        k2_bh{tag}:
        s_bitset1_b32 s{sBM+2}, s10
        s_branch k2_bl{tag}
        k2_bld{tag}:
        s_sub_u32 s10, s11, 1
        s_cmp_ge_u32 s10, 64
        s_cbranch_scc1 k2_bh2{tag}
        s_bitcmp0_b64 s[{sBM}:{sBM+1}], s10
        s_branch k2_bdone{tag}
        k2_bh2{tag}:
        s_bitcmp0_b32 s{sBM+2}, s10
        k2_bdone{tag}:
        """)
    bm("a", 70, True)
    a(f"""
    s_cselect_b32 s{sOPA}, s3, -1
    s_cmp_eq_u32 s64, 0
    s_cselect_b32 s{sOPA}, -1, s{sOPA}
    s_cmp_ge_i32 s{sOPA}, 0
    s_cselect_b32 s{sPK}, 1, 0
    s_cbranch_scc0 k2_nopk
    s_cmp_ge_u32 s10, 64
    s_cbranch_scc1 k2_pkh
    s_bitset1_b64 s[{sBM}:{sBM+1}], s10
    s_branch k2_nopk
    k2_pkh:
    s_bitset1_b32 s{sBM+2}, s10
    k2_nopk:
    s_mov_b64 s[68:69], s[{sNB}:{sNB+1}]
    s_sub_u32 s67, s65, s64
    s_lshl_b32 s67, s67, 2
    s_add_u32 s67, s67, 1
    s_lshl_b32 s11, s{sNG}, 2
    """)
    bm("b", 71, False)
    a(f"""
    s_cselect_b32 s{sOPEN}, s66, 0
    s_add_u32 s65, s65, s63
    s_waitcnt lgkmcnt(0)
    """)
    for i in range(4):
        a(f"v_add_u32 v{i}, v{i}, v{4+i}")
    for i in range(4):
        a(f"""
        v_and_b32 v{4+i}, 1, v{i}
        v_lshrrev_b32 v{12+i}, 1, v{i}
        v_lshlrev_b32 v{12+i}, 2, v{12+i}
        v_mad_u32_u24 v{4+i}, v{4+i}, s62, v{12+i}
        v_lshlrev_b32 v{i}, 3, v{i}
        """)
    for i in range(3):
        a(f"""
        s_mov_b64 exec, s[{sM+2*i}:{sM+2*i+1}]
        s_cbranch_execz k2_w0
        ds_write_b32 v{4+i}, v{22+4*i} offset:{L_XS}
        ds_write_b64 v{i}, v[{20+4*i}:{21+4*i}] offset:{L_YS}
        """)
    a(f"""
    k2_w0:
    s_mov_b64 exec, s[6:7]
    s_cbranch_execz k2_nopad
    v_mov_b32 v13, {hex(0x7fff | CAP << 16)}
    v_mov_b64 v[14:15], 0
    ds_write_b32 v7, v13 offset:{L_XS}
    ds_write_b64 v3, v[14:15] offset:{L_YS}
    k2_nopad:
    s_mov_b64 exec, -1
    """)
    a(f"""
    s_lshl_b32 s3, s65, 4
    s_add_u32 s3, s3, {L_XS}
    v_mov_b32 v12, s3
    v_mad_u32_u24 v{VX}, v11, s62, v12
    v_lshrrev_b32 v13, 3, v10
    v_lshl_add_u32 v12, v13, 4, v12
    v_and_b32 v13, 3, v10
    v_lshl_add_u32 v12, v13, 2, v12
    v_bfe_u32 v13, v10, 2, 1
    v_mad_u32_u24 v{VEF}, v13, s62, v12
    s_lshl_b32 s3, s65, 6
    s_add_u32 s3, s3, {L_YS}
    v_lshlrev_b32 v12, 3, v11
    v_lshl_add_u32 v12, v10, 4, v12
    v_add_u32 v{VY}, s3, v12
    v_lshlrev_b32 v12, 4, v11
    v_add_u32 v{VHB}, {L_EF}, v12
    v_lshlrev_b32 v{VJ4}, 4, v{vL}
    v_lshlrev_b32 v{VXO}, 4, v10
    """)
    for k in range(4):
        a(f"v_mov_b64 {v(ACC+2*k,2)}, 0")
    a(f"""
    v_and_or_b32 v{ZE+8}, v{VXO}, 48, s{sCG}
    s_mov_b32 s{sREM}, s{sNG}
    s_lshr_b32 s{sTH}, s{sNG}, 1
    s_mov_b32 s{sPR}, 3
    {"s_setprio 3" if "prio" in o.exp else ""}
    s_waitcnt vmcnt(0) lgkmcnt(0)
    s_barrier
    """)
    stamp(a, o, 4)
    XS = f"s[{sX}:{sX+3}]"

    def xadr(r):
        a(f"v_mad_u32_u16 v{r}, v{r}, s{s512}, v{VXO}")

    def efnext(off):
        a(f"""
        v_mad_u32_u16 v{EE}, v{VRI}, 32, v{VHB} op_sel:[1,0,0,0]
        ds_read_b128 {v(EF,4)}, v{EE}
        ds_read_b32 v{VRI}, v{VEF} offset:{off}
        """)
    a(f"""
    s_cmp_eq_u32 s{sNG}, 0
    s_cbranch_scc1 k2_done
    ds_read_b128 {v(XI,4)}, v{VX}
    ds_read_b128 {v(XI+4,4)}, v{VX} offset:16
    ds_read_b32 v{VRI}, v{VEF}
    ds_read_b64 {v(YY,2)}, v{VY}
    ds_read_b128 {v(ZE,4)}, v{ZE+8}
    ds_read_b128 {v(ZE+4,4)}, v{ZE+8} offset:64
    s_mov_b32 s{sX+2}, s{sXNR}
    s_waitcnt lgkmcnt(5)
    """)
    for k in range(4):
        xadr(XI + k)
        a(f"buffer_load_dwordx4 {v(X+4*k,4)}, v{XI+k}, {XS}, 0 offen {XF}")
    a(f"""
    s_cmp_gt_u32 s{sREM}, 1
    s_cselect_b32 s{sX+2}, s{sXNR}, 0
    s_waitcnt lgkmcnt(3)
    """)
    efnext(64)
    for k in range(4, 8):
        xadr(XI + k)
        a(f"buffer_load_dwordx4 {v(X+4*k,4)}, v{XI+k}, {XS}, 0 offen {XF}")
    a(f"ds_read_b128 {v(XI,4)}, v{VX} offset:32")

    def group_start(g):
        b = XI + 4 * (g % 2)
        nb = XI + 4 * ((g + 1) % 2)
        if "noadd" in o.exp:
            a("s_nop 3")
        else:
            for k in range(4):
                xadr(b + k)
        a(f"ds_read_b128 {v(nb,4)}, v{VX} offset:{16*(g+3)}")
        a(f"s_cmp_gt_u32 s{sREM}, 2\ns_cselect_b32 s{sX+2}, s{sXNR}, 0")

    def mf(d, ar, br, c):
        a(f"v_mfma_f32_32x32x16_bf16 {v(d,16)}, {v(ar,4)}, {v(br,4)}, {c}")

    def rprol():
        a(f"""
        v_exp_f32 v{EE}, v{ZE}
        v_exp_f32 v{EE+1}, v{ZE+1}
        v_exp_f32 v{EE+2}, v{ZO}
        v_exp_f32 v{EE+3}, v{ZO+1}
        v_pk_add_f32 {v(EE,2)}, {v(EE,2)}, s[{sONE}:{sONE+1}]
        v_pk_add_f32 {v(EE+2,2)}, {v(EE+2,2)}, s[{sONE}:{sONE+1}]
        v_rcp_f32 v{EE}, v{EE}
        v_rcp_f32 v{EE+1}, v{EE+1}
        v_rcp_f32 v{EE+2}, v{EE+2}
        v_rcp_f32 v{EE+3}, v{EE+3}
        v_pk_mul_f32 {v(ZE,2)}, {v(ZE,2)}, {v(EE,2)}
        v_pk_mul_f32 {v(ZO,2)}, {v(ZO,2)}, {v(EE+2,2)}
        """)

    a("k2_blk:")
    for t in range(32):
        g, r = t // 4, t % 16
        if t == 0:
            a("s_waitcnt lgkmcnt(0)")
            for i in range(4):
                a(f"v_mfma_f32_4x4x4_16b_bf16 {v(ZO+4*i,4)}, {v(YY,2)}, {v(ZE+2*i,2)}, 0")
            a(f"ds_read_b64 {v(YY,2)}, v{VY} offset:512")
            a(f"v_add_u32 v{VY}, 512, v{VY}")
            mf(ZE, EF, W, "0")
            for m in range(4):
                a(f"v_cvt_pk_bf16_f32 v{TA+2*m}, v{ZO+m}, v{ZO+4+m}")
            for m in range(4):
                a(f"v_cvt_pk_bf16_f32 v{TA+2*m+1}, v{ZO+8+m}, v{ZO+12+m}")
            mf(ZO, EF, W + 4, "0")
            efnext(128)
            group_start(g)
            a("s_nop 3")
            rprol()
        elif t == 16:
            a("s_waitcnt lgkmcnt(0)")
            mf(ZE, EF, W, "0")
            mf(ZO, EF, W + 4, "0")
            efnext(192)
            a(f"v_add_u32 v{VEF}, 128, v{VEF}")
            group_start(g)
            a("s_nop 2")
            rprol()
        elif t % 4 == 0:
            a("s_waitcnt lgkmcnt(0)")
            group_start(g)
            if t == 28:
                a(f"""
                v_and_or_b32 v{ZE+8}, v{VXO}, 48, s{sCG}
                ds_read_b128 {v(ZE,4)}, v{ZE+8}
                ds_read_b128 {v(ZE+4,4)}, v{ZE+8} offset:64
                """)
        k = t % 8
        xr = X + 4 * k
        ar = TA + 2 * (t % 4)
        p0 = r & ~1
        last = p0 == 14
        tr = "v_exp_f32" if r % 2 == 0 else "v_rcp_f32"

        def trn(e, z):
            if last or "notrans" in o.exp:
                return
            src = z if r % 2 == 0 else e
            a(f"{tr} v{e}, v{src}")

        def mid(e, z):
            if last:
                return
            if "v2mid" in o.exp:
                for u in range(2):
                    a(f"v_add_f32 v{e+u}, 1.0, v{e+u}" if r % 2 == 0 else f"v_mul_f32 v{z+u}, v{z+u}, v{e+u}")
            elif r % 2 == 0:
                a(f"v_pk_add_f32 {v(e,2)}, {v(e,2)}, s[{sONE}:{sONE+1}]")
            else:
                a(f"v_pk_mul_f32 {v(z,2)}, {v(z,2)}, {v(e,2)}")

        sel = "op_sel_hi:[0,1,1]" if r % 2 == 0 else "op_sel:[1,0,0] op_sel_hi:[1,1,1]"

        def fma(acc, z, tp):
            if "nofma" in o.exp:
                return
            if "v2fma" in o.exp:
                for u in range(2):
                    a(f"v_fmac_f32 v{acc+u}, v{z+r%2}, v{tp+u}")
                return
            a(f"v_pk_fma_f32 {v(acc,2)}, {v(z,2)}, {v(tp,2)}, {v(acc,2)} {sel}")

        cb = "" if "nocbsz" in o.exp else f"cbsz:3 abid:{t//4}"
        a("s_waitcnt vmcnt(7)")
        if "nomf" not in o.exp:
            a(f"v_mfma_f32_4x4x4_16b_bf16 {v(TP,4)}, {v(ar,2)}, {v(xr,2)}, 0 {cb}")
        trn(EE, ZE + p0 + 2)
        trn(EE + 1, ZE + p0 + 3)
        if "nomf" not in o.exp:
            a(f"v_mfma_f32_4x4x4_16b_bf16 {v(TP+4,4)}, {v(ar,2)}, {v(xr+2,2)}, 0 {cb}")
        if "noload" not in o.exp:
            a(f"buffer_load_dwordx4 {v(xr,4)}, v{XI+4*(g%2)+t%4}, {XS}, 0 offen {XF}")
        trn(EE + 2, ZO + p0 + 2)
        trn(EE + 3, ZO + p0 + 3)
        mid(EE, ZE + p0 + 2)
        if last:
            a("s_nop 2")
        fma(ACC, ZE + p0, TP)
        fma(ACC + 2, ZE + p0, TP + 2)
        mid(EE + 2, ZO + p0 + 2)
        fma(ACC + 4, ZO + p0, TP + 4)
        fma(ACC + 6, ZO + p0, TP + 6)
        if "nobr" in o.exp:
            a(f"k2_bk{t}:")
        else:
            a(f"s_bitcmp1_b32 s{sBM}, {t}\ns_cbranch_scc1 k2_fl{t}\nk2_bk{t}:")
        if t % 4 == 3:
            if "prio" in o.exp:
                a(f"s_sub_u32 s{sREM}, s{sREM}, 1\ns_cmp_eq_u32 s{sREM}, s{sTH}\ns_cbranch_scc1 k2_th{g}\nk2_tb{g}:")
            else:
                a(f"s_sub_u32 s{sREM}, s{sREM}, 1\ns_cmp_eq_u32 s{sREM}, 0\ns_cbranch_scc1 k2_done")
    a(f"""
    s_mov_b32 s{sBM}, s{sBM+1}
    s_mov_b32 s{sBM+1}, s{sBM+2}
    v_add_u32 v{VX}, 128, v{VX}
    s_branch k2_blk
    """)
    if "prio" in o.exp:
        for g in range(8):
            a(f"k2_th{g}:\ns_cmp_eq_u32 s{sTH}, 0\ns_cbranch_scc1 k2_done\ns_call_b64 s[{sRET}:{sRET+1}], k2_thr\ns_branch k2_tb{g}")
        a(f"""
        k2_thr:
        s_lshr_b32 s{sTH}, s{sTH}, 1
        s_sub_u32 s{sPR}, s{sPR}, 1
        s_cmp_eq_u32 s{sPR}, 2
        s_cbranch_scc1 k2_p2
        s_cmp_eq_u32 s{sPR}, 1
        s_cbranch_scc1 k2_p1x
        s_mov_b32 s{sTH}, 0
        s_setprio 0
        s_setpc_b64 s[{sRET}:{sRET+1}]
        k2_p2:
        s_setprio 2
        s_setpc_b64 s[{sRET}:{sRET+1}]
        k2_p1x:
        s_setprio 1
        s_setpc_b64 s[{sRET}:{sRET+1}]
        """)
    for t in range(32):
        a(f"k2_fl{t}:\ns_call_b64 s[{sRET}:{sRET+1}], k2_flush\ns_branch k2_bk{t}")
    def node_addr(sn):
        a(f"""
        s_lshl_b32 s58, s{sn}, 10
        s_and_b32 s59, s{sn}, 7
        s_lshl_b32 s59, s59, 4
        s_or_b32 s58, s58, s59
        s_lshl_b32 s59, s{sn}, 2
        v_xor_b32 v{TP}, s58, v{VJ4}
        """)

    def reduce_acc(dst):
        for q in range(4):
            a(f"v_permlane32_swap_b32 v{ACC+q}, v{ACC+4+q}")
        a(f"""
        v_pk_add_f32 {v(dst,2)}, {v(ACC,2)}, {v(ACC+4,2)}
        v_pk_add_f32 {v(dst+2,2)}, {v(ACC+2,2)}, {v(ACC+6,2)}
        v_mov_b64 {v(ACC+4,2)}, 0
        v_mov_b64 {v(ACC+6,2)}, 0
        """)

    def rmw(src):
        a(f"""
        v_pk_add_f32 {v(TP+4,2)}, {v(TP+4,2)}, {v(src,2)}
        v_pk_add_f32 {v(TP+6,2)}, {v(TP+6,2)}, {v(src+2,2)}
        v_mov_b64 {v(src,2)}, 0
        v_mov_b64 {v(src+2,2)}, 0
        ds_write_b128 v{TP}, {v(TP+4,4)} offset:{L_AGG}
        """)
    RET = f"s_setpc_b64 s[{sRET}:{sRET+1}]"
    SPIN = ""
    if o.spin:
        SPIN = f"""s_add_u32 s94, s94, 1
        s_cmp_lt_u32 s94, {o.spin}
        s_cbranch_scc1 k2_flw
        s_waitcnt lgkmcnt(0)
        v_mov_b32 v{TP+2}, 1"""
    a(f"""
    k2_flush:
    s_cmp_eq_u32 s{sEA}, 0
    s_cbranch_scc1 k2_flb
    s_sub_u32 s{sEA}, s{sEA}, 1
    s_ff1_i32_b64 s{sCUR}, s[{sNM}:{sNM+1}]
    s_bitset0_b64 s[{sNM}:{sNM+1}], s{sCUR}
    """)
    node_addr(sCUR)
    a(f"ds_read_b128 {v(TP+4,4)}, v{TP} offset:{L_AGG}")
    reduce_acc(ACC)
    a(f"v_mov_b32 v{TP+1}, s59\ns_waitcnt lgkmcnt(0)")
    rmw(ACC)
    a(f"""
    s_mov_b64 exec, 1
    ds_write_b32 v{TP+1}, v{VX} offset:{L_FLAG}
    s_mov_b64 exec, -1
    {RET}
    k2_flb:
    s_cmp_eq_u32 s{sPK}, 0
    s_cbranch_scc1 k2_flb2
    s_mov_b32 s{sPK}, 0
    """)
    reduce_acc(PARK)
    a(f"""
    v_mov_b64 {v(ACC,2)}, 0
    v_mov_b64 {v(ACC+2,2)}, 0
    {RET}
    k2_flb2:
    s_ff1_i32_b64 s{sCUR}, s[{sNB}:{sNB+1}]
    s_bitset0_b64 s[{sNB}:{sNB+1}], s{sCUR}
    """)
    node_addr(sCUR)
    a(f"""
    v_mov_b32 v{TP+1}, s59
    ds_read_b32 v{TP+2}, v{TP+1} offset:{L_FLAG}
    ds_read_b128 {v(TP+4,4)}, v{TP} offset:{L_AGG}
    """)
    reduce_acc(ACC)
    a(f"""
    k2_flw:
    s_waitcnt lgkmcnt(0)
    v_cmp_eq_u32 vcc, 0, v{TP+2}
    s_cbranch_vccnz k2_flr
    """)
    rmw(ACC)
    a(f"""
    {RET}
    k2_flr:
    ds_read_b32 v{TP+2}, v{TP+1} offset:{L_FLAG}
    ds_read_b128 {v(TP+4,4)}, v{TP} offset:{L_AGG}
    {SPIN}
    s_branch k2_flw
    k2_opena:
    s_cmp_lt_i32 s{sOPA}, 0
    s_cbranch_scc1 k2_openret
    """)
    node_addr(sOPA)
    a(f"""
    s_cmp_eq_u32 s{sSLOW}, 0
    s_cbranch_scc0 k2_opas
    ds_read_b128 {v(TP+4,4)}, v{TP} offset:{L_AGG}
    s_waitcnt lgkmcnt(0)
    """)
    rmw(PARK)
    a(f"{RET}\nk2_opas:")
    for q in range(4):
        a(f"ds_add_f32 v{TP}, v{PARK+q} offset:{L_AGG+4*q}")
    a(f"""
    {RET}
    k2_open:
    s_cmp_eq_u32 s{sOPEN}, 0
    s_cbranch_scc1 k2_openret
    s_cmp_eq_u64 s[{sNB}:{sNB+1}], 0
    s_cbranch_scc1 k2_openret
    s_cmp_eq_u32 s{sSLOW}, 0
    s_cbranch_scc1 k2_flb2
    s_ff1_i32_b64 s{sCUR}, s[{sNB}:{sNB+1}]
    """)
    node_addr(sCUR)
    reduce_acc(ACC)
    for q in range(4):
        a(f"ds_add_f32 v{TP}, v{ACC+q} offset:{L_AGG+4*q}")
    a(f"""
    k2_openret:
    {RET}
    """)
    a(f"""
    k2_done:
    s_waitcnt vmcnt(0)
    s_add_u32 s{sW0}, s{sW0}, {CAP}
    v_and_b32 v{vL}, 63, v{VTID}
    s_cmp_lt_u32 s{sW0}, s{sTOT}
    s_cbranch_scc0 k2_last
    s_waitcnt lgkmcnt(0)
    s_barrier
    s_call_b64 s[{sRET}:{sRET+1}], k2_opena
    s_waitcnt lgkmcnt(0)
    s_barrier
    s_call_b64 s[{sRET}:{sRET+1}], k2_open
    s_waitcnt lgkmcnt(0)
    s_barrier
    v_lshlrev_b32 v1, 4, v{VTID}
    v_mov_b64 v[8:9], 0
    v_mov_b64 v[10:11], 0
    ds_write_b128 v1, v[8:11] offset:{L_XS}
    s_cmp_ge_u32 s{sWAVE}, 4
    s_cbranch_scc1 k2_p1
    v_lshlrev_b32 v2, 10, v{VTID}
    buffer_load_dword v4, v2, s[{sTB}:{sTB+3}], s{sB4} offen
    v_lshlrev_b32 v1, 2, v{VTID}
    v_add_u32 v1, {L_TT}, v1
    s_waitcnt vmcnt(0)
    ds_write_b32 v1, v4
    s_branch k2_p1
    k2_last:
    """)
    stamp(a, o, 5)
    a(f"""
    s_cmp_ge_u32 s{sWAVE}, 5
    s_cbranch_scc1 k2_nowm
    v_lshlrev_b32 v64, 4, v{vL}
    s_mov_b32 s58, {TB_WM}
    s_mov_b32 s59, {TB_WM+4096}
    """)
    for q in range(8):
        a(f"buffer_load_dwordx4 {v(4*q,4)}, v64, s[{sTB}:{sTB+3}], s{58+q//4} offen offset:{1024*(q%4)}")
    a(f"""
    k2_nowm:
    v_and_b32 v64, 31, v{vL}
    v_lshrrev_b32 v65, 5, v{vL}
    v_lshrrev_b32 v66, 2, v64
    v_mul_u32_u24 v66, 1040, v66
    v_lshl_add_u32 v66, v65, 7, v66
    v_and_b32 v67, 3, v64
    v_lshl_add_u32 v66, v67, 2, v66
    s_lshl_b32 s3, s{sWAVE}, 13
    v_add_u32 v113, s3, v66
    v_lshlrev_b32 v64, 4, v64
    v_lshl_add_u32 v112, v65, 9, v64
    """)
    for i in range(1, 8):
        a(f"v_xor_b32 v{113+i}, {16*i}, v113")
    a(f"""
    s_lshl_b32 s3, s{sWAVE}, 12
    s_mov_b32 s10, 0xbf317218
    s_mov_b32 s11, 0xbf317218
    s_waitcnt lgkmcnt(0)
    s_barrier
    """)
    stamp(a, o, 6)
    a(f"""
    s_call_b64 s[{sRET}:{sRET+1}], k2_opena
    s_waitcnt lgkmcnt(0)
    s_barrier
    s_call_b64 s[{sRET}:{sRET+1}], k2_open
    s_waitcnt lgkmcnt(0)
    s_barrier
    s_cmp_ge_u32 s{sWAVE}, 5
    s_cbranch_scc1 {"k2_tm" if o.timing else "k2_end"}
    """)
    for i in range(8):
        for u in range(2):
            a(f"ds_read2st64_b32 {v(32+4*i+2*u,2)}, v{113+i} offset0:{2*u} offset1:{2*u+1}")
    for k in range(4):
        a(f"s_waitcnt lgkmcnt({12-4*k})")
        for r in range(32 + 8 * k, 40 + 8 * k, 2):
            a(f"v_pk_mul_f32 {v(r,2)}, {v(r,2)}, s[10:11]")
        for sx in range(4):
            a(f"v_cvt_pk_bf16_f32 v{64+4*sx+k}, v{32+8*k+sx}, v{36+8*k+sx}")
    a("s_waitcnt vmcnt(0)\ns_nop 0")
    for sx in range(4):
        mf(80, 64 + 4 * sx, 8 * sx, "0" if sx == 0 else v(80, 16))
        mf(96, 64 + 4 * sx, 8 * sx + 4, "0" if sx == 0 else v(96, 16))
    a("s_nop 10")
    for rq in range(4):
        b = 32 + 4 * rq
        a(f"""
        v_cvt_pk_bf16_f32 v{b}, v{80+4*rq}, v{81+4*rq}
        v_cvt_pk_bf16_f32 v{b+1}, v{82+4*rq}, v{83+4*rq}
        v_cvt_pk_bf16_f32 v{b+2}, v{96+4*rq}, v{97+4*rq}
        v_cvt_pk_bf16_f32 v{b+3}, v{98+4*rq}, v{99+4*rq}
        buffer_store_dwordx4 {v(b,4)}, v112, s[{sOUT}:{sOUT+3}], s3 offen offset:{1024*rq} {o.outst}
        """)
    if o.timing:
        a("k2_tm:\ns_waitcnt vmcnt(0)")
        stamp(a, o, 7)
        a(f"s_mov_b64 exec, 1")
        stamp_store(a, o, 1, 8, 8, sWAVE)
    a("k2_end:\ns_endpgm")
    return a.text()


def desc(name, vg, sg):
    return f""".p2align 6
.amdhsa_kernel {name}
  .amdhsa_next_free_vgpr {vg}
  .amdhsa_next_free_sgpr {sg}
  .amdhsa_accum_offset {(vg+3)//4*4}
  .amdhsa_group_segment_fixed_size 0
  .amdhsa_kernarg_size 88
  .amdhsa_user_sgpr_count 2
  .amdhsa_user_sgpr_kernarg_segment_ptr 1
  .amdhsa_system_sgpr_workgroup_id_x 1
.end_amdhsa_kernel
"""


def main():
    p = argparse.ArgumentParser()
    p.add_argument("-o", default="cdna_kernels/" + NAME + ".s")
    p.add_argument("--timing", action="store_true")
    p.add_argument("--k1ld", default="nt")
    p.add_argument("--k1st", default="sc1")
    p.add_argument("--k2ld", default="")
    p.add_argument("--xld", default="")
    p.add_argument("--outst", default="sc1")
    p.add_argument("--exp", default="prio")
    p.add_argument("--spin", type=int, default=0)
    p.add_argument("--k1n", type=int, default=2)
    p.add_argument("--k2n", type=int, default=2)
    o = p.parse_args()
    o.exp = set(o.exp.split(","))
    K1 = "tfn_partition_kernel"
    K2 = NAME + "_kernel"
    t = f"""; TFN tensor-product message passing: launch 1 groups edge payloads by destination bucket,
; @launch kernel={K1} grid=({G},1,1) block=(1024,1,1) lds={L1_SZ}
; @launch kernel={K2} grid=({G},1,1) block=(1024,1,1) lds={L_SZ}
.amdgcn_target "amdgcn-amd-amdhsa--gfx950"
.text
.globl {K1}
.p2align 8
.type {K1},@function
{K1}:
{k1(o)}
.globl {K2}
.p2align 8
.type {K2},@function
{K2}:
{k2(o)}
.section .rodata,"a"
{desc(K1, 104, 96)}{desc(K2, 128, 96)}"""
    open(o.o, "w").write(t)


main()
```

```python
import sys, argparse

NAME = "gather_scatter__tensor_product_equiv_tfn__graph"
E, N = 640000, 10000
G, CH = 256, 2500
BMUL = 26843
WS_EF = 0
WS_YI = E * 32
WS_TB = WS_YI + E * 12
TB_WM = 262144
TB_MB = TB_WM + 8192
TB_SZ = TB_MB + 65536
WS_TM = WS_TB + 524288
HALF = 5000
L1_HIST, L1_ST, L1_INV, L1_YI = 0, 1024, 2048, 7168
L1_RAW = 81920
LDS_SZ = 163840
CAP, C = 2720, 2816
SEG = 170
L_AGG = 0
L_XS = 40960
XHALF = C // 2 * 4
L_CNT = L_XS + C * 4
L_FLAG = L_CNT + 256
L_SH = L_FLAG + 256
L_YS = L_SH + C // 8 * 2
L_CG = L_YS + C * 8
L_EF = L_CG + 128
L_SZ = L_EF + (CAP + 1) * 32
L_TT = L_EF
assert L_SZ <= 163840 and L_CG % 64 == 0 and XHALF % 16 == 0 and L_YS % 16 == 0 and L_EF % 16 == 0
assert L_CG >= 65536 and SEG * 16 == CAP


class A:
    def __init__(s):
        s.l = []

    def __call__(s, t):
        for x in t.strip("\n").split("\n"):
            x = x.strip()
            if x:
                s.l.append(x if x.endswith(":") else "    " + x)

    def text(s):
        return "\n".join(s.l) + "\n"


def v(a, n=1):
    return f"v{a}" if n == 1 else f"v[{a}:{a+n-1}]"


def s(a, n=1):
    return f"s{a}" if n == 1 else f"s[{a}:{a+n-1}]"


def srd(a, r, ptr, off, nr):
    if off is None:
        a(f"s_mov_b32 s{r}, s{ptr}\ns_mov_b32 s{r+1}, s{ptr+1}")
    else:
        a(f"s_add_u32 s{r}, s{ptr}, {off}\ns_addc_u32 s{r+1}, s{ptr+1}, 0")
    a(f"s_mov_b32 s{r+2}, {nr}\ns_mov_b32 s{r+3}, 0x20000")


DPPS = ["row_shr:1 row_mask:0xf bank_mask:0xf bound_ctrl:1",
        "row_shr:2 row_mask:0xf bank_mask:0xf bound_ctrl:1",
        "row_shr:4 row_mask:0xf bank_mask:0xf bound_ctrl:1",
        "row_shr:8 row_mask:0xf bank_mask:0xf bound_ctrl:1",
        "row_bcast:15 row_mask:0xa bank_mask:0xf",
        "row_bcast:31 row_mask:0xc bank_mask:0xf"]


def scan(a, op, regs):
    for d in DPPS:
        for r in regs:
            a(f"{op}_dpp v{r}, v{r}, v{r} {d}")
        if len(regs) < 3:
            a(f"s_nop {2 - len(regs)}")


def stamp(a, o, i):
    if o.timing:
        a(f"{'s_memtime' if 'clk' in o.exp else 's_memrealtime'} s[{72+2*i}:{73+2*i}]")


def stamp_store(a, o, kern, n, ptr, sw, reg=lambda i: 72 + 2 * i):
    if not o.timing:
        return
    a(f"""
    s_waitcnt lgkmcnt(0)
    s_lshl_b32 s3, s2, 4
    s_add_u32 s3, s3, s{sw}
    s_lshl_b32 s3, s3, 6
    s_add_u32 s3, s3, {WS_TM + kern*262144}
    """)
    srd(a, 68, ptr, "s3", 64)
    a("s_nop 4\nv_mov_b32 v0, 0")
    for i in range(n):
        a(f"v_mov_b32 v1, s{reg(i)}\nbuffer_store_dword v1, v0, s[68:71], 0 offen offset:{4*i}\ns_nop 1")


X, ZE, ZO, TA, TP, ACC, EE, W, EF, YY, XI = 0, 32, 48, 64, 72, 80, 88, 92, 108, 112, 114
PARK, VRI, VHB = 100, 104, 105
VXO, VX, VY, VEF, VJ4, VTID = 122, 123, 124, 125, 126, 127
sX, sEF, sYI, sTB, sOUT = 12, 16, 20, 24, 28
sWAVE, sB4, sN0, sW0, sTOT, sLIM, sP = 32, 33, 34, 35, 36, 37, 38
sNG = 39
sONE, sXNR, sREM, sBM, sNM, sCUR, sCG = 40, 42, 43, 44, 48, 50, 51
sM = 52
sRET = 60
sSLOW, sOPEN = 47, 70
sTH, sPR = 71, 11
sNB, sEA, sOPA, sPK, s512 = 88, 90, 91, 92, 93
sDP, sSPIN, sSIG = 94, 101, 94


def bcast(a, word, tag):
    a(f"""
    v_readfirstlane_b32 s3, v64
    s_cmp_lg_u32 s3, {G-1}
    s_cbranch_scc1 {tag}
    v_and_b32 v65, 63, v{VTID}
    v_mov_b32 v66, 1
    v_lshlrev_b32 v65, 8, v65
    s_mov_b32 s3, {TB_MB + word}
    """)
    for i in range(4):
        a(f"buffer_store_dword v66, v65, s[{sTB}:{sTB+3}], s3 offen sc1")
        if i < 3:
            a("s_add_u32 s3, s3, 16384")
    a(f"{tag}:")


def poll(a, o, word, tag):
    a(f"""
    s_lshl_b32 s3, s2, 8
    s_add_u32 s3, s3, {TB_MB + word}
    s_mov_b64 exec, 1
    {tag}:
    buffer_load_dword v64, off, s[{sTB}:{sTB+3}], s3 sc1
    s_add_u32 s{sSPIN}, s{sSPIN}, 1
    s_waitcnt vmcnt(0)
    v_readfirstlane_b32 s10, v64
    s_cmp_eq_u32 s10, 1
    s_cbranch_scc1 {tag}d
    s_cmp_ge_u32 s{sSPIN}, {o.pmax}
    s_cbranch_scc1 {tag}d
    s_sleep {o.psl}
    s_branch {tag}
    {tag}d:
    s_mov_b64 exec, -1
    """)


def k1(a, o):
    LD = o.k1ld
    ST = o.k1st
    a(f"""
    s_cmp_ge_u32 s2, {G}
    s_cbranch_scc1 k2_end
    """)
    stamp(a, o, 0)
    a(f"""
    s_load_dwordx4 s[4:7], s[0:1], 8
    s_load_dwordx4 s[8:11], s[0:1], 24
    s_load_dwordx4 s[12:15], s[0:1], 40
    s_load_dwordx2 s[16:17], s[0:1], 56
    s_load_dwordx2 s[18:19], s[0:1], 80
    s_load_dwordx2 s[68:69], s[0:1], 0
    s_load_dwordx2 s[70:71], s[0:1], 64
    s_load_dwordx2 s[{sDP}:{sDP+1}], s[0:1], 72
    v_lshlrev_b32 v1, 2, v0
    v_lshlrev_b32 v2, 3, v0
    v_lshlrev_b32 v3, 4, v0
    v_and_b32 v46, 0x3fc, v1
    v_mov_b64 v[48:49], 0
    v_mov_b64 v[50:51], 0
    v_lshrrev_b32 v62, 6, v0
    v_and_b32 v63, 63, v0
    ds_write_b32 v46, v48 offset:{L1_HIST}
    ds_write_b128 v3, v[48:51] offset:{L_XS}
    v_readfirstlane_b32 s62, v62
    v_cmp_gt_u32 vcc, {CH - 2048}, v0
    v_mov_b32 v{VTID}, v0
    s_movk_i32 s52, 4096
    s_movk_i32 s53, 8192
    s_movk_i32 s54, 16384
    s_movk_i32 s55, 15360
    s_movk_i32 s56, 30720
    s_mov_b32 s57, 46080
    s_mov_b32 s64, 61440
    s_mov_b32 s65, 76800
    s_mov_b64 s[60:61], vcc
    s_mul_i32 s3, s2, {CH*4}
    s_mul_i32 s58, s2, {CH*8}
    s_mul_i32 s59, s2, {CH*32}
    s_mov_b32 s{sSPIN}, 0
    s_waitcnt lgkmcnt(0)
    """)
    srd(a, 24, 6, "s3", CH * 4)
    srd(a, 44, 18, WS_TB, TB_SZ)
    a(f"""
    s_cmp_lg_u32 s62, 15
    s_cbranch_scc1 k1_nc0
    s_lshl_b32 s63, s2, 8
    s_add_u32 s63, s63, {TB_MB}
    v_lshlrev_b32 v47, 7, v63
    s_mov_b64 exec, 3
    buffer_store_dword v48, v47, s[44:47], s63 offen sc1
    s_mov_b64 exec, -1
    k1_nc0:
    """)
    so4 = ["0", "s52", "s53"]
    so8 = ["0", "s53", "s54"]
    so15 = ["0", "s55", "s56", "s57", "s64", "s65"]
    for i in range(3):
        a(f"buffer_load_dword v{4+i}, v1, s[24:27], {so4[i]} offen {LD}")
    srd(a, 20, 4, "s3", CH * 4)
    srd(a, 28, 8, "s58", CH * 8)
    for i in range(3):
        a(f"buffer_load_dword v{7+i}, v1, s[20:23], {so4[i]} offen {LD}")
    for i in range(3):
        a(f"buffer_load_dwordx2 v[{10+2*i}:{11+2*i}], v2, s[28:31], {so8[i]} offen {LD}")
    srd(a, 32, 10, "s59", CH * 32)

    def ld_ef(j):
        if j == 5:
            a(f"s_cmp_lt_u32 s62, 4\ns_cselect_b32 m0, m0, {L_YS+4096}\ns_nop 0")
        a(f"buffer_load_dwordx4 v3, s[32:35], {so15[j]} offen {LD} lds")
        if j < 5:
            a("s_add_u32 m0, m0, s63\ns_nop 0")
    a(f"s_add_u32 s59, s59, {WS_EF}")
    srd(a, 36, 18, "s59", CH * 32)
    a(f"s_mul_i32 s58, s2, {CH*12}\ns_add_u32 s58, s58, {WS_YI}")
    srd(a, 40, 18, "s58", CH * 12)
    n1 = o.k1n
    a(f"""
    s_lshl_b32 s3, s62, 10
    s_add_u32 s3, s3, {L1_RAW}
    s_cmp_eq_u32 s62, 15
    s_cselect_b32 m0, {L_YS+4096}, s3
    s_cselect_b32 s63, 0, s55
    s_cselect_b32 s34, 0, s34
    s_lshl_b32 s66, s2, 10
    s_mov_b32 s67, {L1_YI}
    v_mov_b32 v47, 1
    v_lshlrev_b32 v61, 4, v63
    v_mov_b32 v60, {1<<28}
    s_movk_i32 s10, {HALF}
    s_barrier
    """)
    for j in range(n1):
        ld_ef(j)
    a(f"s_waitcnt vmcnt({6+n1})")
    stamp(a, o, 1)
    for i in range(3):
        a(f"v_mul_u32_u24 v{16+i}, {BMUL}, v{4+i}")
    for i in range(3):
        a(f"v_lshrrev_b32 v{16+i}, 20, v{16+i}")
    for i in range(3):
        a(f"v_lshlrev_b32 v{40+i}, 2, v{16+i}")
    a(f"""
    ds_add_rtn_u32 v43, v40, v47 offset:{L1_HIST}
    ds_add_rtn_u32 v44, v41, v47 offset:{L1_HIST}
    s_mov_b64 exec, s[60:61]
    s_cbranch_execz k1_a
    ds_add_rtn_u32 v45, v42, v47 offset:{L1_HIST}
    k1_a:
    s_mov_b64 exec, -1
    """)
    for j in range(n1, 6):
        ld_ef(j)
    for i in range(3):
        a(f"v_mul_u32_u24 v{16+i}, 320007, v{16+i}")
    for i in range(3):
        a(f"v_add_u32 v{16+i}, 8160, v{16+i}")
    for i in range(3):
        a(f"v_lshrrev_b32 v{16+i}, 13, v{16+i}")
    for i in range(3):
        a(f"v_sub_u32 v{4+i}, v{4+i}, v{16+i}")
    for i in range(3):
        a(f"v_lshlrev_b32 v{4+i}, 18, v{4+i}")
    a(f"""
    s_waitcnt lgkmcnt(0)
    s_barrier
    ds_read_b128 v[48:51], v61 offset:{L1_HIST}
    s_waitcnt vmcnt(9)
    """)
    for i in range(3):
        a(f"v_cmp_le_u32 s[{4+2*i}:{5+2*i}], s10, v{7+i}")
    for i in range(3):
        a(f"v_cndmask_b32 v{16+i}, 0, v60, s[{4+2*i}:{5+2*i}]")
    for i in range(3):
        a(f"v_or3_b32 v{7+i}, v{7+i}, v{4+i}, v{16+i}")
    a(f"""
    s_waitcnt lgkmcnt(0)
    v_add_u32 v54, v48, v49
    v_add_u32 v55, v54, v50
    v_add_u32 v56, v55, v51
    v_mov_b32 v57, v56
    s_nop 1
    """)
    scan(a, "v_add_u32", [57])
    a(f"""
    v_sub_u32 v52, v57, v56
    v_add_u32 v53, v52, v48
    v_add_u32 v54, v52, v54
    v_add_u32 v55, v52, v55
    ds_write_b128 v61, v[52:55] offset:{L1_ST}
    ds_read_b32 v56, v40 offset:{L1_ST}
    ds_read_b32 v57, v41 offset:{L1_ST}
    ds_read_b32 v58, v42 offset:{L1_ST}
    v_lshl_or_b32 v48, v48, 16, v52
    v_lshl_or_b32 v49, v49, 16, v53
    v_lshl_or_b32 v50, v50, 16, v54
    v_lshl_or_b32 v51, v51, 16, v55
    s_cmp_lg_u32 s62, 15
    s_cbranch_scc1 k1_c
    buffer_store_dwordx4 v[48:51], v61, s[44:47], s66 offen sc1
    k1_c:
    v_add_u32 v17, 1024, v0
    v_add_u32 v18, 2048, v0
    s_waitcnt lgkmcnt(0)
    """)
    for i in range(3):
        a(f"v_add_u32 v{43+i}, v{43+i}, v{56+i}")
    for i in range(3):
        a(f"v_mad_u32_u24 v{40+i}, v{43+i}, 12, s67")
        a(f"v_lshlrev_b32 v{43+i}, 1, v{43+i}")
    stamp(a, o, 2)
    a(f"""
    ds_write_b16 v43, v0 offset:{L1_INV}
    ds_write_b16 v44, v17 offset:{L1_INV}
    s_cmp_eq_u32 s62, 15
    s_cbranch_scc1 k1_y15
    s_waitcnt vmcnt(6)
    k1_y15:
    s_waitcnt vmcnt(7)
    """)
    for i in range(2):
        a(f"ds_write2_b32 v{40+i}, v{10+2*i}, v{11+2*i} offset0:0 offset1:1")
        a(f"ds_write_b32 v{40+i}, v{7+i} offset:8")
    a(f"""
    s_mov_b64 exec, s[60:61]
    s_cbranch_execz k1_b
    ds_write_b16 v45, v18 offset:{L1_INV}
    ds_write2_b32 v42, v14, v15 offset0:0 offset1:1
    ds_write_b32 v42, v9 offset:8
    k1_b:
    s_mov_b64 exec, -1
    v_and_b32 v1, -2, v0
    v_and_b32 v2, 1, v0
    v_lshlrev_b32 v2, 4, v2
    v_add_u32 v2, {L1_RAW}, v2
    v_and_b32 v64, 31, v63
    v_lshrrev_b32 v65, 5, v63
    v_lshlrev_b32 v64, 2, v64
    v_lshl_add_u32 v4, v65, 10, v64
    """)
    srd(a, 28, 12, None, 2048)
    a(f"""
    s_waitcnt lgkmcnt(0)
    s_barrier
    ds_read_b128 v[24:27], v3 offset:{L1_YI}
    ds_read_b128 v[28:31], v3 offset:{L1_YI+16384}
    """)
    for j in range(6):
        a(f"ds_read_u16 v{32+j}, v1 offset:{L1_INV+960*j}")
    for i in range(0 if "now" in o.exp else 8):
        a(f"buffer_load_dword v{104+i}, v4, s[28:31], 0 offen offset:{128*i}")
    a(f"""
    s_cmp_lt_u32 s2, 4
    s_cselect_b32 s63, s2, 6
    s_cmp_eq_u32 s62, 13
    s_cselect_b32 s63, s63, 6
    s_cmp_eq_u32 s62, 12
    s_cselect_b32 s63, 5, s63
    s_cbranch_scc1 k1_ldcg
    s_cmp_ge_u32 s63, 4
    s_cbranch_scc1 k1_noimg0
    """)
    srd(a, 48, 16, None, 8192)
    a(f"""
    v_lshl_add_u32 v64, v65, 11, v64
    s_and_b32 s4, s63, 1
    s_lshl_b32 s4, s4, 12
    s_lshr_b32 s5, s63, 1
    s_lshl_b32 s5, s5, 7
    s_add_u32 s4, s4, s5
    """)
    for i in range(8):
        a(f"buffer_load_dword v{66+i}, v64, s[48:51], s4 offen offset:{256*i}")
    a("s_branch k1_noimg0\nk1_ldcg:")
    srd(a, 48, 14, None, 128)
    a("v_and_b32 v64, 3, v63\nv_lshlrev_b32 v64, 1, v64")
    for i in range(16):
        a(f"buffer_load_ushort v{66+i}, v64, s[48:51], 0 offen offset:{8*i}")
    a(f"""
    k1_noimg0:
    s_waitcnt lgkmcnt(7)
    buffer_store_dwordx4 v[24:27], v3, s[40:43], 0 offen {ST}
    s_waitcnt lgkmcnt(6)
    buffer_store_dwordx4 v[28:31], v3, s[40:43], s54 offen {ST}
    """)
    srd(a, sTB, 18, WS_TB, TB_SZ)
    srd(a, 48, sDP, None, 256)
    a(f"s_mov_b32 s{sSIG}, 0")
    a(f"""
    s_cmp_lg_u32 s62, 15
    s_cbranch_scc1 k1_wk
    {"s_waitcnt lgkmcnt(0)" if "s1late" in o.exp else ""}
    {"s_barrier" if "s1late" in o.exp else ""}
    s_waitcnt vmcnt({2 if "now" in o.exp else 10})
    v_mov_b32 v64, 1
    s_mov_b64 exec, 1
    buffer_atomic_add v64, off, s[48:51], 0 sc0 sc1
    s_mov_b64 exec, -1
    s_waitcnt lgkmcnt(0)
    {"" if "s1late" in o.exp else "s_barrier"}
    """)
    stamp(a, o, 3)
    a("s_waitcnt vmcnt(0)")
    bcast(a, 0, "k1_nb1")
    a("s_branch k1_arr\nk1_wk:\ns_waitcnt lgkmcnt(0)")
    for j in range(6):
        a(f"v_lshl_add_u32 v{32+j}, v{32+j}, 5, v2")
    a("s_waitcnt vmcnt(2)\ns_barrier")
    stamp(a, o, 3)
    for j in range(5):
        a(f"ds_read_b128 v[{4+4*j}:{7+4*j}], v{32+j}")
    a(f"""
    s_cmp_lt_u32 s62, 4
    s_cbranch_scc0 k1_n6
    ds_read_b128 v[52:55], v37
    s_waitcnt lgkmcnt(0)
    buffer_store_dwordx4 v[52:55], v3, s[36:39], {so15[5]} offen {ST}
    k1_n6:
    """)
    for j in range(5):
        a(f"s_waitcnt lgkmcnt({4-j})")
        a(f"buffer_store_dwordx4 v[{4+4*j}:{7+4*j}], v3, s[36:39], {so15[j]} offen {ST}")
    a(f"""
    s_cmp_ge_u32 s63, 6
    s_cbranch_scc1 k1_arr
    s_cmp_eq_u32 s63, 5
    s_cbranch_scc1 k1_cg
    s_mov_b32 s4, 0x05040100
    s_mov_b32 s5, 0x07060302
    s_lshl_b32 s58, s63, 11
    s_add_u32 s58, s58, {TB_WM}
    """)
    for k in range(4):
        a(f"v_perm_b32 v{84+k}, v{67+2*k}, v{66+2*k}, s4")
        a(f"v_perm_b32 v{88+k}, v{67+2*k}, v{66+2*k}, s5")
    a(f"""
    buffer_store_dwordx4 v[84:87], v61, s[44:47], s58 offen sc1
    buffer_store_dwordx4 v[88:91], v61, s[44:47], s58 offen offset:1024 sc1
    s_branch k1_arr
    k1_cg:
    """)
    for k in range(8):
        a(f"v_lshl_or_b32 v{84+k}, v{67+2*k}, 16, v{66+2*k}")
    a(f"""
    v_add_u32 v64, {L_CG}, v61
    s_mov_b64 exec, 15
    ds_write_b128 v64, v[84:87]
    ds_write_b128 v64, v[88:91] offset:64
    s_mov_b64 exec, -1
    k1_arr:
    s_mov_b32 s4, 0xbfb8aa3b
    s_mov_b32 s5, 0xffff0000
    v_mov_b64 v[40:41], 0
    v_mov_b64 v[42:43], 0
    v_mov_b32 v44, {L_EF + CAP*32}
    ds_write_b128 v3, v[40:43] offset:{L_AGG}
    ds_write_b128 v3, v[40:43] offset:{L_AGG+16384}
    s_cmp_ge_u32 s62, 8
    s_cbranch_scc1 k1_z
    ds_write_b128 v3, v[40:43] offset:{L_AGG+32768}
    k1_z:
    s_mov_b64 exec, 1
    ds_write_b128 v44, v[40:43]
    ds_write_b128 v44, v[40:43] offset:16
    s_mov_b64 exec, -1
    """)
    for par in range(2):
        for k in range(4):
            for u in range(2):
                if par == 0:
                    a(f"v_lshlrev_b32 v{76+u}, 16, v{104+2*k+u}")
                else:
                    a(f"v_and_b32 v{76+u}, s5, v{104+2*k+u}")
            a(f"""
            v_mul_f32 v76, s4, v76
            v_mul_f32 v77, s4, v77
            v_cvt_pk_bf16_f32 v{W+4*par+k}, v76, v77
            """)


def k2(a, o):
    LD = o.k2ld
    XF = o.xld
    vL = VXO
    a(f"""
    v_and_b32 v{vL}, 63, v0
    s_mov_b32 s{sWAVE}, s62
    s_and_b32 s3, s2, 7
    s_lshl_b32 s3, s3, 5
    s_lshr_b32 s10, s2, 3
    s_or_b32 s3, s3, s10
    s_lshl_b32 s{sB4}, s3, 2
    s_mul_i32 s{sN0}, s3, 320007
    s_add_u32 s10, s{sN0}, {320007+8160}
    s_add_u32 s{sN0}, s{sN0}, 8160
    s_lshr_b32 s{sN0}, s{sN0}, 13
    s_lshr_b32 s10, s10, 13
    s_min_u32 s10, s10, {N}
    s_sub_u32 s10, s10, s{sN0}
    s_lshl_b32 s10, s10, 9
    s_lshl_b32 s11, s{sN0}, 9
    s_mov_b32 s{sW0}, 0
    s_mov_b32 s{sONE}, 1.0
    s_mov_b32 s{sONE+1}, 1.0
    s_mov_b32 s{sXNR}, {0 if "nox" in o.exp else N*512}
    s_movk_i32 s{s512}, 512
    s_mov_b64 s[8:9], s[18:19]
    """)
    srd(a, sX, 68, None, N * 512)
    srd(a, sOUT, 70, "s11", "s10")
    srd(a, sYI, 8, WS_YI, E * 12)
    srd(a, sEF, 8, WS_EF, E * 32)
    a(f"""
    v_mov_b32 v64, 1
    v_mov_b32 v65, {L_FLAG}
    s_waitcnt vmcnt(0)
    """)
    stamp(a, o, 4)
    a(f"""
    s_mov_b64 exec, 1
    ds_add_rtn_u32 v65, v65, v64
    s_waitcnt lgkmcnt(0)
    v_readfirstlane_b32 s3, v65
    s_cmp_lg_u32 s3, 15
    s_cbranch_scc1 k2_nsig
    buffer_atomic_add v64, off, s[48:51], 0 offset:128 sc0 sc1
    s_mov_b32 s{sSIG}, 1
    k2_nsig:
    s_mov_b64 exec, -1
    s_mov_b32 s{sCG}, {L_CG}
    """)
    if o.timing:
        for i in range(5):
            a(f"s_mov_b32 s{96+i}, s{72+2*i}")
    a(f"""
    s_cmp_lg_u32 s{sWAVE}, 15
    s_cbranch_scc1 k2_p1
    s_cmp_eq_u32 s{sSIG}, 0
    s_cbranch_scc1 k2_nb0
    s_waitcnt vmcnt(0)
    s_mov_b32 s{sSIG}, 0
    """)
    bcast(a, 128, "k2_nb0")
    poll(a, o, 0, "k2_pl1")
    a(f"""
    k2_tg:
    v_lshlrev_b32 v2, 10, v{vL}
    v_lshlrev_b32 v1, 2, v{vL}
    s_mov_b32 s3, s{sB4}
    v_add_u32 v1, {L_TT}, v1
    """)
    for i in range(4):
        a(f"buffer_load_dword v{4+i}, v2, s[{sTB}:{sTB+3}], s3 offen sc1")
        if i < 3:
            a("s_add_u32 s3, s3, 65536")
    for i in range(4):
        a(f"s_waitcnt vmcnt({3-i})\nds_write_b32 v1, v{4+i} offset:{256*i}")
    a(f"""
    k2_p1:
    v_lshlrev_b32 v1, 4, v{vL}
    v_add_u32 v1, {L_TT}, v1
    s_mul_i32 s58, s{sWAVE}, {SEG}
    s_add_u32 s59, s58, s{sW0}
    s_waitcnt lgkmcnt(0)
    s_barrier
    """)
    stamp(a, o, 0)
    a(f"""
    ds_read_b128 v[0:3], v1
    v_mul_u32_u24 v12, {4*CH}, v{vL}
    v_add_u32 v13, {CH}, v12
    v_add_u32 v14, {2*CH}, v12
    v_add_u32 v15, {3*CH}, v12
    s_waitcnt lgkmcnt(0)
    """)
    for i in range(4):
        a(f"v_lshrrev_b32 v{4+i}, 16, v{i}")
    for i in range(4):
        a(f"v_and_b32 v{i}, 0xffff, v{i}")
    a(f"""
    v_add_u32 v10, v4, v5
    v_add_u32 v11, v10, v6
    v_add_u32 v16, v11, v7
    v_mov_b32 v17, v16
    """)
    for i in range(4):
        a(f"v_add_u32 v{12+i}, v{12+i}, v{i}")
    scan(a, "v_add_u32", [17])
    a(f"""
    v_sub_u32 v8, v17, v16
    v_readlane_b32 s{sTOT}, v17, 63
    v_add_u32 v9, v8, v4
    v_add_u32 v10, v8, v10
    v_add_u32 v11, v8, v11
    """)
    for i in range(4):
        a(f"v_sub_u32 v{12+i}, v{12+i}, v{8+i}")
    for i in range(4):
        a(f"v_cmp_ge_u32 s[{62+2*i}:{63+2*i}], s59, v{8+i}")
    for i in range(4):
        a(f"v_subrev_u32 v{8+i}, s{sW0}, v{8+i}")
    for i in range(4):
        a(f"v_min_u32 v{8+i}, {CAP}, v{8+i}")
    for i in range(4):
        a(f"v_lshlrev_b32 v{8+i}, 2, v{8+i}")
    for i in range(4):
        a(f"ds_max_u32 v{8+i}, v{12+i} offset:{L_XS}")
    a(f"""
    v_add_u32 v16, s58, v{vL}
    v_lshlrev_b32 v17, 2, v16
    """)
    for i in range(3):
        a(f"ds_read_b32 v{i}, v17 offset:{L_XS+256*i}")
    for i in range(4):
        a(f"v_cndmask_b32 v{4+i}, 0, v{12+i}, s[{62+2*i}:{63+2*i}]")
    a(f"""
    s_cmp_eq_u32 s{sSIG}, 0
    s_cbranch_scc1 k2_nb2
    s_waitcnt vmcnt(0)
    s_mov_b32 s{sSIG}, 0
    """)
    bcast(a, 128, "k2_nb2")
    a(f"""
    v_max3_u32 v4, v4, v5, v6
    v_max_u32 v3, v4, v7
    s_sub_u32 s{sLIM}, s{sTOT}, s{sW0}
    s_min_u32 s{sLIM}, s{sLIM}, {CAP}
    s_add_u32 s10, s58, {SEG}
    s_min_u32 s10, s10, s{sLIM}
    v_add_u32 v17, 64, v16
    v_add_u32 v18, 128, v16
    v_cmp_gt_u32 s[{sM}:{sM+1}], s10, v16
    v_cmp_gt_u32 s[{sM+2}:{sM+3}], s10, v17
    v_cmp_gt_u32 s[{sM+4}:{sM+5}], s10, v18
    s_waitcnt lgkmcnt(0)
    """)
    scan(a, "v_max_u32", [3, 0, 1, 2])
    a(f"""
    v_readlane_b32 s62, v3, 63
    v_readlane_b32 s63, v0, 63
    v_readlane_b32 s64, v1, 63
    v_lshrrev_b32 v7, 1, v{vL}
    v_lshlrev_b32 v7, 2, v7
    v_add_u32 v8, 128, v7
    s_max_u32 s63, s63, s62
    s_max_u32 s64, s64, s63
    v_max_u32 v0, s62, v0
    v_max_u32 v1, s63, v1
    v_max_u32 v2, s64, v2
    v_mov_b32 v3, 0xf00000
    """)
    for i in range(3):
        a(f"v_add3_u32 v{i}, v{i}, v{16+i}, s{sW0}")
    for i in range(3):
        a(f"v_cndmask_b32 v{i}, v3, v{i}, s[{sM+2*i}:{sM+2*i+1}]")
    for i in range(3):
        a(f"v_mul_u32_u24 v{4+i}, 12, v{i}")
    for j in range(6):
        a(f"ds_bpermute_b32 v{32+j}, v{7+j%2}, v{j//2}")
    a(f"""
    v_and_b32 v9, 1, v{vL}
    v_lshlrev_b32 v9, 4, v9
    s_lshl_b32 s3, s58, 5
    s_add_u32 m0, s3, {L_EF}
    v_mov_b32 v62, 1
    s_waitcnt lgkmcnt(0)
    """)
    for j in range(6):
        a(f"v_lshl_or_b32 v{32+j}, v{32+j}, 5, v9")
    stamp(a, o, 1)
    a(f"""
    s_cmp_lg_u32 s{sWAVE}, 15
    s_cbranch_scc1 k2_np2
    s_cmp_lg_u32 s{sW0}, 0
    s_cbranch_scc1 k2_np2
    """)
    poll(a, o, 128, "k2_pl2")
    a("k2_np2:\ns_barrier")
    for i in range(3):
        a(f"buffer_load_dwordx3 v[{20+4*i}:{22+4*i}], v{4+i}, s[{sYI}:{sYI+3}], 0 offen {LD}")
    stamp(a, o, 2)
    a("s_barrier")

    def dma(j):
        if j == 5:
            a(f"s_mov_b64 exec, {hex((1 << (2*(SEG-160))) - 1)}")
        a(f"buffer_load_dwordx4 v{32+j}, s[{sEF}:{sEF+3}], 0 offen {LD} lds")
        a("s_add_u32 m0, m0, 1024" if j < 5 else "s_mov_b64 exec, -1")
        a("s_nop 0")
    n1 = o.k2n
    for j in range(n1):
        dma(j)
    a(f"s_waitcnt vmcnt({n1})")
    for i in range(3):
        a(f"v_lshrrev_b32 v{40+i}, 24, v{22+4*i}")
    for i in range(3):
        a(f"v_bfe_u32 v{56+i}, v{22+4*i}, 16, 8")
    for i in range(3):
        a(f"v_lshlrev_b32 v{44+i}, v{40+i}, v62")
    for i in range(3):
        a(f"""
        s_mov_b64 exec, s[{sM+2*i}:{sM+2*i+1}]
        s_cbranch_execz k2_h
        ds_add_rtn_u32 v{59+i}, v{56+i}, v{44+i} offset:{L_CNT}
        """)
    a(f"""
    k2_h:
    s_mov_b64 exec, -1
    s_mov_b32 s3, 0x05040100
    """)
    for j in range(n1, 6):
        dma(j)
    for i in range(3):
        a(f"v_perm_b32 v{22+4*i}, v{16+i}, v{22+4*i}, s3")
    a(f"""
    v_lshlrev_b32 v0, 2, v{vL}
    s_waitcnt lgkmcnt(0)
    s_barrier
    """)
    stamp(a, o, 3)
    a(f"""
    ds_read_b32 v64, v0 offset:{L_CNT}
    s_mov_b32 s62, {XHALF}
    """)
    for i in range(3):
        a(f"v_bfe_u32 v{59+i}, v{59+i}, v{40+i}, 16")
    a(f"""
    v_and_b32 v10, 31, v{vL}
    v_lshrrev_b32 v11, 5, v{vL}
    s_waitcnt lgkmcnt(0)
    v_add_u32 v65, 0x10001, v64
    v_and_b32 v65, 0xfffefffe, v65
    v_mov_b32 v66, v65
    v_and_b32 v68, 0xffff, v64
    v_and_b32 v70, 0xffff, v65
    """)
    scan(a, "v_add_u32", [66])
    a(f"""
    v_sub_u32 v67, v66, v65
    v_readlane_b32 s{sP}, v66, 63
    v_lshrrev_b32 v69, 16, v64
    v_lshrrev_b32 v71, 16, v65
    v_cmp_eq_u32 vcc, 0, v68
    s_and_b32 s4, s{sP}, 0xffff
    s_lshr_b32 s5, s{sP}, 16
    s_add_u32 s4, s4, 7
    s_add_u32 s5, s5, 7
    s_lshr_b32 s4, s4, 3
    s_lshr_b32 s5, s5, 3
    v_cndmask_b32 v12, 0, v62, vcc
    s_lshl_b32 s3, s4, 19
    v_add_u32 v67, s3, v67
    ds_write_b32 v0, v12 offset:{L_FLAG}
    """)
    for i in range(3):
        a(f"ds_bpermute_b32 v{i}, v{56+i}, v67")
    a(f"""
    s_lshr_b32 s6, s4, 4
    s_lshr_b32 s7, s5, 4
    s_lshl_b32 s10, s6, 3
    s_lshl_b32 s11, s7, 3
    v_cmp_lt_u32 vcc, s10, v70
    v_cmp_lt_u32 s[68:69], s11, v71
    s_and_b32 s3, s4, 15
    s_mul_i32 s63, s6, s{sWAVE}
    s_min_u32 s10, s3, s{sWAVE}
    s_add_u32 s63, s63, s10
    s_cmp_lt_u32 s{sWAVE}, s3
    s_addc_u32 s64, s6, 0
    s_and_b32 s3, s5, 15
    s_add_u32 s3, s3, s{sWAVE}
    s_mul_i32 s65, s7, s{sWAVE}
    s_sub_u32 s10, s3, 16
    s_max_i32 s10, s10, 0
    s_add_u32 s65, s65, s10
    s_cmp_ge_u32 s3, 16
    s_addc_u32 s66, s7, 0
    s_or_b64 vcc, vcc, s[68:69]
    s_cmp_lg_u64 vcc, 0
    s_cselect_b32 s{sSLOW}, 1, 0
    s_add_u32 s{sNG}, s64, s66
    s_add_u32 s3, s4, s65
    s_add_u32 s10, s63, s64
    s_sub_u32 s10, s10, s4
    s_lshl_b32 s10, s10, 3
    s_lshl_b32 s11, s65, 3
    s_bfm_b64 s[68:69], s64, 0
    s_bfm_b64 vcc, s66, 32
    s_mov_b64 exec, 0xffffffff
    v_add_u32 v12, s63, v10
    v_mov_b32 v13, s11
    s_not_b64 exec, exec
    v_add_u32 v12, s3, v10
    v_mov_b32 v13, s10
    s_mov_b64 exec, -1
    v_lshlrev_b32 v12, 1, v12
    s_or_b64 exec, vcc, s[68:69]
    s_cbranch_execz k2_nosh
    ds_write_b16 v12, v13 offset:{L_SH}
    k2_nosh:
    s_mov_b64 exec, -1
    s_waitcnt lgkmcnt(0)
    """)
    for i in range(3):
        a(f"v_bfe_u32 v{i}, v{i}, v{40+i}, 16")
    for i in range(3):
        a(f"v_add_u32 v{i}, v{i}, v{59+i}")
    a(f"""
    s_mov_b64 s[6:7], 0
    s_cmp_lt_u32 s{sWAVE}, 14
    s_cbranch_scc1 k2_nopad0
    s_sub_u32 s3, s{sWAVE}, 14
    s_mul_i32 s10, s3, s5
    s_add_u32 s10, s10, s4
    s_lshl_b32 s10, s10, 3
    s_lshl_b32 s3, s3, 4
    v_bfe_u32 v12, v64, s3, 16
    v_bfe_u32 v13, v67, s3, 16
    v_subrev_u32 v14, 40, v{vL}
    v_cmp_gt_u32 vcc, 8, v14
    v_max_i32 v14, 0, v14
    v_add3_u32 v3, v12, v13, v14
    v_and_b32 v12, 1, v12
    v_cmp_gt_u32 s[68:69], s10, v3
    v_cmp_eq_u32 s[6:7], 1, v12
    s_and_b64 vcc, vcc, s[68:69]
    s_or_b64 s[6:7], s[6:7], vcc
    k2_nopad0:
    """)
    for i in range(4):
        a(f"v_lshrrev_b32 v{4+i}, 2, v{i}")
    for i in range(4):
        a(f"v_and_b32 v{4+i}, 0x7fe, v{4+i}")
    a("s_barrier")
    for i in range(4):
        a(f"ds_read_i16 v{4+i}, v{4+i} offset:{L_SH}")
    a(f"""
    v_and_b32 v70, 0xffff, v66
    v_lshrrev_b32 v71, 16, v66
    s_lshl_b32 s10, s63, 3
    s_lshl_b32 s11, s65, 3
    v_cmp_lt_u32 s[{sNM}:{sNM+1}], s10, v70
    v_cmp_lt_u32 vcc, 0, v68
    v_cmp_lt_u32 s[{sNB}:{sNB+1}], s11, v71
    v_cmp_lt_u32 s[68:69], 0, v69
    s_mov_b64 s[{sBM}:{sBM+1}], 0
    s_mov_b32 s{sBM+2}, 0
    s_mov_b32 s{sEA}, 0
    s_and_b64 s[{sNM}:{sNM+1}], s[{sNM}:{sNM+1}], vcc
    s_and_b64 s[{sNB}:{sNB+1}], s[{sNB}:{sNB+1}], s[68:69]
    s_mov_b64 s[68:69], s[{sNM}:{sNM+1}]
    s_lshl_b32 s67, s63, 2
    s_add_u32 s67, s67, 1
    s_lshl_b32 s11, s64, 2
    """)

    def bm(tag, vend, cnt):
        a(f"""
        k2_bl{tag}:
        s_ff1_i32_b64 s3, s[68:69]
        s_cmp_lt_i32 s3, 0
        s_cbranch_scc1 k2_bld{tag}
        v_readlane_b32 s10, v{vend}, s3
        s_bitset0_b64 s[68:69], s3
        s_lshr_b32 s10, s10, 1
        s_sub_u32 s10, s10, s67
        s_cmp_ge_u32 s10, s11
        s_cbranch_scc1 k2_bld{tag}
        {f"s_add_u32 s{sEA}, s{sEA}, 1" if cnt else ""}
        s_cmp_ge_u32 s10, 64
        s_cbranch_scc1 k2_bh{tag}
        s_bitset1_b64 s[{sBM}:{sBM+1}], s10
        s_branch k2_bl{tag}
        k2_bh{tag}:
        s_bitset1_b32 s{sBM+2}, s10
        s_branch k2_bl{tag}
        k2_bld{tag}:
        s_sub_u32 s10, s11, 1
        s_cmp_ge_u32 s10, 64
        s_cbranch_scc1 k2_bh2{tag}
        s_bitcmp0_b64 s[{sBM}:{sBM+1}], s10
        s_branch k2_bdone{tag}
        k2_bh2{tag}:
        s_bitcmp0_b32 s{sBM+2}, s10
        k2_bdone{tag}:
        """)
    bm("a", 70, True)
    a(f"""
    s_cselect_b32 s{sOPA}, s3, -1
    s_cmp_eq_u32 s64, 0
    s_cselect_b32 s{sOPA}, -1, s{sOPA}
    s_cmp_ge_i32 s{sOPA}, 0
    s_cselect_b32 s{sPK}, 1, 0
    s_cbranch_scc0 k2_nopk
    s_cmp_ge_u32 s10, 64
    s_cbranch_scc1 k2_pkh
    s_bitset1_b64 s[{sBM}:{sBM+1}], s10
    s_branch k2_nopk
    k2_pkh:
    s_bitset1_b32 s{sBM+2}, s10
    k2_nopk:
    s_mov_b64 s[68:69], s[{sNB}:{sNB+1}]
    s_sub_u32 s67, s65, s64
    s_lshl_b32 s67, s67, 2
    s_add_u32 s67, s67, 1
    s_lshl_b32 s11, s{sNG}, 2
    """)
    bm("b", 71, False)
    a(f"""
    s_cselect_b32 s{sOPEN}, s66, 0
    s_add_u32 s65, s65, s63
    s_waitcnt lgkmcnt(0)
    """)
    for i in range(4):
        a(f"v_add_u32 v{i}, v{i}, v{4+i}")
    for i in range(4):
        a(f"""
        v_and_b32 v{4+i}, 1, v{i}
        v_lshrrev_b32 v{12+i}, 1, v{i}
        v_lshlrev_b32 v{12+i}, 2, v{12+i}
        v_mad_u32_u24 v{4+i}, v{4+i}, s62, v{12+i}
        v_lshlrev_b32 v{i}, 3, v{i}
        """)
    for i in range(3):
        a(f"""
        s_mov_b64 exec, s[{sM+2*i}:{sM+2*i+1}]
        s_cbranch_execz k2_w0
        ds_write_b32 v{4+i}, v{22+4*i} offset:{L_XS}
        ds_write_b64 v{i}, v[{20+4*i}:{21+4*i}] offset:{L_YS}
        """)
    a(f"""
    k2_w0:
    s_mov_b64 exec, s[6:7]
    s_cbranch_execz k2_nopad
    v_mov_b32 v13, {hex(0x7fff | CAP << 16)}
    v_mov_b64 v[14:15], 0
    ds_write_b32 v7, v13 offset:{L_XS}
    ds_write_b64 v3, v[14:15] offset:{L_YS}
    k2_nopad:
    s_mov_b64 exec, -1
    """)
    a(f"""
    s_lshl_b32 s3, s65, 4
    s_add_u32 s3, s3, {L_XS}
    v_mov_b32 v12, s3
    v_mad_u32_u24 v{VX}, v11, s62, v12
    v_lshrrev_b32 v13, 3, v10
    v_lshl_add_u32 v12, v13, 4, v12
    v_and_b32 v13, 3, v10
    v_lshl_add_u32 v12, v13, 2, v12
    v_bfe_u32 v13, v10, 2, 1
    v_mad_u32_u24 v{VEF}, v13, s62, v12
    s_lshl_b32 s3, s65, 6
    s_add_u32 s3, s3, {L_YS}
    v_lshlrev_b32 v12, 3, v11
    v_lshl_add_u32 v12, v10, 4, v12
    v_add_u32 v{VY}, s3, v12
    v_lshlrev_b32 v12, 4, v11
    v_add_u32 v{VHB}, {L_EF}, v12
    v_lshlrev_b32 v{VJ4}, 4, v{vL}
    v_lshlrev_b32 v{VXO}, 4, v10
    """)
    for k in range(4):
        a(f"v_mov_b64 {v(ACC+2*k,2)}, 0")
    a(f"""
    v_and_or_b32 v{ZE+8}, v{VXO}, 48, s{sCG}
    s_mov_b32 s{sREM}, s{sNG}
    s_lshr_b32 s{sTH}, s{sNG}, 1
    s_mov_b32 s{sPR}, 3
    {"s_setprio 3" if "prio" in o.exp else ""}
    s_waitcnt vmcnt(0) lgkmcnt(0)
    s_barrier
    """)
    stamp(a, o, 4)
    XS = f"s[{sX}:{sX+3}]"

    def xadr(r):
        a(f"v_mad_u32_u16 v{r}, v{r}, s{s512}, v{VXO}")

    def efnext(off):
        a(f"""
        v_mad_u32_u16 v{EE}, v{VRI}, 32, v{VHB} op_sel:[1,0,0,0]
        ds_read_b128 {v(EF,4)}, v{EE}
        ds_read_b32 v{VRI}, v{VEF} offset:{off}
        """)
    a(f"""
    s_cmp_eq_u32 s{sNG}, 0
    s_cbranch_scc1 k2_done
    ds_read_b128 {v(XI,4)}, v{VX}
    ds_read_b128 {v(XI+4,4)}, v{VX} offset:16
    ds_read_b32 v{VRI}, v{VEF}
    ds_read_b64 {v(YY,2)}, v{VY}
    ds_read_b128 {v(ZE,4)}, v{ZE+8}
    ds_read_b128 {v(ZE+4,4)}, v{ZE+8} offset:64
    s_mov_b32 s{sX+2}, s{sXNR}
    s_waitcnt lgkmcnt(5)
    """)
    for k in range(4):
        xadr(XI + k)
        a(f"buffer_load_dwordx4 {v(X+4*k,4)}, v{XI+k}, {XS}, 0 offen {XF}")
    a(f"""
    s_cmp_gt_u32 s{sREM}, 1
    s_cselect_b32 s{sX+2}, s{sXNR}, 0
    s_waitcnt lgkmcnt(3)
    """)
    efnext(64)
    for k in range(4, 8):
        xadr(XI + k)
        a(f"buffer_load_dwordx4 {v(X+4*k,4)}, v{XI+k}, {XS}, 0 offen {XF}")
    a(f"ds_read_b128 {v(XI,4)}, v{VX} offset:32")

    def group_start(g):
        b = XI + 4 * (g % 2)
        nb = XI + 4 * ((g + 1) % 2)
        if "noadd" in o.exp:
            a("s_nop 3")
        else:
            for k in range(4):
                xadr(b + k)
        a(f"ds_read_b128 {v(nb,4)}, v{VX} offset:{16*(g+3)}")
        a(f"s_cmp_gt_u32 s{sREM}, 2\ns_cselect_b32 s{sX+2}, s{sXNR}, 0")

    def mf(d, ar, br, c):
        a(f"v_mfma_f32_32x32x16_bf16 {v(d,16)}, {v(ar,4)}, {v(br,4)}, {c}")

    def rprol():
        a(f"""
        v_exp_f32 v{EE}, v{ZE}
        v_exp_f32 v{EE+1}, v{ZE+1}
        v_exp_f32 v{EE+2}, v{ZO}
        v_exp_f32 v{EE+3}, v{ZO+1}
        v_pk_add_f32 {v(EE,2)}, {v(EE,2)}, s[{sONE}:{sONE+1}]
        v_pk_add_f32 {v(EE+2,2)}, {v(EE+2,2)}, s[{sONE}:{sONE+1}]
        v_rcp_f32 v{EE}, v{EE}
        v_rcp_f32 v{EE+1}, v{EE+1}
        v_rcp_f32 v{EE+2}, v{EE+2}
        v_rcp_f32 v{EE+3}, v{EE+3}
        v_pk_mul_f32 {v(ZE,2)}, {v(ZE,2)}, {v(EE,2)}
        v_pk_mul_f32 {v(ZO,2)}, {v(ZO,2)}, {v(EE+2,2)}
        """)

    a("k2_blk:")
    for t in range(32):
        g, r = t // 4, t % 16
        if t == 0:
            a("s_waitcnt lgkmcnt(0)")
            for i in range(4):
                a(f"v_mfma_f32_4x4x4_16b_bf16 {v(ZO+4*i,4)}, {v(YY,2)}, {v(ZE+2*i,2)}, 0")
            a(f"ds_read_b64 {v(YY,2)}, v{VY} offset:512")
            a(f"v_add_u32 v{VY}, 512, v{VY}")
            mf(ZE, EF, W, "0")
            for m in range(4):
                a(f"v_cvt_pk_bf16_f32 v{TA+2*m}, v{ZO+m}, v{ZO+4+m}")
            for m in range(4):
                a(f"v_cvt_pk_bf16_f32 v{TA+2*m+1}, v{ZO+8+m}, v{ZO+12+m}")
            mf(ZO, EF, W + 4, "0")
            efnext(128)
            group_start(g)
            a("s_nop 3")
            rprol()
        elif t == 16:
            a("s_waitcnt lgkmcnt(0)")
            mf(ZE, EF, W, "0")
            mf(ZO, EF, W + 4, "0")
            efnext(192)
            a(f"v_add_u32 v{VEF}, 128, v{VEF}")
            group_start(g)
            a("s_nop 2")
            rprol()
        elif t % 4 == 0:
            a("s_waitcnt lgkmcnt(0)")
            group_start(g)
            if t == 28:
                a(f"""
                v_and_or_b32 v{ZE+8}, v{VXO}, 48, s{sCG}
                ds_read_b128 {v(ZE,4)}, v{ZE+8}
                ds_read_b128 {v(ZE+4,4)}, v{ZE+8} offset:64
                """)
        k = t % 8
        xr = X + 4 * k
        ar = TA + 2 * (t % 4)
        p0 = r & ~1
        last = p0 == 14
        tr = "v_exp_f32" if r % 2 == 0 else "v_rcp_f32"

        def trn(e, z):
            if last or "notrans" in o.exp:
                return
            src = z if r % 2 == 0 else e
            a(f"{tr} v{e}, v{src}")

        def mid(e, z):
            if last:
                return
            if "v2mid" in o.exp:
                for u in range(2):
                    a(f"v_add_f32 v{e+u}, 1.0, v{e+u}" if r % 2 == 0 else f"v_mul_f32 v{z+u}, v{z+u}, v{e+u}")
            elif r % 2 == 0:
                a(f"v_pk_add_f32 {v(e,2)}, {v(e,2)}, s[{sONE}:{sONE+1}]")
            else:
                a(f"v_pk_mul_f32 {v(z,2)}, {v(z,2)}, {v(e,2)}")

        sel = "op_sel_hi:[0,1,1]" if r % 2 == 0 else "op_sel:[1,0,0] op_sel_hi:[1,1,1]"

        def fma(acc, z, tp):
            if "nofma" in o.exp:
                return
            if "v2fma" in o.exp:
                for u in range(2):
                    a(f"v_fmac_f32 v{acc+u}, v{z+r%2}, v{tp+u}")
                return
            a(f"v_pk_fma_f32 {v(acc,2)}, {v(z,2)}, {v(tp,2)}, {v(acc,2)} {sel}")

        cb = "" if "nocbsz" in o.exp else f"cbsz:3 abid:{t//4}"
        a("s_waitcnt vmcnt(7)")
        if "nomf" not in o.exp:
            a(f"v_mfma_f32_4x4x4_16b_bf16 {v(TP,4)}, {v(ar,2)}, {v(xr,2)}, 0 {cb}")
        trn(EE, ZE + p0 + 2)
        trn(EE + 1, ZE + p0 + 3)
        if "nomf" not in o.exp:
            a(f"v_mfma_f32_4x4x4_16b_bf16 {v(TP+4,4)}, {v(ar,2)}, {v(xr+2,2)}, 0 {cb}")
        if "noload" not in o.exp:
            a(f"buffer_load_dwordx4 {v(xr,4)}, v{XI+4*(g%2)+t%4}, {XS}, 0 offen {XF}")
        trn(EE + 2, ZO + p0 + 2)
        trn(EE + 3, ZO + p0 + 3)
        mid(EE, ZE + p0 + 2)
        if last:
            a("s_nop 2")
        fma(ACC, ZE + p0, TP)
        fma(ACC + 2, ZE + p0, TP + 2)
        mid(EE + 2, ZO + p0 + 2)
        fma(ACC + 4, ZO + p0, TP + 4)
        fma(ACC + 6, ZO + p0, TP + 6)
        if "nobr" in o.exp:
            a(f"k2_bk{t}:")
        else:
            a(f"s_bitcmp1_b32 s{sBM}, {t}\ns_cbranch_scc1 k2_fl{t}\nk2_bk{t}:")
        if t % 4 == 3:
            if "prio" in o.exp:
                a(f"s_sub_u32 s{sREM}, s{sREM}, 1\ns_cmp_eq_u32 s{sREM}, s{sTH}\ns_cbranch_scc1 k2_th{g}\nk2_tb{g}:")
            else:
                a(f"s_sub_u32 s{sREM}, s{sREM}, 1\ns_cmp_eq_u32 s{sREM}, 0\ns_cbranch_scc1 k2_done")
    a(f"""
    s_mov_b32 s{sBM}, s{sBM+1}
    s_mov_b32 s{sBM+1}, s{sBM+2}
    v_add_u32 v{VX}, 128, v{VX}
    s_branch k2_blk
    """)
    if "prio" in o.exp:
        for g in range(8):
            a(f"k2_th{g}:\ns_cmp_eq_u32 s{sTH}, 0\ns_cbranch_scc1 k2_done\ns_call_b64 s[{sRET}:{sRET+1}], k2_thr\ns_branch k2_tb{g}")
        a(f"""
        k2_thr:
        s_lshr_b32 s{sTH}, s{sTH}, 1
        s_sub_u32 s{sPR}, s{sPR}, 1
        s_cmp_eq_u32 s{sPR}, 2
        s_cbranch_scc1 k2_p2
        s_cmp_eq_u32 s{sPR}, 1
        s_cbranch_scc1 k2_p1x
        s_mov_b32 s{sTH}, 0
        s_setprio 0
        s_setpc_b64 s[{sRET}:{sRET+1}]
        k2_p2:
        s_setprio 2
        s_setpc_b64 s[{sRET}:{sRET+1}]
        k2_p1x:
        s_setprio 1
        s_setpc_b64 s[{sRET}:{sRET+1}]
        """)
    for t in range(32):
        a(f"k2_fl{t}:\ns_call_b64 s[{sRET}:{sRET+1}], k2_flush\ns_branch k2_bk{t}")
    def node_addr(sn):
        a(f"""
        s_lshl_b32 s58, s{sn}, 10
        s_and_b32 s59, s{sn}, 7
        s_lshl_b32 s59, s59, 4
        s_or_b32 s58, s58, s59
        s_lshl_b32 s59, s{sn}, 2
        v_xor_b32 v{TP}, s58, v{VJ4}
        """)

    def reduce_acc(dst):
        for q in range(4):
            a(f"v_permlane32_swap_b32 v{ACC+q}, v{ACC+4+q}")
        a(f"""
        v_pk_add_f32 {v(dst,2)}, {v(ACC,2)}, {v(ACC+4,2)}
        v_pk_add_f32 {v(dst+2,2)}, {v(ACC+2,2)}, {v(ACC+6,2)}
        v_mov_b64 {v(ACC+4,2)}, 0
        v_mov_b64 {v(ACC+6,2)}, 0
        """)

    def rmw(src):
        a(f"""
        v_pk_add_f32 {v(TP+4,2)}, {v(TP+4,2)}, {v(src,2)}
        v_pk_add_f32 {v(TP+6,2)}, {v(TP+6,2)}, {v(src+2,2)}
        v_mov_b64 {v(src,2)}, 0
        v_mov_b64 {v(src+2,2)}, 0
        ds_write_b128 v{TP}, {v(TP+4,4)} offset:{L_AGG}
        """)
    RET = f"s_setpc_b64 s[{sRET}:{sRET+1}]"
    SPIN = ""
    if o.spin:
        SPIN = f"""s_add_u32 s{sSPIN}, s{sSPIN}, 1
        s_cmp_lt_u32 s{sSPIN}, {o.spin}
        s_cbranch_scc1 k2_flw
        s_waitcnt lgkmcnt(0)
        v_mov_b32 v{TP+2}, 1"""
    a(f"""
    k2_flush:
    s_cmp_eq_u32 s{sEA}, 0
    s_cbranch_scc1 k2_flb
    s_sub_u32 s{sEA}, s{sEA}, 1
    s_ff1_i32_b64 s{sCUR}, s[{sNM}:{sNM+1}]
    s_bitset0_b64 s[{sNM}:{sNM+1}], s{sCUR}
    """)
    node_addr(sCUR)
    a(f"ds_read_b128 {v(TP+4,4)}, v{TP} offset:{L_AGG}")
    reduce_acc(ACC)
    a(f"v_mov_b32 v{TP+1}, s59\ns_waitcnt lgkmcnt(0)")
    rmw(ACC)
    a(f"""
    s_mov_b64 exec, 1
    ds_write_b32 v{TP+1}, v{VX} offset:{L_FLAG}
    s_mov_b64 exec, -1
    {RET}
    k2_flb:
    s_cmp_eq_u32 s{sPK}, 0
    s_cbranch_scc1 k2_flb2
    s_mov_b32 s{sPK}, 0
    """)
    reduce_acc(PARK)
    a(f"""
    v_mov_b64 {v(ACC,2)}, 0
    v_mov_b64 {v(ACC+2,2)}, 0
    {RET}
    k2_flb2:
    s_ff1_i32_b64 s{sCUR}, s[{sNB}:{sNB+1}]
    s_bitset0_b64 s[{sNB}:{sNB+1}], s{sCUR}
    """)
    node_addr(sCUR)
    a(f"""
    v_mov_b32 v{TP+1}, s59
    ds_read_b32 v{TP+2}, v{TP+1} offset:{L_FLAG}
    ds_read_b128 {v(TP+4,4)}, v{TP} offset:{L_AGG}
    """)
    reduce_acc(ACC)
    a(f"""
    k2_flw:
    s_waitcnt lgkmcnt(0)
    v_cmp_eq_u32 vcc, 0, v{TP+2}
    s_cbranch_vccnz k2_flr
    """)
    rmw(ACC)
    a(f"""
    {RET}
    k2_flr:
    ds_read_b32 v{TP+2}, v{TP+1} offset:{L_FLAG}
    ds_read_b128 {v(TP+4,4)}, v{TP} offset:{L_AGG}
    {SPIN}
    s_branch k2_flw
    k2_opena:
    s_cmp_lt_i32 s{sOPA}, 0
    s_cbranch_scc1 k2_openret
    """)
    node_addr(sOPA)
    a(f"""
    s_cmp_eq_u32 s{sSLOW}, 0
    s_cbranch_scc0 k2_opas
    ds_read_b128 {v(TP+4,4)}, v{TP} offset:{L_AGG}
    s_waitcnt lgkmcnt(0)
    """)
    rmw(PARK)
    a(f"{RET}\nk2_opas:")
    for q in range(4):
        a(f"ds_add_f32 v{TP}, v{PARK+q} offset:{L_AGG+4*q}")
    a(f"""
    {RET}
    k2_open:
    s_cmp_eq_u32 s{sOPEN}, 0
    s_cbranch_scc1 k2_openret
    s_cmp_eq_u64 s[{sNB}:{sNB+1}], 0
    s_cbranch_scc1 k2_openret
    s_cmp_eq_u32 s{sSLOW}, 0
    s_cbranch_scc1 k2_flb2
    s_ff1_i32_b64 s{sCUR}, s[{sNB}:{sNB+1}]
    """)
    node_addr(sCUR)
    reduce_acc(ACC)
    for q in range(4):
        a(f"ds_add_f32 v{TP}, v{ACC+q} offset:{L_AGG+4*q}")
    a(f"""
    k2_openret:
    {RET}
    """)
    a(f"""
    k2_done:
    s_waitcnt vmcnt(0)
    s_add_u32 s{sW0}, s{sW0}, {CAP}
    v_and_b32 v{vL}, 63, v{VTID}
    s_cmp_lt_u32 s{sW0}, s{sTOT}
    s_cbranch_scc0 k2_last
    s_waitcnt lgkmcnt(0)
    s_barrier
    s_call_b64 s[{sRET}:{sRET+1}], k2_opena
    s_waitcnt lgkmcnt(0)
    s_barrier
    s_call_b64 s[{sRET}:{sRET+1}], k2_open
    s_waitcnt lgkmcnt(0)
    s_barrier
    v_lshlrev_b32 v1, 4, v{VTID}
    v_mov_b64 v[8:9], 0
    v_mov_b64 v[10:11], 0
    ds_write_b128 v1, v[8:11] offset:{L_XS}
    s_cmp_lg_u32 s{sWAVE}, 15
    s_cbranch_scc1 k2_p1
    s_branch k2_tg
    k2_last:
    """)
    stamp(a, o, 5)
    a(f"""
    s_cmp_ge_u32 s{sWAVE}, 5
    s_cbranch_scc1 k2_nowm
    v_lshlrev_b32 v64, 4, v{vL}
    s_mov_b32 s58, {TB_WM}
    s_mov_b32 s59, {TB_WM+4096}
    """)
    for q in range(8):
        a(f"buffer_load_dwordx4 {v(4*q,4)}, v64, s[{sTB}:{sTB+3}], s{58+q//4} offen offset:{1024*(q%4)} sc1")
    a(f"""
    k2_nowm:
    v_and_b32 v64, 31, v{vL}
    v_lshrrev_b32 v65, 5, v{vL}
    v_lshrrev_b32 v66, 2, v64
    v_mul_u32_u24 v66, 1040, v66
    v_lshl_add_u32 v66, v65, 7, v66
    v_and_b32 v67, 3, v64
    v_lshl_add_u32 v66, v67, 2, v66
    s_lshl_b32 s3, s{sWAVE}, 13
    v_add_u32 v113, s3, v66
    v_lshlrev_b32 v64, 4, v64
    v_lshl_add_u32 v112, v65, 9, v64
    """)
    for i in range(1, 8):
        a(f"v_xor_b32 v{113+i}, {16*i}, v113")
    a(f"""
    s_lshl_b32 s3, s{sWAVE}, 12
    s_mov_b32 s10, 0xbf317218
    s_mov_b32 s11, 0xbf317218
    s_waitcnt lgkmcnt(0)
    s_barrier
    """)
    stamp(a, o, 6)
    a(f"""
    s_call_b64 s[{sRET}:{sRET+1}], k2_opena
    s_waitcnt lgkmcnt(0)
    s_barrier
    s_call_b64 s[{sRET}:{sRET+1}], k2_open
    s_waitcnt lgkmcnt(0)
    s_barrier
    s_cmp_ge_u32 s{sWAVE}, 5
    s_cbranch_scc1 {"k2_tm" if o.timing else "k2_end"}
    """)
    for i in range(8):
        for u in range(2):
            a(f"ds_read2st64_b32 {v(32+4*i+2*u,2)}, v{113+i} offset0:{2*u} offset1:{2*u+1}")
    for k in range(4):
        a(f"s_waitcnt lgkmcnt({12-4*k})")
        for r in range(32 + 8 * k, 40 + 8 * k, 2):
            a(f"v_pk_mul_f32 {v(r,2)}, {v(r,2)}, s[10:11]")
        for sx in range(4):
            a(f"v_cvt_pk_bf16_f32 v{64+4*sx+k}, v{32+8*k+sx}, v{36+8*k+sx}")
    a("s_waitcnt vmcnt(0)\ns_nop 0")
    for sx in range(4):
        mf(80, 64 + 4 * sx, 8 * sx, "0" if sx == 0 else v(80, 16))
        mf(96, 64 + 4 * sx, 8 * sx + 4, "0" if sx == 0 else v(96, 16))
    a("s_nop 10")
    for rq in range(4):
        b = 32 + 4 * rq
        a(f"""
        v_cvt_pk_bf16_f32 v{b}, v{80+4*rq}, v{81+4*rq}
        v_cvt_pk_bf16_f32 v{b+1}, v{82+4*rq}, v{83+4*rq}
        v_cvt_pk_bf16_f32 v{b+2}, v{96+4*rq}, v{97+4*rq}
        v_cvt_pk_bf16_f32 v{b+3}, v{98+4*rq}, v{99+4*rq}
        buffer_store_dwordx4 {v(b,4)}, v112, s[{sOUT}:{sOUT+3}], s3 offen offset:{1024*rq} {o.outst}
        """)
    if o.timing:
        a("k2_tm:\ns_waitcnt vmcnt(0)")
        stamp(a, o, 7)
        a(f"s_mov_b64 exec, 1")
        stamp_store(a, o, 1, 8, 8, sWAVE)
        stamp_store(a, o, 0, 5, 8, sWAVE, lambda i: 96 + i)
    a("k2_end:\ns_endpgm")


def desc(name, vg, sg):
    return f""".p2align 6
.amdhsa_kernel {name}
  .amdhsa_next_free_vgpr {vg}
  .amdhsa_next_free_sgpr {sg}
  .amdhsa_accum_offset {(vg+3)//4*4}
  .amdhsa_group_segment_fixed_size 0
  .amdhsa_kernarg_size 88
  .amdhsa_user_sgpr_count 2
  .amdhsa_user_sgpr_kernarg_segment_ptr 1
  .amdhsa_system_sgpr_workgroup_id_x 1
.end_amdhsa_kernel
"""


def main():
    p = argparse.ArgumentParser()
    p.add_argument("-o", default="cdna_kernels/" + NAME + ".s")
    p.add_argument("--timing", action="store_true")
    p.add_argument("--k1ld", default="nt")
    p.add_argument("--k1st", default="sc1")
    p.add_argument("--k2ld", default="sc1")
    p.add_argument("--xld", default="")
    p.add_argument("--outst", default="sc1")
    p.add_argument("--exp", default="prio")
    p.add_argument("--spin", type=int, default=0)
    p.add_argument("--psl", type=int, default=4)
    p.add_argument("--pmax", type=int, default=20000)
    p.add_argument("--k1n", type=int, default=3)
    p.add_argument("--k2n", type=int, default=3)
    o = p.parse_args()
    o.exp = set(o.exp.split(","))
    K = NAME + "_kernel"
    a = A()
    k1(a, o)
    k2(a, o)
    t = f"""; TFN tensor-product message passing in one launch of 256 co-resident workgroups.
; @launch grid=({G},1,1) block=(1024,1,1) lds={LDS_SZ}
.amdgcn_target "amdgcn-amd-amdhsa--gfx950"
.text
.globl {K}
.p2align 8
.type {K},@function
{K}:
{a.text()}
.section .rodata,"a"
{desc(K, 128, 102)}"""
    open(o.o, "w").write(t)


main()
```

```python
import sys, argparse

NAME = "gather_scatter__tensor_product_equiv_tfn__graph"
E, N = 640000, 10000
G, CH = 256, 2500
BMUL = 26843
WS_EF = 0
WS_YI = E * 32
WS_TB = WS_YI + E * 12
TB_WM = 262144
TB_MB = TB_WM + 8192
TB_SZ = TB_MB + 65536
WS_TM = WS_TB + 524288
HALF = 5000
L1_HIST, L1_ST, L1_INV, L1_YI = 0, 1024, 2048, 7168
L1_RAW = 81920
L1_WR, L1_CG = 37376, 39424
LDS_SZ = 163840
CAP, C = 2720, 2816
SEG = 170
L_AGG = 0
L_XS = 40960
XHALF = C // 2 * 4
L_CNT = L_XS + C * 4
L_FLAG = L_CNT + 256
L_SH = L_FLAG + 256
L_YS = L_SH + C // 8 * 2
L_CG = L_YS + C * 8
L_EF = L_CG + 128
L_SZ = L_EF + (CAP + 1) * 32
L_TT = L_EF
assert L_SZ <= 163840 and L_CG % 64 == 0 and XHALF % 16 == 0 and L_YS % 16 == 0 and L_EF % 16 == 0
assert L_CG >= 65536 and SEG * 16 == CAP


class A:
    def __init__(s):
        s.l = []

    def __call__(s, t):
        for x in t.strip("\n").split("\n"):
            x = x.strip()
            if x:
                s.l.append(x if x.endswith(":") else "    " + x)

    def text(s):
        return "\n".join(s.l) + "\n"


def v(a, n=1):
    return f"v{a}" if n == 1 else f"v[{a}:{a+n-1}]"


def s(a, n=1):
    return f"s{a}" if n == 1 else f"s[{a}:{a+n-1}]"


def srd(a, r, ptr, off, nr):
    if off is None:
        a(f"s_mov_b32 s{r}, s{ptr}\ns_mov_b32 s{r+1}, s{ptr+1}")
    else:
        a(f"s_add_u32 s{r}, s{ptr}, {off}\ns_addc_u32 s{r+1}, s{ptr+1}, 0")
    a(f"s_mov_b32 s{r+2}, {nr}\ns_mov_b32 s{r+3}, 0x20000")


DPPS = ["row_shr:1 row_mask:0xf bank_mask:0xf bound_ctrl:1",
        "row_shr:2 row_mask:0xf bank_mask:0xf bound_ctrl:1",
        "row_shr:4 row_mask:0xf bank_mask:0xf bound_ctrl:1",
        "row_shr:8 row_mask:0xf bank_mask:0xf bound_ctrl:1",
        "row_bcast:15 row_mask:0xa bank_mask:0xf",
        "row_bcast:31 row_mask:0xc bank_mask:0xf"]


def scan(a, op, regs):
    for d in DPPS:
        for r in regs:
            a(f"{op}_dpp v{r}, v{r}, v{r} {d}")
        if len(regs) < 3:
            a(f"s_nop {2 - len(regs)}")


def stamp(a, o, i, alt=False):
    if "pst" in o.exp and o.ph2 and (i >= 5) != alt and i >= 5:
        return
    if alt and "pst" not in o.exp:
        return
    if o.timing:
        a(f"{'s_memtime' if 'clk' in o.exp else 's_memrealtime'} s[{72+2*i}:{73+2*i}]")


def stamp_store(a, o, kern, n, ptr, sw, reg=lambda i: 72 + 2 * i):
    if not o.timing:
        return
    a(f"""
    s_waitcnt lgkmcnt(0)
    s_lshl_b32 s3, s2, 4
    s_add_u32 s3, s3, s{sw}
    s_lshl_b32 s3, s3, 6
    s_add_u32 s3, s3, {WS_TM + kern*262144}
    """)
    srd(a, 68, ptr, "s3", 64)
    a("s_nop 4\nv_mov_b32 v0, 0")
    for i in range(n):
        a(f"v_mov_b32 v1, s{reg(i)}\nbuffer_store_dword v1, v0, s[68:71], 0 offen offset:{4*i}\ns_nop 1")


X, ZE, ZO, TA, TP, ACC, EE, W, EF, YY, XI = 0, 32, 48, 64, 72, 80, 88, 92, 108, 112, 114
PARK, VRI, VHB = 100, 104, 105
VXO, VX, VY, VEF, VJ4, VTID = 122, 123, 124, 125, 126, 127
sX, sEF, sYI, sTB, sOUT = 12, 16, 20, 24, 28
sWAVE, sB4, sN0, sW0, sTOT, sLIM, sP = 32, 33, 34, 35, 36, 37, 38
sNG = 39
sONE, sXNR, sREM, sBM, sNM, sCUR, sCG = 40, 42, 43, 44, 48, 50, 51
sM = 52
sRET = 60
sSLOW, sOPEN = 47, 70
sTH, sPR = 71, 11
sNB, sEA, sOPA, sPK, s512 = 88, 90, 91, 92, 93
sDP, sSPIN, sSIG = 94, 101, 94


def bcast(a, word, tag):
    a(f"""
    v_readfirstlane_b32 s3, v64
    s_and_b32 s3, s3, {G-1}
    s_cmp_lg_u32 s3, {G-1}
    s_cbranch_scc1 {tag}
    v_and_b32 v65, 63, v{VTID}
    v_mov_b32 v64, 1
    v_lshlrev_b32 v65, 8, v65
    s_mov_b32 s3, {TB_MB + word}
    """)
    for i in range(4):
        a(f"buffer_store_dword v64, v65, s[{sTB}:{sTB+3}], s3 offen sc1")
        if i < 3:
            a("s_add_u32 s3, s3, 16384")
    a(f"{tag}:")


def arrive(a, word, tag):
    a(f"""
    v_mov_b32 v64, 1
    v_mov_b32 v65, {L_FLAG + word // 32}
    s_mov_b32 s{sSIG}, 0
    s_mov_b64 exec, 1
    ds_add_rtn_u32 v65, v65, v64
    s_waitcnt lgkmcnt(0)
    v_readfirstlane_b32 s3, v65
    s_cmp_lg_u32 s3, 15
    s_cbranch_scc1 {tag}
    buffer_atomic_add v64, off, s[48:51], 0 offset:{word} sc0 sc1
    s_mov_b32 s{sSIG}, 1
    {tag}:
    s_mov_b64 exec, -1
    """)


def poll(a, o, word, tag):
    a(f"""
    s_lshl_b32 s3, s2, 8
    s_add_u32 s3, s3, {TB_MB + word}
    s_mov_b64 exec, 1
    {tag}:
    buffer_load_dword v64, off, s[{sTB}:{sTB+3}], s3 sc1
    s_add_u32 s{sSPIN}, s{sSPIN}, 1
    s_waitcnt vmcnt(0)
    v_readfirstlane_b32 s10, v64
    s_cmp_eq_u32 s10, 1
    s_cbranch_scc1 {tag}d
    s_cmp_ge_u32 s{sSPIN}, {o.pmax}
    s_cbranch_scc1 {tag}d
    {f"s_sleep {o.psl}" if o.psl else ""}
    s_branch {tag}
    {tag}d:
    s_mov_b64 exec, -1
    """)


def k1(a, o):
    LD = o.k1ld
    ST = o.k1st
    na, nb, nc = [int(x) for x in o.k1n.split(",")]
    nd = 5 - na - nb - nc
    a(f"""
    s_cmp_ge_u32 s2, {G}
    s_cbranch_scc1 k2_end
    """)
    stamp(a, o, 0)
    a(f"""
    s_load_dwordx4 s[4:7], s[0:1], 8
    s_load_dwordx4 s[8:11], s[0:1], 24
    s_load_dwordx4 s[12:15], s[0:1], 40
    s_load_dwordx2 s[16:17], s[0:1], 56
    s_load_dwordx2 s[18:19], s[0:1], 80
    s_load_dwordx2 s[68:69], s[0:1], 0
    s_load_dwordx2 s[70:71], s[0:1], 64
    s_load_dwordx2 s[{sDP}:{sDP+1}], s[0:1], 72
    v_lshlrev_b32 v1, 2, v0
    v_lshlrev_b32 v2, 3, v0
    v_lshlrev_b32 v3, 4, v0
    v_and_b32 v46, 0x3fc, v1
    v_mov_b64 v[48:49], 0
    v_mov_b64 v[50:51], 0
    v_lshrrev_b32 v62, 6, v0
    v_and_b32 v63, 63, v0
    ds_write_b32 v46, v48 offset:{L1_HIST}
    v_readfirstlane_b32 s62, v62
    v_cmp_gt_u32 vcc, {CH - 2048}, v0
    v_mov_b32 v{VTID}, v0
    s_movk_i32 s52, 4096
    s_movk_i32 s53, 8192
    s_movk_i32 s54, 16384
    s_mov_b32 s55, 32768
    s_mov_b32 s56, 65536
    s_mov_b32 s57, 49152
    s_mov_b64 s[60:61], vcc
    s_mul_i32 s3, s2, {CH*4}
    s_mul_i32 s58, s2, {CH*8}
    s_mul_i32 s59, s2, {CH*32}
    s_mov_b32 s{sSPIN}, 0
    s_cmp_lt_u32 s2, 4
    s_cselect_b32 s63, s2, 6
    s_cmp_eq_u32 s62, 13
    s_cselect_b32 s63, s63, 6
    s_waitcnt lgkmcnt(0)
    """)
    srd(a, 24, 6, "s3", CH * 4)
    a(f"""
    s_cmp_ge_u32 s63, 4
    s_cbranch_scc1 k1_noimg0
    v_and_b32 v64, 31, v63
    v_lshrrev_b32 v65, 5, v63
    v_lshlrev_b32 v64, 2, v64
    """)
    srd(a, 48, 16, None, 8192)
    a(f"""
    v_lshl_add_u32 v64, v65, 11, v64
    s_and_b32 s64, s63, 1
    s_lshl_b32 s64, s64, 12
    s_lshr_b32 s65, s63, 1
    s_lshl_b32 s65, s65, 7
    s_add_u32 s64, s64, s65
    """)
    for i in range(8):
        a(f"buffer_load_dword v{66+i}, v64, s[48:51], s64 offen offset:{256*i}")
    a("k1_noimg0:")
    so4 = ["0", "s52", "s53"]
    so8 = ["0", "s53", "s54"]
    so16 = ["0", "s54", "s55", "s57", "s56"]
    for i in range(3):
        a(f"buffer_load_dword v{4+i}, v1, s[24:27], {so4[i]} offen {LD}")
    srd(a, 20, 4, "s3", CH * 4)
    srd(a, 28, 8, "s58", CH * 8)
    srd(a, 36, 12, None, 2048)
    srd(a, 40, 14, None, 128)
    for i in range(3):
        a(f"buffer_load_dword v{7+i}, v1, s[20:23], {so4[i]} offen {LD}")
    a(f"""
    v_lshlrev_b32 v61, 4, v63
    s_lshl_b32 s64, s62, 7
    s_add_u32 m0, s64, {L1_WR}
    s_mov_b64 exec, 0xff
    buffer_load_dwordx4 v61, s[36:39], s64 offen lds
    s_mov_b32 m0, {L1_CG}
    s_nop 0
    buffer_load_dwordx4 v61, s[40:43], 0 offen lds
    s_mov_b64 exec, -1
    """)
    for i in range(3):
        a(f"buffer_load_dwordx2 v[{10+2*i}:{11+2*i}], v2, s[28:31], {so8[i]} offen {LD}")
    srd(a, 32, 10, "s59", CH * 32)
    jj = [0]

    def ld_ef(n):
        for _ in range(n):
            j = jj[0]
            a(f"buffer_load_dwordx4 v3, s[32:35], {so16[j]} offen {LD} lds")
            if j < 4:
                a("s_add_u32 m0, m0, 16384\ns_nop 0")
            jj[0] += 1
    a(f"""
    ds_write_b128 v3, v[48:51] offset:{L_XS}
    s_lshl_b32 s3, s62, 10
    s_add_u32 m0, s3, {L1_RAW}
    s_lshl_b32 s66, s2, 10
    s_mov_b32 s67, {L1_YI}
    v_mov_b32 v47, 1
    v_mov_b32 v60, {1<<28}
    s_movk_i32 s10, {HALF}
    s_barrier
    """)
    ld_ef(na)
    a(f"s_add_u32 s59, s59, {WS_EF}")
    srd(a, 36, 18, "s59", CH * 32)
    a(f"s_mul_i32 s58, s2, {CH*12}\ns_add_u32 s58, s58, {WS_YI}")
    srd(a, 40, 18, "s58", CH * 12)
    srd(a, 44, 18, WS_TB, TB_SZ)
    a(f"s_waitcnt vmcnt({8+na})")
    stamp(a, o, 1)
    for i in range(3):
        a(f"v_mul_u32_u24 v{16+i}, {BMUL}, v{4+i}")
    for i in range(3):
        a(f"v_lshrrev_b32 v{16+i}, 20, v{16+i}")
    for i in range(3):
        a(f"v_lshlrev_b32 v{40+i}, 2, v{16+i}")
    a(f"""
    ds_add_rtn_u32 v43, v40, v47 offset:{L1_HIST}
    ds_add_rtn_u32 v44, v41, v47 offset:{L1_HIST}
    s_mov_b64 exec, s[60:61]
    s_cbranch_execz k1_a
    ds_add_rtn_u32 v45, v42, v47 offset:{L1_HIST}
    k1_a:
    s_mov_b64 exec, -1
    """)
    ld_ef(nb)
    for i in range(3):
        a(f"v_mul_u32_u24 v{16+i}, 320007, v{16+i}")
    for i in range(3):
        a(f"v_add_u32 v{16+i}, 8160, v{16+i}")
    for i in range(3):
        a(f"v_lshrrev_b32 v{16+i}, 13, v{16+i}")
    for i in range(3):
        a(f"v_sub_u32 v{4+i}, v{4+i}, v{16+i}")
    for i in range(3):
        a(f"v_lshlrev_b32 v{4+i}, 18, v{4+i}")
    a(f"""
    s_waitcnt lgkmcnt(0)
    s_barrier
    ds_read_b128 v[48:51], v61 offset:{L1_HIST}
    s_waitcnt vmcnt({5+na+nb})
    """)
    for i in range(3):
        a(f"v_cmp_le_u32 s[{4+2*i}:{5+2*i}], s10, v{7+i}")
    for i in range(3):
        a(f"v_cndmask_b32 v{16+i}, 0, v60, s[{4+2*i}:{5+2*i}]")
    for i in range(3):
        a(f"v_or3_b32 v{7+i}, v{7+i}, v{4+i}, v{16+i}")
    a(f"""
    s_waitcnt lgkmcnt(0)
    v_add_u32 v54, v48, v49
    v_add_u32 v55, v54, v50
    v_add_u32 v56, v55, v51
    v_mov_b32 v57, v56
    s_nop 1
    """)
    scan(a, "v_add_u32", [57])
    a(f"""
    v_sub_u32 v52, v57, v56
    v_add_u32 v53, v52, v48
    v_add_u32 v54, v52, v54
    v_add_u32 v55, v52, v55
    ds_write_b128 v61, v[52:55] offset:{L1_ST}
    ds_read_b32 v56, v40 offset:{L1_ST}
    ds_read_b32 v57, v41 offset:{L1_ST}
    ds_read_b32 v58, v42 offset:{L1_ST}
    v_lshl_or_b32 v48, v48, 16, v52
    v_lshl_or_b32 v49, v49, 16, v53
    v_lshl_or_b32 v50, v50, 16, v54
    v_lshl_or_b32 v51, v51, 16, v55
    v_add_u32 v17, 1024, v0
    v_add_u32 v18, 2048, v0
    s_waitcnt lgkmcnt(0)
    """)
    for i in range(3):
        a(f"v_add_u32 v{43+i}, v{43+i}, v{56+i}")
    for i in range(3):
        a(f"v_mad_u32_u24 v{40+i}, v{43+i}, 12, s67")
        a(f"v_lshlrev_b32 v{43+i}, 1, v{43+i}")
    stamp(a, o, 2)
    a(f"""
    ds_write_b16 v43, v0 offset:{L1_INV}
    ds_write_b16 v44, v17 offset:{L1_INV}
    s_waitcnt vmcnt({na+nb})
    """)
    for i in range(2):
        a(f"ds_write2_b32 v{40+i}, v{10+2*i}, v{11+2*i} offset0:0 offset1:1")
        a(f"ds_write_b32 v{40+i}, v{7+i} offset:8")
    a(f"""
    s_mov_b64 exec, s[60:61]
    s_cbranch_execz k1_b
    ds_write_b16 v45, v18 offset:{L1_INV}
    ds_write2_b32 v42, v14, v15 offset0:0 offset1:1
    ds_write_b32 v42, v9 offset:8
    k1_b:
    s_mov_b64 exec, -1
    s_cmp_lg_u32 s62, 0
    s_cbranch_scc1 k1_c
    buffer_store_dwordx4 v[48:51], v61, s[44:47], s66 offen sc1
    s_lshl_b32 s4, s2, 8
    s_add_u32 s4, s4, {TB_MB}
    v_lshlrev_b32 v64, 7, v63
    v_mov_b32 v65, 0
    s_mov_b64 exec, 3
    buffer_store_dword v65, v64, s[44:47], s4 offen sc1
    s_mov_b64 exec, -1
    k1_c:
    """)
    ld_ef(nc)
    a(f"""
    v_and_b32 v1, -2, v0
    v_and_b32 v2, 1, v0
    v_lshlrev_b32 v2, 4, v2
    v_add_u32 v2, {L1_RAW}, v2
    v_and_b32 v4, 31, v63
    v_lshrrev_b32 v5, 5, v63
    v_lshlrev_b32 v4, 2, v4
    v_lshl_add_u32 v4, v5, 10, v4
    v_add_u32 v4, {L1_WR}, v4
    s_waitcnt lgkmcnt(0)
    s_barrier
    ds_read_b128 v[24:27], v3 offset:{L1_YI}
    ds_read_b128 v[28:31], v3 offset:{L1_YI+16384}
    """)
    for j in range(5):
        a(f"ds_read_u16 v{32+j}, v1 offset:{L1_INV+1024*j}")
    for i in range(4):
        a(f"ds_read2_b32 v[{104+2*i}:{105+2*i}], v4 offset0:{64*i} offset1:{64*i+32}")
    a(f"""
    s_waitcnt lgkmcnt(10)
    buffer_store_dwordx4 v[24:27], v3, s[40:43], 0 offen {ST}
    s_waitcnt lgkmcnt(9)
    buffer_store_dwordx4 v[28:31], v3, s[40:43], s54 offen {ST}
    {"s_barrier" if "ybar" in o.exp else ""}
    """)
    ld_ef(nd)
    srd(a, sTB, 18, WS_TB, TB_SZ)
    srd(a, 48, sDP, None, 256)
    a(f"""
    s_cmp_lg_u32 s62, 12
    s_cbranch_scc1 k1_nocg
    v_and_b32 v64, 3, v63
    v_lshlrev_b32 v64, 1, v64
    s_waitcnt lgkmcnt(0)
    """)
    for h in range(2):
        for i in range(8):
            a(f"ds_read_u16 v{66+8*h+i}, v64 offset:{L1_CG+8*(8*h+i)}")
        a("s_waitcnt lgkmcnt(0)")
    for k in range(8):
        a(f"v_lshl_or_b32 v{84+k}, v{67+2*k}, 16, v{66+2*k}")
    a(f"""
    v_add_u32 v64, {L_CG}, v61
    s_mov_b64 exec, 15
    ds_write_b128 v64, v[84:87]
    ds_write_b128 v64, v[88:91] offset:64
    s_mov_b64 exec, -1
    k1_nocg:
    s_mov_b32 s4, 0xbfb8aa3b
    s_mov_b32 s5, 0xffff0000
    s_waitcnt lgkmcnt(0)
    """)
    for j in range(5):
        a(f"v_lshl_add_u32 v{32+j}, v{32+j}, 5, v2")
    for par in range(2):
        for k in range(4):
            for u in range(2):
                if par == 0:
                    a(f"v_lshlrev_b32 v{76+u}, 16, v{104+2*k+u}")
                else:
                    a(f"v_and_b32 v{76+u}, s5, v{104+2*k+u}")
            a(f"""
            v_mul_f32 v76, s4, v76
            v_mul_f32 v77, s4, v77
            v_cvt_pk_bf16_f32 v{W+4*par+k}, v76, v77
            """)
    if o.sig == "ret":
        a(f"s_waitcnt vmcnt({nd})")
        stamp(a, o, 5, True)
        arrive(a, 0, "k1_ns")
        a("s_waitcnt vmcnt(0)")
        if "pb3" in o.exp:
            stamp(a, o, 7, True)
        a(f"""
        s_cmp_eq_u32 s{sSIG}, 0
        s_cbranch_scc1 k1_nb1
        """)
        bcast(a, 0, "k1_nb1")
        a("s_barrier")
        stamp(a, o, 3)
        for j in range(5):
            a(f"ds_read_b128 v[{4+4*j}:{7+4*j}], v{32+j}")
        for j in range(5):
            a(f"s_waitcnt lgkmcnt({4-j})")
            a(f"buffer_store_dwordx4 v[{4+4*j}:{7+4*j}], v3, s[36:39], {so16[j]} offen {ST}")
    else:
        p = o.k1p
        a(f"s_waitcnt vmcnt({2 if nd == 0 else 0})\ns_barrier")
        stamp(a, o, 3)
        for j in range(5):
            a(f"ds_read_b128 v[{4+4*j}:{7+4*j}], v{32+j}")
        a("v_mov_b32 v64, 1")
        for j in range(5):
            if j == p:
                a(f"s_waitcnt vmcnt({p})")
                stamp(a, o, 5, True)
                if not (p == 0 and nd > 0):
                    a("s_barrier")
                a(f"""
                s_cmp_lg_u32 s62, 0
                s_cbranch_scc1 k1_ns
                s_mov_b64 exec, 1
                buffer_atomic_add v64, off, s[48:51], 0 sc1
                s_mov_b64 exec, -1
                k1_ns:
                """)
            a(f"s_waitcnt lgkmcnt({4-j})")
            a(f"buffer_store_dwordx4 v[{4+4*j}:{7+4*j}], v3, s[36:39], {so16[j]} offen {ST}")
    a(f"""
    s_cmp_ge_u32 s63, 4
    s_cbranch_scc1 k1_arr
    s_mov_b32 s4, 0x05040100
    s_mov_b32 s5, 0x07060302
    s_lshl_b32 s58, s63, 11
    s_add_u32 s58, s58, {TB_WM}
    """)
    for k in range(4):
        a(f"v_perm_b32 v{84+k}, v{67+2*k}, v{66+2*k}, s4")
        a(f"v_perm_b32 v{88+k}, v{67+2*k}, v{66+2*k}, s5")
    a(f"""
    buffer_store_dwordx4 v[84:87], v61, s[44:47], s58 offen sc1
    buffer_store_dwordx4 v[88:91], v61, s[44:47], s58 offen offset:1024 sc1
    k1_arr:
    v_mov_b64 v[40:41], 0
    v_mov_b64 v[42:43], 0
    v_mov_b32 v44, {L_EF + CAP*32}
    ds_write_b128 v3, v[40:43] offset:{L_AGG}
    ds_write_b128 v3, v[40:43] offset:{L_AGG+16384}
    s_cmp_ge_u32 s62, 8
    s_cbranch_scc1 k1_z
    ds_write_b128 v3, v[40:43] offset:{L_AGG+32768}
    k1_z:
    s_mov_b64 exec, 1
    ds_write_b128 v44, v[40:43]
    ds_write_b128 v44, v[40:43] offset:16
    s_mov_b64 exec, -1
    """)


def k2(a, o):
    LD = o.k2ld
    XF = o.xld
    vL = VXO
    PW = o.pw
    a(f"""
    v_and_b32 v{vL}, 63, v0
    s_mov_b32 s{sWAVE}, s62
    s_and_b32 s3, s2, 7
    s_lshl_b32 s3, s3, 5
    s_lshr_b32 s10, s2, 3
    s_or_b32 s3, s3, s10
    s_lshl_b32 s{sB4}, s3, 2
    s_mul_i32 s{sN0}, s3, 320007
    s_add_u32 s10, s{sN0}, {320007+8160}
    s_add_u32 s{sN0}, s{sN0}, 8160
    s_lshr_b32 s{sN0}, s{sN0}, 13
    s_lshr_b32 s10, s10, 13
    s_min_u32 s10, s10, {N}
    s_sub_u32 s10, s10, s{sN0}
    s_lshl_b32 s10, s10, 9
    s_lshl_b32 s11, s{sN0}, 9
    s_mov_b32 s{sW0}, 0
    s_mov_b32 s{sONE}, 1.0
    s_mov_b32 s{sONE+1}, 1.0
    s_mov_b32 s{sXNR}, {0 if "nox" in o.exp else N*512}
    s_movk_i32 s{s512}, 512
    s_mov_b64 s[8:9], s[18:19]
    """)
    srd(a, sX, 68, None, N * 512)
    srd(a, sOUT, 70, "s11", "s10")
    srd(a, sYI, 8, WS_YI, E * 12)
    srd(a, sEF, 8, WS_EF, E * 32)
    a("s_waitcnt vmcnt(0)")
    stamp(a, o, 4)
    arrive(a, 128, "k2_ns")
    a(f"""
    s_cmp_eq_u32 s{sSIG}, 0
    s_cbranch_scc1 k2_nb0
    s_waitcnt vmcnt(0)
    """)
    if o.sig == "ret":
        bcast(a, 128, "k2_nb0")
    else:
        a(f"""
        v_readfirstlane_b32 s3, v64
        s_and_b32 s3, s3, {G-1}
        s_mov_b32 s10, {TB_MB + 128}
        s_cmp_eq_u32 s3, {G-1}
        s_cbranch_scc1 k2_bc
        s_cmp_lg_u32 s3, 0
        s_cbranch_scc1 k2_nb0
        s_mov_b64 exec, 1
        k2_wt:
        buffer_load_dword v64, off, s[48:51], 0 sc1
        s_add_u32 s{sSPIN}, s{sSPIN}, 1
        s_waitcnt vmcnt(0)
        v_readfirstlane_b32 s3, v64
        s_and_b32 s3, s3, {G-1}
        s_cbranch_scc0 k2_wtd
        s_cmp_lt_u32 s{sSPIN}, {o.pmax}
        s_cbranch_scc1 k2_wt
        k2_wtd:
        s_mov_b64 exec, -1
        s_mov_b32 s10, {TB_MB}
        k2_bc:
        v_and_b32 v65, 63, v{VTID}
        v_mov_b32 v64, 1
        v_lshlrev_b32 v65, 8, v65
        """)
        for i in range(4):
            a(f"buffer_store_dword v64, v65, s[{sTB}:{sTB+3}], s10 offen sc1")
            if i < 3:
                a("s_add_u32 s10, s10, 16384")
        a("k2_nb0:")
    a(f"s_mov_b32 s{sCG}, {L_CG}")
    if o.timing:
        for i in range(5):
            a(f"s_mov_b32 s{96+i}, s{72+2*i}")
    a(f"""
    s_cmp_lg_u32 s{sWAVE}, {PW}
    s_cbranch_scc1 k2_p1
    """)
    poll(a, o, 0, "k2_pl1")
    stamp(a, o, 6, True)
    a(f"""
    k2_tg:
    v_lshlrev_b32 v2, 10, v{vL}
    v_lshlrev_b32 v1, 2, v{vL}
    s_mov_b32 s3, s{sB4}
    v_add_u32 v1, {L_TT}, v1
    """)
    for i in range(4):
        a(f"buffer_load_dword v{4+i}, v2, s[{sTB}:{sTB+3}], s3 offen sc1")
        if i < 3:
            a("s_add_u32 s3, s3, 65536")
    for i in range(4):
        a(f"s_waitcnt vmcnt({3-i})\nds_write_b32 v1, v{4+i} offset:{256*i}")
    if "pb3" not in o.exp:
        stamp(a, o, 7, True)
    a(f"""
    k2_p1:
    v_lshlrev_b32 v1, 4, v{vL}
    v_add_u32 v1, {L_TT}, v1
    s_mul_i32 s58, s{sWAVE}, {SEG}
    s_add_u32 s59, s58, s{sW0}
    s_waitcnt lgkmcnt(0)
    s_barrier
    """)
    stamp(a, o, 0)
    a(f"""
    ds_read_b128 v[0:3], v1
    v_mul_u32_u24 v12, {4*CH}, v{vL}
    v_add_u32 v13, {CH}, v12
    v_add_u32 v14, {2*CH}, v12
    v_add_u32 v15, {3*CH}, v12
    s_waitcnt lgkmcnt(0)
    """)
    for i in range(4):
        a(f"v_lshrrev_b32 v{4+i}, 16, v{i}")
    for i in range(4):
        a(f"v_and_b32 v{i}, 0xffff, v{i}")
    a(f"""
    v_add_u32 v10, v4, v5
    v_add_u32 v11, v10, v6
    v_add_u32 v16, v11, v7
    v_mov_b32 v17, v16
    """)
    for i in range(4):
        a(f"v_add_u32 v{12+i}, v{12+i}, v{i}")
    scan(a, "v_add_u32", [17])
    a(f"""
    v_sub_u32 v8, v17, v16
    v_readlane_b32 s{sTOT}, v17, 63
    v_add_u32 v9, v8, v4
    v_add_u32 v10, v8, v10
    v_add_u32 v11, v8, v11
    """)
    for i in range(4):
        a(f"v_sub_u32 v{12+i}, v{12+i}, v{8+i}")
    for i in range(4):
        a(f"v_cmp_ge_u32 s[{62+2*i}:{63+2*i}], s59, v{8+i}")
    for i in range(4):
        a(f"v_subrev_u32 v{8+i}, s{sW0}, v{8+i}")
    for i in range(4):
        a(f"v_min_u32 v{8+i}, {CAP}, v{8+i}")
    for i in range(4):
        a(f"v_lshlrev_b32 v{8+i}, 2, v{8+i}")
    for i in range(4):
        a(f"ds_max_u32 v{8+i}, v{12+i} offset:{L_XS}")
    a(f"""
    v_add_u32 v16, s58, v{vL}
    v_lshlrev_b32 v17, 2, v16
    """)
    for i in range(3):
        a(f"ds_read_b32 v{i}, v17 offset:{L_XS+256*i}")
    for i in range(4):
        a(f"v_cndmask_b32 v{4+i}, 0, v{12+i}, s[{62+2*i}:{63+2*i}]")
    a(f"""
    v_max3_u32 v4, v4, v5, v6
    v_max_u32 v3, v4, v7
    s_sub_u32 s{sLIM}, s{sTOT}, s{sW0}
    s_min_u32 s{sLIM}, s{sLIM}, {CAP}
    s_add_u32 s10, s58, {SEG}
    s_min_u32 s10, s10, s{sLIM}
    v_add_u32 v17, 64, v16
    v_add_u32 v18, 128, v16
    v_cmp_gt_u32 s[{sM}:{sM+1}], s10, v16
    v_cmp_gt_u32 s[{sM+2}:{sM+3}], s10, v17
    v_cmp_gt_u32 s[{sM+4}:{sM+5}], s10, v18
    s_waitcnt lgkmcnt(0)
    """)
    scan(a, "v_max_u32", [3, 0, 1, 2])
    a(f"""
    v_readlane_b32 s62, v3, 63
    v_readlane_b32 s63, v0, 63
    v_readlane_b32 s64, v1, 63
    v_lshrrev_b32 v7, 1, v{vL}
    v_lshlrev_b32 v7, 2, v7
    v_add_u32 v8, 128, v7
    s_max_u32 s63, s63, s62
    s_max_u32 s64, s64, s63
    v_max_u32 v0, s62, v0
    v_max_u32 v1, s63, v1
    v_max_u32 v2, s64, v2
    v_mov_b32 v3, 0xf00000
    """)
    for i in range(3):
        a(f"v_add3_u32 v{i}, v{i}, v{16+i}, s{sW0}")
    for i in range(3):
        a(f"v_cndmask_b32 v{i}, v3, v{i}, s[{sM+2*i}:{sM+2*i+1}]")
    for i in range(3):
        a(f"v_mul_u32_u24 v{4+i}, 12, v{i}")
    for i in range(3):
        a(f"buffer_load_dwordx3 v[{20+4*i}:{22+4*i}], v{4+i}, s[{sYI}:{sYI+3}], 0 offen {LD}")
    stamp(a, o, 1)
    for j in range(6):
        a(f"ds_bpermute_b32 v{32+j}, v{7+j%2}, v{j//2}")
    a(f"""
    v_and_b32 v9, 1, v{vL}
    v_lshlrev_b32 v9, 4, v9
    s_lshl_b32 s3, s58, 5
    s_add_u32 m0, s3, {L_EF}
    v_mov_b32 v62, 1
    s_waitcnt lgkmcnt(0)
    """)
    for j in range(6):
        a(f"v_lshl_or_b32 v{32+j}, v{32+j}, 5, v9")

    def dma(j):
        if j == 5:
            a(f"s_mov_b64 exec, {hex((1 << (2*(SEG-160))) - 1)}")
        a(f"buffer_load_dwordx4 v{32+j}, s[{sEF}:{sEF+3}], 0 offen {LD} lds")
        a("s_add_u32 m0, m0, 1024" if j < 5 else "s_mov_b64 exec, -1")
        a("s_nop 0")
    a(f"s_waitcnt vmcnt(0)")
    for i in range(3):
        a(f"v_lshrrev_b32 v{40+i}, 24, v{22+4*i}")
    for i in range(3):
        a(f"v_bfe_u32 v{56+i}, v{22+4*i}, 16, 8")
    for i in range(3):
        a(f"v_lshlrev_b32 v{44+i}, v{40+i}, v62")
    for i in range(3):
        a(f"""
        s_mov_b64 exec, s[{sM+2*i}:{sM+2*i+1}]
        s_cbranch_execz k2_h
        ds_add_rtn_u32 v{59+i}, v{56+i}, v{44+i} offset:{L_CNT}
        """)
    a(f"""
    k2_h:
    s_mov_b64 exec, -1
    s_mov_b32 s3, 0x05040100
    """)
    for i in range(3):
        a(f"v_perm_b32 v{22+4*i}, v{16+i}, v{22+4*i}, s3")
    a(f"""
    v_lshlrev_b32 v0, 2, v{vL}
    """)
    stamp(a, o, 2)
    a(f"""
    s_cmp_lg_u32 s{sWAVE}, {PW}
    s_cbranch_scc1 k2_np2
    s_cmp_lg_u32 s{sW0}, 0
    s_cbranch_scc1 k2_np2
    """)
    poll(a, o, 128, "k2_pl2")
    a("k2_np2:\ns_waitcnt lgkmcnt(0)\ns_barrier")
    stamp(a, o, 3)
    for j in range(6):
        dma(j)
    a(f"""
    ds_read_b32 v64, v0 offset:{L_CNT}
    s_mov_b32 s62, {XHALF}
    """)
    for i in range(3):
        a(f"v_bfe_u32 v{59+i}, v{59+i}, v{40+i}, 16")
    a(f"""
    v_and_b32 v10, 31, v{vL}
    v_lshrrev_b32 v11, 5, v{vL}
    s_waitcnt lgkmcnt(0)
    v_add_u32 v65, 0x10001, v64
    v_and_b32 v65, 0xfffefffe, v65
    v_mov_b32 v66, v65
    v_and_b32 v68, 0xffff, v64
    v_and_b32 v70, 0xffff, v65
    """)
    scan(a, "v_add_u32", [66])
    a(f"""
    v_sub_u32 v67, v66, v65
    v_readlane_b32 s{sP}, v66, 63
    v_lshrrev_b32 v69, 16, v64
    v_lshrrev_b32 v71, 16, v65
    v_cmp_eq_u32 vcc, 0, v68
    s_and_b32 s4, s{sP}, 0xffff
    s_lshr_b32 s5, s{sP}, 16
    s_add_u32 s4, s4, 7
    s_add_u32 s5, s5, 7
    s_lshr_b32 s4, s4, 3
    s_lshr_b32 s5, s5, 3
    v_cndmask_b32 v12, 0, v62, vcc
    s_lshl_b32 s3, s4, 19
    v_add_u32 v67, s3, v67
    ds_write_b32 v0, v12 offset:{L_FLAG}
    """)
    for i in range(3):
        a(f"ds_bpermute_b32 v{i}, v{56+i}, v67")
    a(f"""
    s_lshr_b32 s6, s4, 4
    s_lshr_b32 s7, s5, 4
    s_lshl_b32 s10, s6, 3
    s_lshl_b32 s11, s7, 3
    v_cmp_lt_u32 vcc, s10, v70
    v_cmp_lt_u32 s[68:69], s11, v71
    s_and_b32 s3, s4, 15
    s_mul_i32 s63, s6, s{sWAVE}
    s_min_u32 s10, s3, s{sWAVE}
    s_add_u32 s63, s63, s10
    s_cmp_lt_u32 s{sWAVE}, s3
    s_addc_u32 s64, s6, 0
    s_and_b32 s3, s5, 15
    s_add_u32 s3, s3, s{sWAVE}
    s_mul_i32 s65, s7, s{sWAVE}
    s_sub_u32 s10, s3, 16
    s_max_i32 s10, s10, 0
    s_add_u32 s65, s65, s10
    s_cmp_ge_u32 s3, 16
    s_addc_u32 s66, s7, 0
    s_or_b64 vcc, vcc, s[68:69]
    s_cmp_lg_u64 vcc, 0
    s_cselect_b32 s{sSLOW}, 1, 0
    s_add_u32 s{sNG}, s64, s66
    s_add_u32 s3, s4, s65
    s_add_u32 s10, s63, s64
    s_sub_u32 s10, s10, s4
    s_lshl_b32 s10, s10, 3
    s_lshl_b32 s11, s65, 3
    s_bfm_b64 s[68:69], s64, 0
    s_bfm_b64 vcc, s66, 32
    s_mov_b64 exec, 0xffffffff
    v_add_u32 v12, s63, v10
    v_mov_b32 v13, s11
    s_not_b64 exec, exec
    v_add_u32 v12, s3, v10
    v_mov_b32 v13, s10
    s_mov_b64 exec, -1
    v_lshlrev_b32 v12, 1, v12
    s_or_b64 exec, vcc, s[68:69]
    s_cbranch_execz k2_nosh
    ds_write_b16 v12, v13 offset:{L_SH}
    k2_nosh:
    s_mov_b64 exec, -1
    s_waitcnt lgkmcnt(0)
    """)
    for i in range(3):
        a(f"v_bfe_u32 v{i}, v{i}, v{40+i}, 16")
    for i in range(3):
        a(f"v_add_u32 v{i}, v{i}, v{59+i}")
    a(f"""
    s_mov_b64 s[6:7], 0
    s_cmp_lt_u32 s{sWAVE}, 14
    s_cbranch_scc1 k2_nopad0
    s_sub_u32 s3, s{sWAVE}, 14
    s_mul_i32 s10, s3, s5
    s_add_u32 s10, s10, s4
    s_lshl_b32 s10, s10, 3
    s_lshl_b32 s3, s3, 4
    v_bfe_u32 v12, v64, s3, 16
    v_bfe_u32 v13, v67, s3, 16
    v_subrev_u32 v14, 40, v{vL}
    v_cmp_gt_u32 vcc, 8, v14
    v_max_i32 v14, 0, v14
    v_add3_u32 v3, v12, v13, v14
    v_and_b32 v12, 1, v12
    v_cmp_gt_u32 s[68:69], s10, v3
    v_cmp_eq_u32 s[6:7], 1, v12
    s_and_b64 vcc, vcc, s[68:69]
    s_or_b64 s[6:7], s[6:7], vcc
    k2_nopad0:
    """)
    for i in range(4):
        a(f"v_lshrrev_b32 v{4+i}, 2, v{i}")
    for i in range(4):
        a(f"v_and_b32 v{4+i}, 0x7fe, v{4+i}")
    a("s_barrier")
    for i in range(4):
        a(f"ds_read_i16 v{4+i}, v{4+i} offset:{L_SH}")
    a(f"""
    v_and_b32 v70, 0xffff, v66
    v_lshrrev_b32 v71, 16, v66
    s_lshl_b32 s10, s63, 3
    s_lshl_b32 s11, s65, 3
    v_cmp_lt_u32 s[{sNM}:{sNM+1}], s10, v70
    v_cmp_lt_u32 vcc, 0, v68
    v_cmp_lt_u32 s[{sNB}:{sNB+1}], s11, v71
    v_cmp_lt_u32 s[68:69], 0, v69
    s_mov_b64 s[{sBM}:{sBM+1}], 0
    s_mov_b32 s{sBM+2}, 0
    s_mov_b32 s{sEA}, 0
    s_and_b64 s[{sNM}:{sNM+1}], s[{sNM}:{sNM+1}], vcc
    s_and_b64 s[{sNB}:{sNB+1}], s[{sNB}:{sNB+1}], s[68:69]
    s_mov_b64 s[68:69], s[{sNM}:{sNM+1}]
    s_lshl_b32 s67, s63, 2
    s_add_u32 s67, s67, 1
    s_lshl_b32 s11, s64, 2
    """)

    def bm(tag, vend, cnt):
        a(f"""
        k2_bl{tag}:
        s_ff1_i32_b64 s3, s[68:69]
        s_cmp_lt_i32 s3, 0
        s_cbranch_scc1 k2_bld{tag}
        v_readlane_b32 s10, v{vend}, s3
        s_bitset0_b64 s[68:69], s3
        s_lshr_b32 s10, s10, 1
        s_sub_u32 s10, s10, s67
        s_cmp_ge_u32 s10, s11
        s_cbranch_scc1 k2_bld{tag}
        {f"s_add_u32 s{sEA}, s{sEA}, 1" if cnt else ""}
        s_cmp_ge_u32 s10, 64
        s_cbranch_scc1 k2_bh{tag}
        s_bitset1_b64 s[{sBM}:{sBM+1}], s10
        s_branch k2_bl{tag}
        k2_bh{tag}:
        s_bitset1_b32 s{sBM+2}, s10
        s_branch k2_bl{tag}
        k2_bld{tag}:
        s_sub_u32 s10, s11, 1
        s_cmp_ge_u32 s10, 64
        s_cbranch_scc1 k2_bh2{tag}
        s_bitcmp0_b64 s[{sBM}:{sBM+1}], s10
        s_branch k2_bdone{tag}
        k2_bh2{tag}:
        s_bitcmp0_b32 s{sBM+2}, s10
        k2_bdone{tag}:
        """)
    bm("a", 70, True)
    a(f"""
    s_cselect_b32 s{sOPA}, s3, -1
    s_cmp_eq_u32 s64, 0
    s_cselect_b32 s{sOPA}, -1, s{sOPA}
    s_cmp_ge_i32 s{sOPA}, 0
    s_cselect_b32 s{sPK}, 1, 0
    s_cbranch_scc0 k2_nopk
    s_cmp_ge_u32 s10, 64
    s_cbranch_scc1 k2_pkh
    s_bitset1_b64 s[{sBM}:{sBM+1}], s10
    s_branch k2_nopk
    k2_pkh:
    s_bitset1_b32 s{sBM+2}, s10
    k2_nopk:
    s_mov_b64 s[68:69], s[{sNB}:{sNB+1}]
    s_sub_u32 s67, s65, s64
    s_lshl_b32 s67, s67, 2
    s_add_u32 s67, s67, 1
    s_lshl_b32 s11, s{sNG}, 2
    """)
    bm("b", 71, False)
    a(f"""
    s_cselect_b32 s{sOPEN}, s66, 0
    s_add_u32 s65, s65, s63
    s_waitcnt lgkmcnt(0)
    """)
    for i in range(4):
        a(f"v_add_u32 v{i}, v{i}, v{4+i}")
    for i in range(4):
        a(f"""
        v_and_b32 v{4+i}, 1, v{i}
        v_lshrrev_b32 v{12+i}, 1, v{i}
        v_lshlrev_b32 v{12+i}, 2, v{12+i}
        v_mad_u32_u24 v{4+i}, v{4+i}, s62, v{12+i}
        v_lshlrev_b32 v{i}, 3, v{i}
        """)
    for i in range(3):
        a(f"""
        s_mov_b64 exec, s[{sM+2*i}:{sM+2*i+1}]
        s_cbranch_execz k2_w0
        ds_write_b32 v{4+i}, v{22+4*i} offset:{L_XS}
        ds_write_b64 v{i}, v[{20+4*i}:{21+4*i}] offset:{L_YS}
        """)
    a(f"""
    k2_w0:
    s_mov_b64 exec, s[6:7]
    s_cbranch_execz k2_nopad
    v_mov_b32 v13, {hex(0x7fff | CAP << 16)}
    v_mov_b64 v[14:15], 0
    ds_write_b32 v7, v13 offset:{L_XS}
    ds_write_b64 v3, v[14:15] offset:{L_YS}
    k2_nopad:
    s_mov_b64 exec, -1
    """)
    a(f"""
    s_lshl_b32 s3, s65, 4
    s_add_u32 s3, s3, {L_XS}
    v_mov_b32 v12, s3
    v_mad_u32_u24 v{VX}, v11, s62, v12
    v_lshrrev_b32 v13, 3, v10
    v_lshl_add_u32 v12, v13, 4, v12
    v_and_b32 v13, 3, v10
    v_lshl_add_u32 v12, v13, 2, v12
    v_bfe_u32 v13, v10, 2, 1
    v_mad_u32_u24 v{VEF}, v13, s62, v12
    s_lshl_b32 s3, s65, 6
    s_add_u32 s3, s3, {L_YS}
    v_lshlrev_b32 v12, 3, v11
    v_lshl_add_u32 v12, v10, 4, v12
    v_add_u32 v{VY}, s3, v12
    v_lshlrev_b32 v12, 4, v11
    v_add_u32 v{VHB}, {L_EF}, v12
    v_lshlrev_b32 v{VJ4}, 4, v{vL}
    v_lshlrev_b32 v{VXO}, 4, v10
    """)
    for k in range(4):
        a(f"v_mov_b64 {v(ACC+2*k,2)}, 0")
    a(f"""
    v_and_or_b32 v{ZE+8}, v{VXO}, 48, s{sCG}
    s_mov_b32 s{sREM}, s{sNG}
    s_lshr_b32 s{sTH}, s{sNG}, 1
    s_mov_b32 s{sPR}, 3
    {"s_setprio 3" if "prio" in o.exp else ""}
    s_waitcnt lgkmcnt(0)
    s_barrier
    """)
    XS = f"s[{sX}:{sX+3}]"

    def xadr(r):
        a(f"v_mad_u32_u16 v{r}, v{r}, s{s512}, v{VXO}")

    def efnext(off):
        a(f"""
        v_mad_u32_u16 v{EE}, v{VRI}, 32, v{VHB} op_sel:[1,0,0,0]
        ds_read_b128 {v(EF,4)}, v{EE}
        ds_read_b32 v{VRI}, v{VEF} offset:{off}
        """)
    a(f"""
    ds_read_b128 {v(XI,4)}, v{VX}
    ds_read_b128 {v(XI+4,4)}, v{VX} offset:16
    ds_read_b32 v{VRI}, v{VEF}
    ds_read_b64 {v(YY,2)}, v{VY}
    ds_read_b128 {v(ZE,4)}, v{ZE+8}
    ds_read_b128 {v(ZE+4,4)}, v{ZE+8} offset:64
    s_cmp_gt_u32 s{sREM}, 0
    s_cselect_b32 s{sX+2}, s{sXNR}, 0
    s_waitcnt lgkmcnt(5)
    """)
    for k in range(4):
        xadr(XI + k)
        a(f"buffer_load_dwordx4 {v(X+4*k,4)}, v{XI+k}, {XS}, 0 offen {XF}")
    a(f"""
    s_cmp_gt_u32 s{sREM}, 1
    s_cselect_b32 s{sX+2}, s{sXNR}, 0
    s_waitcnt lgkmcnt(4)
    """)
    def x47():
        for k in range(4, 8):
            xadr(XI + k)
            a(f"buffer_load_dwordx4 {v(X+4*k,4)}, v{XI+k}, {XS}, 0 offen {XF}")
        a(f"ds_read_b128 {v(XI,4)}, v{VX} offset:32")
    if o.nx == 8:
        x47()
    a(f"""
    s_waitcnt vmcnt({o.nx})
    s_barrier
    """)
    stamp(a, o, 4)
    a(f"""
    s_cmp_eq_u32 s{sNG}, 0
    s_cbranch_scc1 k2_done
    s_waitcnt lgkmcnt(0)
    """)
    efnext(64)
    if o.nx == 4:
        x47()

    def group_start(g):
        b = XI + 4 * (g % 2)
        nb = XI + 4 * ((g + 1) % 2)
        if "noadd" in o.exp:
            a("s_nop 3")
        else:
            for k in range(4):
                xadr(b + k)
        a(f"ds_read_b128 {v(nb,4)}, v{VX} offset:{16*(g+3)}")
        a(f"s_cmp_gt_u32 s{sREM}, 2\ns_cselect_b32 s{sX+2}, s{sXNR}, 0")

    def mf(d, ar, br, c):
        a(f"v_mfma_f32_32x32x16_bf16 {v(d,16)}, {v(ar,4)}, {v(br,4)}, {c}")

    def rprol():
        a(f"""
        v_exp_f32 v{EE}, v{ZE}
        v_exp_f32 v{EE+1}, v{ZE+1}
        v_exp_f32 v{EE+2}, v{ZO}
        v_exp_f32 v{EE+3}, v{ZO+1}
        v_pk_add_f32 {v(EE,2)}, {v(EE,2)}, s[{sONE}:{sONE+1}]
        v_pk_add_f32 {v(EE+2,2)}, {v(EE+2,2)}, s[{sONE}:{sONE+1}]
        v_rcp_f32 v{EE}, v{EE}
        v_rcp_f32 v{EE+1}, v{EE+1}
        v_rcp_f32 v{EE+2}, v{EE+2}
        v_rcp_f32 v{EE+3}, v{EE+3}
        v_pk_mul_f32 {v(ZE,2)}, {v(ZE,2)}, {v(EE,2)}
        v_pk_mul_f32 {v(ZO,2)}, {v(ZO,2)}, {v(EE+2,2)}
        """)

    a("k2_blk:")
    for t in range(32):
        g, r = t // 4, t % 16
        if t == 0:
            a("s_waitcnt lgkmcnt(0)")
            for i in range(4):
                a(f"v_mfma_f32_4x4x4_16b_bf16 {v(ZO+4*i,4)}, {v(YY,2)}, {v(ZE+2*i,2)}, 0")
            a(f"ds_read_b64 {v(YY,2)}, v{VY} offset:512")
            a(f"v_add_u32 v{VY}, 512, v{VY}")
            mf(ZE, EF, W, "0")
            for m in range(4):
                a(f"v_cvt_pk_bf16_f32 v{TA+2*m}, v{ZO+m}, v{ZO+4+m}")
            for m in range(4):
                a(f"v_cvt_pk_bf16_f32 v{TA+2*m+1}, v{ZO+8+m}, v{ZO+12+m}")
            mf(ZO, EF, W + 4, "0")
            efnext(128)
            group_start(g)
            a("s_nop 3")
            rprol()
        elif t == 16:
            a("s_waitcnt lgkmcnt(0)")
            mf(ZE, EF, W, "0")
            mf(ZO, EF, W + 4, "0")
            efnext(192)
            a(f"v_add_u32 v{VEF}, 128, v{VEF}")
            group_start(g)
            a("s_nop 2")
            rprol()
        elif t % 4 == 0:
            a("s_waitcnt lgkmcnt(0)")
            group_start(g)
            if t == 28:
                a(f"""
                v_and_or_b32 v{ZE+8}, v{VXO}, 48, s{sCG}
                ds_read_b128 {v(ZE,4)}, v{ZE+8}
                ds_read_b128 {v(ZE+4,4)}, v{ZE+8} offset:64
                """)
        k = t % 8
        xr = X + 4 * k
        ar = TA + 2 * (t % 4)
        p0 = r & ~1
        last = p0 == 14
        tr = "v_exp_f32" if r % 2 == 0 else "v_rcp_f32"

        def trn(e, z):
            if last or "notrans" in o.exp:
                return
            src = z if r % 2 == 0 else e
            a(f"{tr} v{e}, v{src}")

        def mid(e, z):
            if last:
                return
            if "v2mid" in o.exp:
                for u in range(2):
                    a(f"v_add_f32 v{e+u}, 1.0, v{e+u}" if r % 2 == 0 else f"v_mul_f32 v{z+u}, v{z+u}, v{e+u}")
            elif r % 2 == 0:
                a(f"v_pk_add_f32 {v(e,2)}, {v(e,2)}, s[{sONE}:{sONE+1}]")
            else:
                a(f"v_pk_mul_f32 {v(z,2)}, {v(z,2)}, {v(e,2)}")

        sel = "op_sel_hi:[0,1,1]" if r % 2 == 0 else "op_sel:[1,0,0] op_sel_hi:[1,1,1]"

        def fma(acc, z, tp):
            if "nofma" in o.exp:
                return
            if "v2fma" in o.exp:
                for u in range(2):
                    a(f"v_fmac_f32 v{acc+u}, v{z+r%2}, v{tp+u}")
                return
            a(f"v_pk_fma_f32 {v(acc,2)}, {v(z,2)}, {v(tp,2)}, {v(acc,2)} {sel}")

        cb = "" if "nocbsz" in o.exp else f"cbsz:3 abid:{t//4}"
        a("s_waitcnt vmcnt(7)")
        if "nomf" not in o.exp:
            a(f"v_mfma_f32_4x4x4_16b_bf16 {v(TP,4)}, {v(ar,2)}, {v(xr,2)}, 0 {cb}")
        trn(EE, ZE + p0 + 2)
        trn(EE + 1, ZE + p0 + 3)
        if "nomf" not in o.exp:
            a(f"v_mfma_f32_4x4x4_16b_bf16 {v(TP+4,4)}, {v(ar,2)}, {v(xr+2,2)}, 0 {cb}")
        if "noload" not in o.exp:
            a(f"buffer_load_dwordx4 {v(xr,4)}, v{XI+4*(g%2)+t%4}, {XS}, 0 offen {XF}")
        trn(EE + 2, ZO + p0 + 2)
        trn(EE + 3, ZO + p0 + 3)
        mid(EE, ZE + p0 + 2)
        if last:
            a("s_nop 2")
        fma(ACC, ZE + p0, TP)
        fma(ACC + 2, ZE + p0, TP + 2)
        mid(EE + 2, ZO + p0 + 2)
        fma(ACC + 4, ZO + p0, TP + 4)
        fma(ACC + 6, ZO + p0, TP + 6)
        if "nobr" in o.exp:
            a(f"k2_bk{t}:")
        else:
            a(f"s_bitcmp1_b32 s{sBM}, {t}\ns_cbranch_scc1 k2_fl{t}\nk2_bk{t}:")
        if t % 4 == 3:
            if "prio" in o.exp:
                a(f"s_sub_u32 s{sREM}, s{sREM}, 1\ns_cmp_eq_u32 s{sREM}, s{sTH}\ns_cbranch_scc1 k2_th{g}\nk2_tb{g}:")
            else:
                a(f"s_sub_u32 s{sREM}, s{sREM}, 1\ns_cmp_eq_u32 s{sREM}, 0\ns_cbranch_scc1 k2_done")
    a(f"""
    s_mov_b32 s{sBM}, s{sBM+1}
    s_mov_b32 s{sBM+1}, s{sBM+2}
    v_add_u32 v{VX}, 128, v{VX}
    s_branch k2_blk
    """)
    if "prio" in o.exp:
        for g in range(8):
            a(f"k2_th{g}:\ns_cmp_eq_u32 s{sTH}, 0\ns_cbranch_scc1 k2_done\ns_call_b64 s[{sRET}:{sRET+1}], k2_thr\ns_branch k2_tb{g}")
        a(f"""
        k2_thr:
        s_lshr_b32 s{sTH}, s{sTH}, 1
        s_sub_u32 s{sPR}, s{sPR}, 1
        s_cmp_eq_u32 s{sPR}, 2
        s_cbranch_scc1 k2_p2
        s_cmp_eq_u32 s{sPR}, 1
        s_cbranch_scc1 k2_p1x
        s_mov_b32 s{sTH}, 0
        s_setprio 0
        s_setpc_b64 s[{sRET}:{sRET+1}]
        k2_p2:
        s_setprio 2
        s_setpc_b64 s[{sRET}:{sRET+1}]
        k2_p1x:
        s_setprio 1
        s_setpc_b64 s[{sRET}:{sRET+1}]
        """)
    for t in range(32):
        a(f"k2_fl{t}:\ns_call_b64 s[{sRET}:{sRET+1}], k2_flush\ns_branch k2_bk{t}")
    def node_addr(sn):
        a(f"""
        s_lshl_b32 s58, s{sn}, 10
        s_and_b32 s59, s{sn}, 7
        s_lshl_b32 s59, s59, 4
        s_or_b32 s58, s58, s59
        s_lshl_b32 s59, s{sn}, 2
        v_xor_b32 v{TP}, s58, v{VJ4}
        """)

    def reduce_acc(dst):
        for q in range(4):
            a(f"v_permlane32_swap_b32 v{ACC+q}, v{ACC+4+q}")
        a(f"""
        v_pk_add_f32 {v(dst,2)}, {v(ACC,2)}, {v(ACC+4,2)}
        v_pk_add_f32 {v(dst+2,2)}, {v(ACC+2,2)}, {v(ACC+6,2)}
        v_mov_b64 {v(ACC+4,2)}, 0
        v_mov_b64 {v(ACC+6,2)}, 0
        """)

    def rmw(src):
        a(f"""
        v_pk_add_f32 {v(TP+4,2)}, {v(TP+4,2)}, {v(src,2)}
        v_pk_add_f32 {v(TP+6,2)}, {v(TP+6,2)}, {v(src+2,2)}
        v_mov_b64 {v(src,2)}, 0
        v_mov_b64 {v(src+2,2)}, 0
        ds_write_b128 v{TP}, {v(TP+4,4)} offset:{L_AGG}
        """)
    RET = f"s_setpc_b64 s[{sRET}:{sRET+1}]"
    SPIN = ""
    if o.spin:
        SPIN = f"""s_add_u32 s{sSPIN}, s{sSPIN}, 1
        s_cmp_lt_u32 s{sSPIN}, {o.spin}
        s_cbranch_scc1 k2_flw
        s_waitcnt lgkmcnt(0)
        v_mov_b32 v{TP+2}, 1"""
    a(f"""
    k2_flush:
    s_cmp_eq_u32 s{sEA}, 0
    s_cbranch_scc1 k2_flb
    s_sub_u32 s{sEA}, s{sEA}, 1
    s_ff1_i32_b64 s{sCUR}, s[{sNM}:{sNM+1}]
    s_bitset0_b64 s[{sNM}:{sNM+1}], s{sCUR}
    """)
    node_addr(sCUR)
    a(f"ds_read_b128 {v(TP+4,4)}, v{TP} offset:{L_AGG}")
    reduce_acc(ACC)
    a(f"v_mov_b32 v{TP+1}, s59\ns_waitcnt lgkmcnt(0)")
    rmw(ACC)
    a(f"""
    s_mov_b64 exec, 1
    ds_write_b32 v{TP+1}, v{VX} offset:{L_FLAG}
    s_mov_b64 exec, -1
    {RET}
    k2_flb:
    s_cmp_eq_u32 s{sPK}, 0
    s_cbranch_scc1 k2_flb2
    s_mov_b32 s{sPK}, 0
    """)
    reduce_acc(PARK)
    a(f"""
    v_mov_b64 {v(ACC,2)}, 0
    v_mov_b64 {v(ACC+2,2)}, 0
    {RET}
    k2_flb2:
    s_ff1_i32_b64 s{sCUR}, s[{sNB}:{sNB+1}]
    s_bitset0_b64 s[{sNB}:{sNB+1}], s{sCUR}
    """)
    node_addr(sCUR)
    a(f"""
    v_mov_b32 v{TP+1}, s59
    ds_read_b32 v{TP+2}, v{TP+1} offset:{L_FLAG}
    ds_read_b128 {v(TP+4,4)}, v{TP} offset:{L_AGG}
    """)
    reduce_acc(ACC)
    a(f"""
    k2_flw:
    s_waitcnt lgkmcnt(0)
    v_cmp_eq_u32 vcc, 0, v{TP+2}
    s_cbranch_vccnz k2_flr
    """)
    rmw(ACC)
    a(f"""
    {RET}
    k2_flr:
    ds_read_b32 v{TP+2}, v{TP+1} offset:{L_FLAG}
    ds_read_b128 {v(TP+4,4)}, v{TP} offset:{L_AGG}
    {SPIN}
    s_branch k2_flw
    k2_opena:
    s_cmp_lt_i32 s{sOPA}, 0
    s_cbranch_scc1 k2_openret
    """)
    node_addr(sOPA)
    a(f"""
    s_cmp_eq_u32 s{sSLOW}, 0
    s_cbranch_scc0 k2_opas
    ds_read_b128 {v(TP+4,4)}, v{TP} offset:{L_AGG}
    s_waitcnt lgkmcnt(0)
    """)
    rmw(PARK)
    a(f"{RET}\nk2_opas:")
    for q in range(4):
        a(f"ds_add_f32 v{TP}, v{PARK+q} offset:{L_AGG+4*q}")
    a(f"""
    {RET}
    k2_open:
    s_cmp_eq_u32 s{sOPEN}, 0
    s_cbranch_scc1 k2_openret
    s_cmp_eq_u64 s[{sNB}:{sNB+1}], 0
    s_cbranch_scc1 k2_openret
    s_cmp_eq_u32 s{sSLOW}, 0
    s_cbranch_scc1 k2_flb2
    s_ff1_i32_b64 s{sCUR}, s[{sNB}:{sNB+1}]
    """)
    node_addr(sCUR)
    reduce_acc(ACC)
    for q in range(4):
        a(f"ds_add_f32 v{TP}, v{ACC+q} offset:{L_AGG+4*q}")
    a(f"""
    k2_openret:
    {RET}
    """)
    a(f"""
    k2_done:
    s_waitcnt vmcnt(0)
    s_add_u32 s{sW0}, s{sW0}, {CAP}
    v_and_b32 v{vL}, 63, v{VTID}
    s_cmp_lt_u32 s{sW0}, s{sTOT}
    s_cbranch_scc0 k2_last
    s_waitcnt lgkmcnt(0)
    s_barrier
    s_call_b64 s[{sRET}:{sRET+1}], k2_opena
    s_waitcnt lgkmcnt(0)
    s_barrier
    s_call_b64 s[{sRET}:{sRET+1}], k2_open
    s_waitcnt lgkmcnt(0)
    s_barrier
    v_lshlrev_b32 v1, 4, v{VTID}
    v_mov_b64 v[8:9], 0
    v_mov_b64 v[10:11], 0
    ds_write_b128 v1, v[8:11] offset:{L_XS}
    s_cmp_lg_u32 s{sWAVE}, {PW}
    s_cbranch_scc1 k2_p1
    s_branch k2_tg
    k2_last:
    """)
    stamp(a, o, 5)
    a(f"""
    s_cmp_ge_u32 s{sWAVE}, 5
    s_cbranch_scc1 k2_nowm
    v_lshlrev_b32 v64, 4, v{vL}
    s_mov_b32 s58, {TB_WM}
    s_mov_b32 s59, {TB_WM+4096}
    """)
    for q in range(8):
        a(f"buffer_load_dwordx4 {v(4*q,4)}, v64, s[{sTB}:{sTB+3}], s{58+q//4} offen offset:{1024*(q%4)} sc1")
    a(f"""
    k2_nowm:
    v_and_b32 v64, 31, v{vL}
    v_lshrrev_b32 v65, 5, v{vL}
    v_lshrrev_b32 v66, 2, v64
    v_mul_u32_u24 v66, 1040, v66
    v_lshl_add_u32 v66, v65, 7, v66
    v_and_b32 v67, 3, v64
    v_lshl_add_u32 v66, v67, 2, v66
    s_lshl_b32 s3, s{sWAVE}, 13
    v_add_u32 v113, s3, v66
    v_lshlrev_b32 v64, 4, v64
    v_lshl_add_u32 v112, v65, 9, v64
    """)
    for i in range(1, 8):
        a(f"v_xor_b32 v{113+i}, {16*i}, v113")
    a(f"""
    s_lshl_b32 s3, s{sWAVE}, 12
    s_mov_b32 s10, 0xbf317218
    s_mov_b32 s11, 0xbf317218
    s_waitcnt lgkmcnt(0)
    s_barrier
    """)
    stamp(a, o, 6)
    a(f"""
    s_call_b64 s[{sRET}:{sRET+1}], k2_opena
    s_waitcnt lgkmcnt(0)
    s_barrier
    s_call_b64 s[{sRET}:{sRET+1}], k2_open
    s_waitcnt lgkmcnt(0)
    s_barrier
    s_cmp_ge_u32 s{sWAVE}, 5
    s_cbranch_scc1 {"k2_tm" if o.timing else "k2_end"}
    """)
    for i in range(8):
        for u in range(2):
            a(f"ds_read2st64_b32 {v(32+4*i+2*u,2)}, v{113+i} offset0:{2*u} offset1:{2*u+1}")
    for k in range(4):
        a(f"s_waitcnt lgkmcnt({12-4*k})")
        for r in range(32 + 8 * k, 40 + 8 * k, 2):
            a(f"v_pk_mul_f32 {v(r,2)}, {v(r,2)}, s[10:11]")
        for sx in range(4):
            a(f"v_cvt_pk_bf16_f32 v{64+4*sx+k}, v{32+8*k+sx}, v{36+8*k+sx}")
    a("s_waitcnt vmcnt(0)\ns_nop 0")
    for sx in range(4):
        mf(80, 64 + 4 * sx, 8 * sx, "0" if sx == 0 else v(80, 16))
        mf(96, 64 + 4 * sx, 8 * sx + 4, "0" if sx == 0 else v(96, 16))
    a("s_nop 10")
    for rq in range(4):
        b = 32 + 4 * rq
        a(f"""
        v_cvt_pk_bf16_f32 v{b}, v{80+4*rq}, v{81+4*rq}
        v_cvt_pk_bf16_f32 v{b+1}, v{82+4*rq}, v{83+4*rq}
        v_cvt_pk_bf16_f32 v{b+2}, v{96+4*rq}, v{97+4*rq}
        v_cvt_pk_bf16_f32 v{b+3}, v{98+4*rq}, v{99+4*rq}
        buffer_store_dwordx4 {v(b,4)}, v112, s[{sOUT}:{sOUT+3}], s3 offen offset:{1024*rq} {o.outst}
        """)
    if o.timing:
        a("k2_tm:\ns_waitcnt vmcnt(0)")
        stamp(a, o, 7)
        a(f"s_mov_b64 exec, 1")
        stamp_store(a, o, 1, 8, 8, sWAVE)
        stamp_store(a, o, 0, 5, 8, sWAVE, lambda i: 96 + i)
    a("k2_end:\ns_endpgm")


def desc(name, vg, sg):
    return f""".p2align 6
.amdhsa_kernel {name}
  .amdhsa_next_free_vgpr {vg}
  .amdhsa_next_free_sgpr {sg}
  .amdhsa_accum_offset {(vg+3)//4*4}
  .amdhsa_group_segment_fixed_size 0
  .amdhsa_kernarg_size 88
  .amdhsa_user_sgpr_count 2
  .amdhsa_user_sgpr_kernarg_segment_ptr 1
  .amdhsa_system_sgpr_workgroup_id_x 1
.end_amdhsa_kernel
"""


def main():
    p = argparse.ArgumentParser()
    p.add_argument("-o", default="cdna_kernels/" + NAME + ".s")
    p.add_argument("--timing", action="store_true")
    p.add_argument("--k1ld", default="nt")
    p.add_argument("--k1st", default="sc1")
    p.add_argument("--k2ld", default="sc1")
    p.add_argument("--xld", default="")
    p.add_argument("--outst", default="sc1")
    p.add_argument("--exp", default="prio")
    p.add_argument("--spin", type=int, default=0)
    p.add_argument("--psl", type=int, default=4)
    p.add_argument("--pmax", type=int, default=20000)
    p.add_argument("--k1n", default="3,2,0")
    p.add_argument("--pw", type=int, default=0)
    p.add_argument("--sig", default="watch")
    p.add_argument("--k1p", type=int, default=1)
    p.add_argument("--nx", type=int, default=4)
    o = p.parse_args()
    o.exp = set(o.exp.split(","))
    K = NAME + "_kernel"
    a = A()
    o.ph2 = True
    k1(a, o)
    k2(a, o)
    t = f"""; TFN tensor-product message passing in one launch of 256 co-resident workgroups.
; @launch grid=({G},1,1) block=(1024,1,1) lds={LDS_SZ}
.amdgcn_target "amdgcn-amd-amdhsa--gfx950"
.text
.globl {K}
.p2align 8
.type {K},@function
{K}:
{a.text()}
.section .rodata,"a"
{desc(K, 128, 102)}"""
    open(o.o, "w").write(t)


main()
```

```python
import sys, argparse

NAME = "gather_scatter__tensor_product_equiv_tfn__graph"
E, N = 640000, 10000
G, CH = 256, 2500
BMUL = 26843
WS_EF = 0
WS_YI = E * 32
WS_TB = WS_YI + E * 12
TB_WM = 262144
TB_MB = TB_WM + 8192
TB_SZ = TB_MB + 65536
WS_TM = WS_TB + 524288
HALF = 5000
L1_HIST, L1_ST, L1_INV, L1_YI = 0, 1024, 2048, 7168
L1_RAW = 81920
L1_WR, L1_CG = 37376, 39424
LDS_SZ = 163840
CAP, C = 2720, 2816
SEG = 170
L_AGG = 0
L_XS = 40960
XHALF = C // 2 * 4
L_CNT = L_XS + C * 4
L_FLAG = L_CNT + 256
L_SH = L_FLAG + 256
L_YS = L_SH + C // 8 * 2
L_CG = L_YS + C * 8
L_EF = L_CG + 128
L_SZ = L_EF + (CAP + 1) * 32
L_TT = L_EF
assert L_SZ <= 163840 and L_CG % 64 == 0 and XHALF % 16 == 0 and L_YS % 16 == 0 and L_EF % 16 == 0
assert L_CG >= 65536 and SEG * 16 == CAP


class A:
    def __init__(s):
        s.l = []

    def __call__(s, t):
        for x in t.strip("\n").split("\n"):
            x = x.strip()
            if x:
                s.l.append(x if x.endswith(":") else "    " + x)

    def text(s):
        return "\n".join(s.l) + "\n"


def v(a, n=1):
    return f"v{a}" if n == 1 else f"v[{a}:{a+n-1}]"


def s(a, n=1):
    return f"s{a}" if n == 1 else f"s[{a}:{a+n-1}]"


def srd(a, r, ptr, off, nr):
    if off is None:
        a(f"s_mov_b32 s{r}, s{ptr}\ns_mov_b32 s{r+1}, s{ptr+1}")
    else:
        a(f"s_add_u32 s{r}, s{ptr}, {off}\ns_addc_u32 s{r+1}, s{ptr+1}, 0")
    a(f"s_mov_b32 s{r+2}, {nr}\ns_mov_b32 s{r+3}, 0x20000")


DPPS = ["row_shr:1 row_mask:0xf bank_mask:0xf bound_ctrl:1",
        "row_shr:2 row_mask:0xf bank_mask:0xf bound_ctrl:1",
        "row_shr:4 row_mask:0xf bank_mask:0xf bound_ctrl:1",
        "row_shr:8 row_mask:0xf bank_mask:0xf bound_ctrl:1",
        "row_bcast:15 row_mask:0xa bank_mask:0xf",
        "row_bcast:31 row_mask:0xc bank_mask:0xf"]


def scan(a, op, regs):
    for d in DPPS:
        for r in regs:
            a(f"{op}_dpp v{r}, v{r}, v{r} {d}")
        if len(regs) < 3:
            a(f"s_nop {2 - len(regs)}")


def stamp(a, o, i, alt=False):
    sets = [x for x in ("pst", "pc", "pd") if x in o.exp]
    alt = "pst" if alt is True else alt
    if sets and i >= 5 and not alt:
        return
    if alt and alt not in sets:
        return
    if o.timing:
        a(f"{'s_memtime' if 'clk' in o.exp else 's_memrealtime'} s[{72+2*i}:{73+2*i}]")


def stamp_store(a, o, kern, n, ptr, sw, reg=lambda i: 72 + 2 * i):
    if not o.timing:
        return
    a(f"""
    s_waitcnt lgkmcnt(0)
    s_lshl_b32 s3, s2, 4
    s_add_u32 s3, s3, s{sw}
    s_lshl_b32 s3, s3, 6
    s_add_u32 s3, s3, {WS_TM + kern*262144}
    """)
    srd(a, 68, ptr, "s3", 64)
    a("s_nop 4\nv_mov_b32 v0, 0")
    for i in range(n):
        a(f"v_mov_b32 v1, s{reg(i)}\nbuffer_store_dword v1, v0, s[68:71], 0 offen offset:{4*i}\ns_nop 1")


X, ZE, ZO, TA, TP, ACC, EE, W, EF, YY, XI = 0, 32, 48, 64, 72, 80, 88, 92, 108, 112, 114
PARK, VRI, VHB = 100, 104, 105
VXO, VX, VY, VEF, VJ4, VTID = 122, 123, 124, 125, 126, 127
sX, sEF, sYI, sTB, sOUT = 12, 16, 20, 24, 28
sWAVE, sB4, sN0, sW0, sTOT, sLIM, sP = 32, 33, 34, 35, 36, 37, 38
sNG = 39
sONE, sXNR, sREM, sBM, sNM, sCUR, sCG = 40, 42, 43, 44, 48, 50, 51
sM = 52
sRET = 60
sSLOW, sOPEN = 47, 70
sTH, sPR = 71, 11
sNB, sEA, sOPA, sPK, s512 = 88, 90, 91, 92, 93
sDP, sSPIN, sSIG = 94, 101, 94


def bcast(a, word, tag):
    a(f"""
    v_readfirstlane_b32 s3, v64
    s_and_b32 s3, s3, {G-1}
    s_cmp_lg_u32 s3, {G-1}
    s_cbranch_scc1 {tag}
    v_and_b32 v65, 63, v{VTID}
    v_mov_b32 v64, 1
    v_lshlrev_b32 v65, 8, v65
    s_mov_b32 s3, {TB_MB + word}
    """)
    for i in range(4):
        a(f"buffer_store_dword v64, v65, s[{sTB}:{sTB+3}], s3 offen sc1")
        if i < 3:
            a("s_add_u32 s3, s3, 16384")
    a(f"{tag}:")


def arrive(a, word, tag):
    a(f"""
    v_mov_b32 v64, 1
    v_mov_b32 v65, {L_FLAG + word // 32}
    s_mov_b32 s{sSIG}, 0
    s_mov_b64 exec, 1
    ds_add_rtn_u32 v65, v65, v64
    s_waitcnt lgkmcnt(0)
    v_readfirstlane_b32 s3, v65
    s_cmp_lg_u32 s3, 15
    s_cbranch_scc1 {tag}
    buffer_atomic_add v64, off, s[48:51], 0 offset:{word} sc0 sc1
    s_mov_b32 s{sSIG}, 1
    {tag}:
    s_mov_b64 exec, -1
    """)


def poll(a, o, word, tag):
    a(f"""
    s_lshl_b32 s3, s2, 8
    s_add_u32 s3, s3, {TB_MB + word}
    v_mov_b32 v{EE}, 0
    s_mov_b64 exec, 1
    {tag}:
    buffer_load_dword v{EE}, off, s[{sTB}:{sTB+3}], s3 sc1
    s_add_u32 s{sSPIN}, s{sSPIN}, 1
    {f"s_sleep {o.psl}" if o.psl and o.pd > 1 else ""}
    s_waitcnt vmcnt({o.pd - 1})
    v_readfirstlane_b32 s10, v{EE}
    s_cmp_eq_u32 s10, 1
    s_cbranch_scc1 {tag}d
    s_cmp_ge_u32 s{sSPIN}, {o.pmax}
    s_cbranch_scc1 {tag}d
    {f"s_sleep {o.psl}" if o.psl and o.pd == 1 else ""}
    s_branch {tag}
    {tag}d:
    s_mov_b64 exec, -1
    """)


def k1(a, o):
    LD = o.k1ld
    ST = o.k1st
    na, nb, nc = [int(x) for x in o.k1n.split(",")]
    nd = 5 - na - nb - nc
    a(f"""
    s_cmp_ge_u32 s2, {G}
    s_cbranch_scc1 k2_end
    """)
    stamp(a, o, 0)
    a(f"""
    s_load_dwordx4 s[4:7], s[0:1], 8
    s_load_dwordx4 s[8:11], s[0:1], 24
    s_load_dwordx4 s[12:15], s[0:1], 40
    s_load_dwordx2 s[16:17], s[0:1], 56
    s_load_dwordx2 s[18:19], s[0:1], 80
    s_load_dwordx2 s[68:69], s[0:1], 0
    s_load_dwordx2 s[70:71], s[0:1], 64
    s_load_dwordx2 s[{sDP}:{sDP+1}], s[0:1], 72
    v_lshlrev_b32 v1, 2, v0
    v_lshlrev_b32 v2, 3, v0
    v_lshlrev_b32 v3, 4, v0
    v_and_b32 v46, 0x3fc, v1
    v_mov_b64 v[48:49], 0
    v_mov_b64 v[50:51], 0
    v_lshrrev_b32 v62, 6, v0
    v_and_b32 v63, 63, v0
    ds_write_b32 v46, v48 offset:{L1_HIST}
    v_readfirstlane_b32 s62, v62
    v_cmp_gt_u32 vcc, {CH - 2048}, v0
    v_mov_b32 v{VTID}, v0
    s_movk_i32 s52, 4096
    s_movk_i32 s53, 8192
    s_movk_i32 s54, 16384
    s_mov_b32 s55, 32768
    s_mov_b32 s56, 65536
    s_mov_b32 s57, 49152
    s_mov_b64 s[60:61], vcc
    s_mul_i32 s3, s2, {CH*4}
    s_mul_i32 s58, s2, {CH*8}
    s_mul_i32 s59, s2, {CH*32}
    s_mov_b32 s{sSPIN}, 0
    s_cmp_lt_u32 s2, 4
    s_cselect_b32 s63, s2, 6
    s_cmp_eq_u32 s62, 13
    s_cselect_b32 s63, s63, 6
    s_waitcnt lgkmcnt(0)
    """)
    srd(a, 24, 6, "s3", CH * 4)
    a(f"""
    s_cmp_ge_u32 s63, 4
    s_cbranch_scc1 k1_noimg0
    v_and_b32 v64, 31, v63
    v_lshrrev_b32 v65, 5, v63
    v_lshlrev_b32 v64, 2, v64
    """)
    srd(a, 48, 16, None, 8192)
    a(f"""
    v_lshl_add_u32 v64, v65, 11, v64
    s_and_b32 s64, s63, 1
    s_lshl_b32 s64, s64, 12
    s_lshr_b32 s65, s63, 1
    s_lshl_b32 s65, s65, 7
    s_add_u32 s64, s64, s65
    """)
    for i in range(8):
        a(f"buffer_load_dword v{66+i}, v64, s[48:51], s64 offen offset:{256*i}")
    a("k1_noimg0:")
    so4 = ["0", "s52", "s53"]
    so8 = ["0", "s53", "s54"]
    so16 = ["0", "s54", "s55", "s57", "s56"]
    for i in range(3):
        a(f"buffer_load_dword v{4+i}, v1, s[24:27], {so4[i]} offen {LD}")
    srd(a, 20, 4, "s3", CH * 4)
    srd(a, 28, 8, "s58", CH * 8)
    srd(a, 36, 12, None, 2048)
    srd(a, 40, 14, None, 128)
    for i in range(3):
        a(f"buffer_load_dword v{7+i}, v1, s[20:23], {so4[i]} offen {LD}")
    a(f"""
    v_lshlrev_b32 v61, 4, v63
    s_lshl_b32 s64, s62, 7
    s_add_u32 m0, s64, {L1_WR}
    s_mov_b64 exec, 0xff
    buffer_load_dwordx4 v61, s[36:39], s64 offen lds
    s_mov_b32 m0, {L1_CG}
    s_nop 0
    buffer_load_dwordx4 v61, s[40:43], 0 offen lds
    s_mov_b64 exec, -1
    """)
    for i in range(3):
        a(f"buffer_load_dwordx2 v[{10+2*i}:{11+2*i}], v2, s[28:31], {so8[i]} offen {LD}")
    srd(a, 32, 10, "s59", CH * 32)
    jj = [0]

    def ld_ef(n):
        for _ in range(n):
            j = jj[0]
            a(f"buffer_load_dwordx4 v3, s[32:35], {so16[j]} offen {LD} lds")
            if j < 4:
                a("s_add_u32 m0, m0, 16384\ns_nop 0")
            jj[0] += 1
    a(f"""
    ds_write_b128 v3, v[48:51] offset:{L_XS}
    s_lshl_b32 s3, s62, 10
    s_add_u32 m0, s3, {L1_RAW}
    s_lshl_b32 s66, s2, 10
    s_mov_b32 s67, {L1_YI}
    v_mov_b32 v47, 1
    v_mov_b32 v60, {1<<28}
    s_movk_i32 s10, {HALF}
    s_barrier
    """)
    ld_ef(na)
    a(f"s_add_u32 s59, s59, {WS_EF}")
    srd(a, 36, 18, "s59", CH * 32)
    a(f"s_mul_i32 s58, s2, {CH*12}\ns_add_u32 s58, s58, {WS_YI}")
    srd(a, 40, 18, "s58", CH * 12)
    srd(a, 44, 18, WS_TB, TB_SZ)
    a(f"s_waitcnt vmcnt({8+na})")
    stamp(a, o, 1)
    for i in range(3):
        a(f"v_mul_u32_u24 v{16+i}, {BMUL}, v{4+i}")
    for i in range(3):
        a(f"v_lshrrev_b32 v{16+i}, 20, v{16+i}")
    for i in range(3):
        a(f"v_lshlrev_b32 v{40+i}, 2, v{16+i}")
    a(f"""
    ds_add_rtn_u32 v43, v40, v47 offset:{L1_HIST}
    ds_add_rtn_u32 v44, v41, v47 offset:{L1_HIST}
    s_mov_b64 exec, s[60:61]
    s_cbranch_execz k1_a
    ds_add_rtn_u32 v45, v42, v47 offset:{L1_HIST}
    k1_a:
    s_mov_b64 exec, -1
    """)
    ld_ef(nb)
    for i in range(3):
        a(f"v_mul_u32_u24 v{16+i}, 320007, v{16+i}")
    for i in range(3):
        a(f"v_add_u32 v{16+i}, 8160, v{16+i}")
    for i in range(3):
        a(f"v_lshrrev_b32 v{16+i}, 13, v{16+i}")
    for i in range(3):
        a(f"v_sub_u32 v{4+i}, v{4+i}, v{16+i}")
    for i in range(3):
        a(f"v_lshlrev_b32 v{4+i}, 18, v{4+i}")
    a(f"""
    s_waitcnt lgkmcnt(0)
    s_barrier
    ds_read_b128 v[48:51], v61 offset:{L1_HIST}
    s_waitcnt vmcnt({5+na+nb})
    """)
    for i in range(3):
        a(f"v_cmp_le_u32 s[{4+2*i}:{5+2*i}], s10, v{7+i}")
    for i in range(3):
        a(f"v_cndmask_b32 v{16+i}, 0, v60, s[{4+2*i}:{5+2*i}]")
    for i in range(3):
        a(f"v_or3_b32 v{7+i}, v{7+i}, v{4+i}, v{16+i}")
    a(f"""
    s_waitcnt lgkmcnt(0)
    v_add_u32 v54, v48, v49
    v_add_u32 v55, v54, v50
    v_add_u32 v56, v55, v51
    v_mov_b32 v57, v56
    s_nop 1
    """)
    scan(a, "v_add_u32", [57])
    a(f"""
    v_sub_u32 v52, v57, v56
    v_add_u32 v53, v52, v48
    v_add_u32 v54, v52, v54
    v_add_u32 v55, v52, v55
    ds_write_b128 v61, v[52:55] offset:{L1_ST}
    ds_read_b32 v56, v40 offset:{L1_ST}
    ds_read_b32 v57, v41 offset:{L1_ST}
    ds_read_b32 v58, v42 offset:{L1_ST}
    v_lshl_or_b32 v48, v48, 16, v52
    v_lshl_or_b32 v49, v49, 16, v53
    v_lshl_or_b32 v50, v50, 16, v54
    v_lshl_or_b32 v51, v51, 16, v55
    v_add_u32 v17, 1024, v0
    v_add_u32 v18, 2048, v0
    s_waitcnt lgkmcnt(0)
    """)
    for i in range(3):
        a(f"v_add_u32 v{43+i}, v{43+i}, v{56+i}")
    for i in range(3):
        a(f"v_mad_u32_u24 v{40+i}, v{43+i}, 12, s67")
        a(f"v_lshlrev_b32 v{43+i}, 1, v{43+i}")
    stamp(a, o, 2)
    a(f"""
    ds_write_b16 v43, v0 offset:{L1_INV}
    ds_write_b16 v44, v17 offset:{L1_INV}
    s_waitcnt vmcnt({na+nb})
    """)
    for i in range(2):
        a(f"ds_write2_b32 v{40+i}, v{10+2*i}, v{11+2*i} offset0:0 offset1:1")
        a(f"ds_write_b32 v{40+i}, v{7+i} offset:8")
    a(f"""
    s_mov_b64 exec, s[60:61]
    s_cbranch_execz k1_b
    ds_write_b16 v45, v18 offset:{L1_INV}
    ds_write2_b32 v42, v14, v15 offset0:0 offset1:1
    ds_write_b32 v42, v9 offset:8
    k1_b:
    s_mov_b64 exec, -1
    s_cmp_lg_u32 s62, 0
    s_cbranch_scc1 k1_c
    buffer_store_dwordx4 v[48:51], v61, s[44:47], s66 offen sc1
    s_lshl_b32 s4, s2, 8
    s_add_u32 s4, s4, {TB_MB}
    v_lshlrev_b32 v64, 7, v63
    v_mov_b32 v65, 0
    s_mov_b64 exec, 3
    buffer_store_dword v65, v64, s[44:47], s4 offen sc1
    s_mov_b64 exec, -1
    k1_c:
    """)
    ld_ef(nc)
    a(f"""
    v_and_b32 v1, -2, v0
    v_and_b32 v2, 1, v0
    v_lshlrev_b32 v2, 4, v2
    v_add_u32 v2, {L1_RAW}, v2
    v_and_b32 v4, 31, v63
    v_lshrrev_b32 v5, 5, v63
    v_lshlrev_b32 v4, 2, v4
    v_lshl_add_u32 v4, v5, 10, v4
    v_add_u32 v4, {L1_WR}, v4
    s_waitcnt lgkmcnt(0)
    s_barrier
    ds_read_b128 v[24:27], v3 offset:{L1_YI}
    ds_read_b128 v[28:31], v3 offset:{L1_YI+16384}
    """)
    for j in range(5):
        a(f"ds_read_u16 v{32+j}, v1 offset:{L1_INV+1024*j}")
    for i in range(4):
        a(f"ds_read2_b32 v[{104+2*i}:{105+2*i}], v4 offset0:{64*i} offset1:{64*i+32}")
    a(f"""
    s_waitcnt lgkmcnt(10)
    buffer_store_dwordx4 v[24:27], v3, s[40:43], 0 offen {ST}
    s_waitcnt lgkmcnt(9)
    buffer_store_dwordx4 v[28:31], v3, s[40:43], s54 offen {ST}
    {"s_barrier" if "ybar" in o.exp else ""}
    """)
    ld_ef(nd)
    srd(a, sTB, 18, WS_TB, TB_SZ)
    srd(a, 48, sDP, None, 256)
    a(f"""
    s_cmp_lg_u32 s62, 12
    s_cbranch_scc1 k1_nocg
    v_and_b32 v64, 3, v63
    v_lshlrev_b32 v64, 1, v64
    s_waitcnt lgkmcnt(0)
    """)
    for h in range(2):
        for i in range(8):
            a(f"ds_read_u16 v{66+8*h+i}, v64 offset:{L1_CG+8*(8*h+i)}")
        a("s_waitcnt lgkmcnt(0)")
    for k in range(8):
        a(f"v_lshl_or_b32 v{84+k}, v{67+2*k}, 16, v{66+2*k}")
    a(f"""
    v_add_u32 v64, {L_CG}, v61
    s_mov_b64 exec, 15
    ds_write_b128 v64, v[84:87]
    ds_write_b128 v64, v[88:91] offset:64
    s_mov_b64 exec, -1
    k1_nocg:
    s_mov_b32 s4, 0xbfb8aa3b
    s_mov_b32 s5, 0xffff0000
    s_waitcnt lgkmcnt(0)
    """)
    for j in range(5):
        a(f"v_lshl_add_u32 v{32+j}, v{32+j}, 5, v2")
    for par in range(2):
        for k in range(4):
            for u in range(2):
                if par == 0:
                    a(f"v_lshlrev_b32 v{76+u}, 16, v{104+2*k+u}")
                else:
                    a(f"v_and_b32 v{76+u}, s5, v{104+2*k+u}")
            a(f"""
            v_mul_f32 v76, s4, v76
            v_mul_f32 v77, s4, v77
            v_cvt_pk_bf16_f32 v{W+4*par+k}, v76, v77
            """)
    if o.sig == "ret":
        a(f"s_waitcnt vmcnt({nd})")
        stamp(a, o, 5, True)
        arrive(a, 0, "k1_ns")
        a("s_waitcnt vmcnt(0)")
        if "pb3" in o.exp:
            stamp(a, o, 7, True)
        a(f"""
        s_cmp_eq_u32 s{sSIG}, 0
        s_cbranch_scc1 k1_nb1
        """)
        bcast(a, 0, "k1_nb1")
        a("s_barrier")
        stamp(a, o, 3)
        for j in range(5):
            a(f"ds_read_b128 v[{4+4*j}:{7+4*j}], v{32+j}")
        for j in range(5):
            a(f"s_waitcnt lgkmcnt({4-j})")
            a(f"buffer_store_dwordx4 v[{4+4*j}:{7+4*j}], v3, s[36:39], {so16[j]} offen {ST}")
    else:
        p = o.k1p
        a(f"s_waitcnt vmcnt({2 if nd == 0 else 0})\ns_barrier")
        stamp(a, o, 3)
        for j in range(5):
            a(f"ds_read_b128 v[{4+4*j}:{7+4*j}], v{32+j}")
        a("v_mov_b32 v64, 1")
        for j in range(5):
            if j == p:
                a(f"s_waitcnt vmcnt({p})")
                stamp(a, o, 5, True)
                if not (p == 0 and nd > 0):
                    a("s_barrier")
                a(f"""
                s_cmp_lg_u32 s62, 0
                s_cbranch_scc1 k1_ns
                s_mov_b64 exec, 1
                buffer_atomic_add v64, off, s[48:51], 0 sc1
                s_mov_b64 exec, -1
                k1_ns:
                """)
            a(f"s_waitcnt lgkmcnt({4-j})")
            a(f"buffer_store_dwordx4 v[{4+4*j}:{7+4*j}], v3, s[36:39], {so16[j]} offen {ST}")
    a(f"""
    s_cmp_ge_u32 s63, 4
    s_cbranch_scc1 k1_arr
    s_mov_b32 s4, 0x05040100
    s_mov_b32 s5, 0x07060302
    s_lshl_b32 s58, s63, 11
    s_add_u32 s58, s58, {TB_WM}
    """)
    for k in range(4):
        a(f"v_perm_b32 v{84+k}, v{67+2*k}, v{66+2*k}, s4")
        a(f"v_perm_b32 v{88+k}, v{67+2*k}, v{66+2*k}, s5")
    a(f"""
    buffer_store_dwordx4 v[84:87], v61, s[44:47], s58 offen sc1
    buffer_store_dwordx4 v[88:91], v61, s[44:47], s58 offen offset:1024 sc1
    k1_arr:
    v_mov_b64 v[40:41], 0
    v_mov_b64 v[42:43], 0
    v_mov_b32 v44, {L_EF + CAP*32}
    ds_write_b128 v3, v[40:43] offset:{L_AGG}
    ds_write_b128 v3, v[40:43] offset:{L_AGG+16384}
    s_cmp_ge_u32 s62, 8
    s_cbranch_scc1 k1_z
    ds_write_b128 v3, v[40:43] offset:{L_AGG+32768}
    k1_z:
    s_mov_b64 exec, 1
    ds_write_b128 v44, v[40:43]
    ds_write_b128 v44, v[40:43] offset:16
    s_mov_b64 exec, -1
    """)


def k2(a, o):
    LD = o.k2ld
    XF = o.xld
    vL = VXO
    PW = o.pw
    a(f"""
    v_and_b32 v{vL}, 63, v0
    s_mov_b32 s{sWAVE}, s62
    s_and_b32 s3, s2, 7
    s_lshl_b32 s3, s3, 5
    s_lshr_b32 s10, s2, 3
    s_or_b32 s3, s3, s10
    s_lshl_b32 s{sB4}, s3, 2
    s_mul_i32 s{sN0}, s3, 320007
    s_add_u32 s10, s{sN0}, {320007+8160}
    s_add_u32 s{sN0}, s{sN0}, 8160
    s_lshr_b32 s{sN0}, s{sN0}, 13
    s_lshr_b32 s10, s10, 13
    s_min_u32 s10, s10, {N}
    s_sub_u32 s10, s10, s{sN0}
    s_lshl_b32 s10, s10, 9
    s_lshl_b32 s11, s{sN0}, 9
    s_mov_b32 s{sW0}, 0
    s_mov_b32 s{sONE}, 1.0
    s_mov_b32 s{sONE+1}, 1.0
    s_mov_b32 s{sXNR}, {0 if "nox" in o.exp else N*512}
    s_movk_i32 s{s512}, 512
    s_mov_b64 s[8:9], s[18:19]
    """)
    srd(a, sX, 68, None, N * 512)
    srd(a, sOUT, 70, "s11", "s10")
    srd(a, sYI, 8, WS_YI, E * 12)
    srd(a, sEF, 8, WS_EF, E * 32)
    a("s_waitcnt vmcnt(0)")
    stamp(a, o, 4)
    arrive(a, 128, "k2_ns")
    a(f"""
    s_cmp_eq_u32 s{sSIG}, 0
    s_cbranch_scc1 k2_nb0
    s_waitcnt vmcnt(0)
    """)
    if o.sig == "ret":
        bcast(a, 128, "k2_nb0")
    else:
        a(f"""
        v_readfirstlane_b32 s3, v64
        s_and_b32 s3, s3, {G-1}
        s_mov_b32 s10, {TB_MB + 128}
        s_cmp_eq_u32 s3, {G-1}
        s_cbranch_scc1 k2_bc
        s_cmp_lg_u32 s3, 0
        s_cbranch_scc1 k2_nb0
        v_mov_b32 v{EE}, 1
        s_mov_b64 exec, 1
        k2_wt:
        buffer_load_dword v{EE}, off, s[48:51], 0 sc1
        s_add_u32 s{sSPIN}, s{sSPIN}, 1
        {f"s_sleep {o.wsl}" if o.wsl else ""}
        s_waitcnt vmcnt({o.wd - 1})
        v_readfirstlane_b32 s3, v{EE}
        s_and_b32 s3, s3, {G-1}
        s_cbranch_scc0 k2_wtd
        s_cmp_lt_u32 s{sSPIN}, {o.pmax}
        s_cbranch_scc1 k2_wt
        k2_wtd:
        s_mov_b64 exec, -1
        s_mov_b32 s10, {TB_MB}
        k2_bc:
        v_and_b32 v65, 63, v{VTID}
        v_mov_b32 v64, 1
        v_lshlrev_b32 v65, 8, v65
        """)
        for i in range(4):
            a(f"buffer_store_dword v64, v65, s[{sTB}:{sTB+3}], s10 offen sc1")
            if i < 3:
                a("s_add_u32 s10, s10, 16384")
        a("k2_nb0:")
    a(f"s_mov_b32 s{sCG}, {L_CG}")
    if o.timing:
        for i in range(5):
            a(f"s_mov_b32 s{96+i}, s{72+2*i}")
    a(f"""
    s_cmp_lg_u32 s{sWAVE}, {PW}
    s_cbranch_scc1 k2_p1
    """)
    poll(a, o, 0, "k2_pl1")
    stamp(a, o, 6, True)
    a(f"""
    k2_tg:
    v_lshlrev_b32 v2, 10, v{vL}
    v_lshlrev_b32 v1, 2, v{vL}
    s_mov_b32 s3, s{sB4}
    v_add_u32 v1, {L_TT}, v1
    """)
    for i in range(4):
        a(f"buffer_load_dword v{4+i}, v2, s[{sTB}:{sTB+3}], s3 offen sc1")
        if i < 3:
            a("s_add_u32 s3, s3, 65536")
    for i in range(4):
        a(f"s_waitcnt vmcnt({3-i})\nds_write_b32 v1, v{4+i} offset:{256*i}")
    if "pb3" not in o.exp:
        stamp(a, o, 7, True)
    a(f"""
    k2_p1:
    v_lshlrev_b32 v1, 4, v{vL}
    v_add_u32 v1, {L_TT}, v1
    s_mul_i32 s58, s{sWAVE}, {SEG}
    s_add_u32 s59, s58, s{sW0}
    s_waitcnt lgkmcnt(0)
    s_barrier
    """)
    stamp(a, o, 0)
    a(f"""
    ds_read_b128 v[0:3], v1
    v_mul_u32_u24 v12, {4*CH}, v{vL}
    v_add_u32 v13, {CH}, v12
    v_add_u32 v14, {2*CH}, v12
    v_add_u32 v15, {3*CH}, v12
    s_waitcnt lgkmcnt(0)
    """)
    for i in range(4):
        a(f"v_lshrrev_b32 v{4+i}, 16, v{i}")
    for i in range(4):
        a(f"v_and_b32 v{i}, 0xffff, v{i}")
    a(f"""
    v_add_u32 v10, v4, v5
    v_add_u32 v11, v10, v6
    v_add_u32 v16, v11, v7
    v_mov_b32 v17, v16
    """)
    for i in range(4):
        a(f"v_add_u32 v{12+i}, v{12+i}, v{i}")
    scan(a, "v_add_u32", [17])
    a(f"""
    v_sub_u32 v8, v17, v16
    v_readlane_b32 s{sTOT}, v17, 63
    v_add_u32 v9, v8, v4
    v_add_u32 v10, v8, v10
    v_add_u32 v11, v8, v11
    """)
    for i in range(4):
        a(f"v_sub_u32 v{12+i}, v{12+i}, v{8+i}")
    for i in range(4):
        a(f"v_cmp_ge_u32 s[{62+2*i}:{63+2*i}], s59, v{8+i}")
    for i in range(4):
        a(f"v_subrev_u32 v{8+i}, s{sW0}, v{8+i}")
    for i in range(4):
        a(f"v_min_u32 v{8+i}, {CAP}, v{8+i}")
    for i in range(4):
        a(f"v_lshlrev_b32 v{8+i}, 2, v{8+i}")
    for i in range(4):
        a(f"ds_max_u32 v{8+i}, v{12+i} offset:{L_XS}")
    a(f"""
    v_add_u32 v16, s58, v{vL}
    v_lshlrev_b32 v17, 2, v16
    """)
    for i in range(3):
        a(f"ds_read_b32 v{i}, v17 offset:{L_XS+256*i}")
    for i in range(4):
        a(f"v_cndmask_b32 v{4+i}, 0, v{12+i}, s[{62+2*i}:{63+2*i}]")
    a(f"""
    v_max3_u32 v4, v4, v5, v6
    v_max_u32 v3, v4, v7
    s_sub_u32 s{sLIM}, s{sTOT}, s{sW0}
    s_min_u32 s{sLIM}, s{sLIM}, {CAP}
    s_add_u32 s10, s58, {SEG}
    s_min_u32 s10, s10, s{sLIM}
    v_add_u32 v17, 64, v16
    v_add_u32 v18, 128, v16
    v_cmp_gt_u32 s[{sM}:{sM+1}], s10, v16
    v_cmp_gt_u32 s[{sM+2}:{sM+3}], s10, v17
    v_cmp_gt_u32 s[{sM+4}:{sM+5}], s10, v18
    s_waitcnt lgkmcnt(0)
    """)
    scan(a, "v_max_u32", [3, 0, 1, 2])
    a(f"""
    v_readlane_b32 s62, v3, 63
    v_readlane_b32 s63, v0, 63
    v_readlane_b32 s64, v1, 63
    v_lshrrev_b32 v7, 1, v{vL}
    v_lshlrev_b32 v7, 2, v7
    v_add_u32 v8, 128, v7
    s_max_u32 s63, s63, s62
    s_max_u32 s64, s64, s63
    v_max_u32 v0, s62, v0
    v_max_u32 v1, s63, v1
    v_max_u32 v2, s64, v2
    v_mov_b32 v3, 0xf00000
    """)
    for i in range(3):
        a(f"v_add3_u32 v{i}, v{i}, v{16+i}, s{sW0}")
    for i in range(3):
        a(f"v_cndmask_b32 v{i}, v3, v{i}, s[{sM+2*i}:{sM+2*i+1}]")
    for i in range(3):
        a(f"v_mul_u32_u24 v{4+i}, 12, v{i}")
    for i in range(3):
        a(f"buffer_load_dwordx3 v[{20+4*i}:{22+4*i}], v{4+i}, s[{sYI}:{sYI+3}], 0 offen {LD}")
    stamp(a, o, 1)
    for j in range(6):
        a(f"ds_bpermute_b32 v{32+j}, v{7+j%2}, v{j//2}")
    a(f"""
    v_and_b32 v9, 1, v{vL}
    v_lshlrev_b32 v9, 4, v9
    s_lshl_b32 s3, s58, 5
    s_add_u32 m0, s3, {L_EF}
    v_mov_b32 v62, 1
    s_waitcnt lgkmcnt(0)
    """)
    for j in range(6):
        a(f"v_lshl_or_b32 v{32+j}, v{32+j}, 5, v9")

    def dma(j):
        if j == 5:
            a(f"s_mov_b64 exec, {hex((1 << (2*(SEG-160))) - 1)}")
        a(f"buffer_load_dwordx4 v{32+j}, s[{sEF}:{sEF+3}], 0 offen {o.efld} lds")
        a("s_add_u32 m0, m0, 1024" if j < 5 else "s_mov_b64 exec, -1")
        a("s_nop 0")
    a(f"s_waitcnt vmcnt(0)")
    for i in range(3):
        a(f"v_lshrrev_b32 v{40+i}, 24, v{22+4*i}")
    for i in range(3):
        a(f"v_bfe_u32 v{56+i}, v{22+4*i}, 16, 8")
    for i in range(3):
        a(f"v_lshlrev_b32 v{44+i}, v{40+i}, v62")
    for i in range(3):
        a(f"""
        s_mov_b64 exec, s[{sM+2*i}:{sM+2*i+1}]
        s_cbranch_execz k2_h
        ds_add_rtn_u32 v{59+i}, v{56+i}, v{44+i} offset:{L_CNT}
        """)
    a(f"""
    k2_h:
    s_mov_b64 exec, -1
    s_mov_b32 s3, 0x05040100
    """)
    for i in range(3):
        a(f"v_perm_b32 v{22+4*i}, v{16+i}, v{22+4*i}, s3")
    a(f"""
    v_lshlrev_b32 v0, 2, v{vL}
    """)
    stamp(a, o, 2)
    a(f"""
    s_cmp_lg_u32 s{sWAVE}, {PW}
    s_cbranch_scc1 k2_np2
    s_cmp_lg_u32 s{sW0}, 0
    s_cbranch_scc1 k2_np2
    """)
    poll(a, o, 128, "k2_pl2")
    a("k2_np2:\ns_waitcnt lgkmcnt(0)\ns_barrier")
    stamp(a, o, 3)
    ka, kb, kc = [int(x) for x in o.k2n.split(",")]
    for j in range(ka):
        dma(j)
    a(f"""
    ds_read_b32 v64, v0 offset:{L_CNT}
    s_mov_b32 s62, {XHALF}
    """)
    for i in range(3):
        a(f"v_bfe_u32 v{59+i}, v{59+i}, v{40+i}, 16")
    a(f"""
    v_and_b32 v10, 31, v{vL}
    v_lshrrev_b32 v11, 5, v{vL}
    s_waitcnt lgkmcnt(0)
    v_add_u32 v65, 0x10001, v64
    v_and_b32 v65, 0xfffefffe, v65
    v_mov_b32 v66, v65
    v_and_b32 v68, 0xffff, v64
    v_and_b32 v70, 0xffff, v65
    """)
    scan(a, "v_add_u32", [66])
    a(f"""
    v_sub_u32 v67, v66, v65
    v_readlane_b32 s{sP}, v66, 63
    v_lshrrev_b32 v69, 16, v64
    v_lshrrev_b32 v71, 16, v65
    v_cmp_eq_u32 vcc, 0, v68
    s_and_b32 s4, s{sP}, 0xffff
    s_lshr_b32 s5, s{sP}, 16
    s_add_u32 s4, s4, 7
    s_add_u32 s5, s5, 7
    s_lshr_b32 s4, s4, 3
    s_lshr_b32 s5, s5, 3
    v_cndmask_b32 v12, 0, v62, vcc
    s_lshl_b32 s3, s4, 19
    v_add_u32 v67, s3, v67
    ds_write_b32 v0, v12 offset:{L_FLAG}
    """)
    for i in range(3):
        a(f"ds_bpermute_b32 v{i}, v{56+i}, v67")
    a(f"""
    s_lshr_b32 s6, s4, 4
    s_lshr_b32 s7, s5, 4
    s_lshl_b32 s10, s6, 3
    s_lshl_b32 s11, s7, 3
    v_cmp_lt_u32 vcc, s10, v70
    v_cmp_lt_u32 s[68:69], s11, v71
    s_and_b32 s3, s4, 15
    s_mul_i32 s63, s6, s{sWAVE}
    s_min_u32 s10, s3, s{sWAVE}
    s_add_u32 s63, s63, s10
    s_cmp_lt_u32 s{sWAVE}, s3
    s_addc_u32 s64, s6, 0
    s_and_b32 s3, s5, 15
    s_add_u32 s3, s3, s{sWAVE}
    s_mul_i32 s65, s7, s{sWAVE}
    s_sub_u32 s10, s3, 16
    s_max_i32 s10, s10, 0
    s_add_u32 s65, s65, s10
    s_cmp_ge_u32 s3, 16
    s_addc_u32 s66, s7, 0
    s_or_b64 vcc, vcc, s[68:69]
    s_cmp_lg_u64 vcc, 0
    s_cselect_b32 s{sSLOW}, 1, 0
    s_add_u32 s{sNG}, s64, s66
    s_add_u32 s3, s4, s65
    s_add_u32 s10, s63, s64
    s_sub_u32 s10, s10, s4
    s_lshl_b32 s10, s10, 3
    s_lshl_b32 s11, s65, 3
    s_bfm_b64 s[68:69], s64, 0
    s_bfm_b64 vcc, s66, 32
    s_mov_b64 exec, 0xffffffff
    v_add_u32 v12, s63, v10
    v_mov_b32 v13, s11
    s_not_b64 exec, exec
    v_add_u32 v12, s3, v10
    v_mov_b32 v13, s10
    s_mov_b64 exec, -1
    v_lshlrev_b32 v12, 1, v12
    s_or_b64 exec, vcc, s[68:69]
    s_cbranch_execz k2_nosh
    ds_write_b16 v12, v13 offset:{L_SH}
    k2_nosh:
    s_mov_b64 exec, -1
    s_waitcnt lgkmcnt(0)
    """)
    for i in range(3):
        a(f"v_bfe_u32 v{i}, v{i}, v{40+i}, 16")
    for i in range(3):
        a(f"v_add_u32 v{i}, v{i}, v{59+i}")
    a(f"""
    s_mov_b64 s[6:7], 0
    s_cmp_lt_u32 s{sWAVE}, 14
    s_cbranch_scc1 k2_nopad0
    s_sub_u32 s3, s{sWAVE}, 14
    s_mul_i32 s10, s3, s5
    s_add_u32 s10, s10, s4
    s_lshl_b32 s10, s10, 3
    s_lshl_b32 s3, s3, 4
    v_bfe_u32 v12, v64, s3, 16
    v_bfe_u32 v13, v67, s3, 16
    v_subrev_u32 v14, 40, v{vL}
    v_cmp_gt_u32 vcc, 8, v14
    v_max_i32 v14, 0, v14
    v_add3_u32 v3, v12, v13, v14
    v_and_b32 v12, 1, v12
    v_cmp_gt_u32 s[68:69], s10, v3
    v_cmp_eq_u32 s[6:7], 1, v12
    s_and_b64 vcc, vcc, s[68:69]
    s_or_b64 s[6:7], s[6:7], vcc
    k2_nopad0:
    """)
    for i in range(4):
        a(f"v_lshrrev_b32 v{4+i}, 2, v{i}")
    for i in range(4):
        a(f"v_and_b32 v{4+i}, 0x7fe, v{4+i}")
    a("s_barrier")
    for i in range(4):
        a(f"ds_read_i16 v{4+i}, v{4+i} offset:{L_SH}")
    for j in range(ka, ka + kb):
        dma(j)
    a(f"""
    v_and_b32 v70, 0xffff, v66
    v_lshrrev_b32 v71, 16, v66
    s_lshl_b32 s10, s63, 3
    s_lshl_b32 s11, s65, 3
    v_cmp_lt_u32 s[{sNM}:{sNM+1}], s10, v70
    v_cmp_lt_u32 vcc, 0, v68
    v_cmp_lt_u32 s[{sNB}:{sNB+1}], s11, v71
    v_cmp_lt_u32 s[68:69], 0, v69
    s_mov_b64 s[{sBM}:{sBM+1}], 0
    s_mov_b32 s{sBM+2}, 0
    s_mov_b32 s{sEA}, 0
    s_and_b64 s[{sNM}:{sNM+1}], s[{sNM}:{sNM+1}], vcc
    s_and_b64 s[{sNB}:{sNB+1}], s[{sNB}:{sNB+1}], s[68:69]
    s_mov_b64 s[68:69], s[{sNM}:{sNM+1}]
    s_lshl_b32 s67, s63, 2
    s_add_u32 s67, s67, 1
    s_lshl_b32 s11, s64, 2
    """)

    def bm(tag, vend, cnt):
        a(f"""
        k2_bl{tag}:
        s_ff1_i32_b64 s3, s[68:69]
        s_cmp_lt_i32 s3, 0
        s_cbranch_scc1 k2_bld{tag}
        v_readlane_b32 s10, v{vend}, s3
        s_bitset0_b64 s[68:69], s3
        s_lshr_b32 s10, s10, 1
        s_sub_u32 s10, s10, s67
        s_cmp_ge_u32 s10, s11
        s_cbranch_scc1 k2_bld{tag}
        {f"s_add_u32 s{sEA}, s{sEA}, 1" if cnt else ""}
        s_cmp_ge_u32 s10, 64
        s_cbranch_scc1 k2_bh{tag}
        s_bitset1_b64 s[{sBM}:{sBM+1}], s10
        s_branch k2_bl{tag}
        k2_bh{tag}:
        s_bitset1_b32 s{sBM+2}, s10
        s_branch k2_bl{tag}
        k2_bld{tag}:
        s_sub_u32 s10, s11, 1
        s_cmp_ge_u32 s10, 64
        s_cbranch_scc1 k2_bh2{tag}
        s_bitcmp0_b64 s[{sBM}:{sBM+1}], s10
        s_branch k2_bdone{tag}
        k2_bh2{tag}:
        s_bitcmp0_b32 s{sBM+2}, s10
        k2_bdone{tag}:
        """)
    bm("a", 70, True)
    a(f"""
    s_cselect_b32 s{sOPA}, s3, -1
    s_cmp_eq_u32 s64, 0
    s_cselect_b32 s{sOPA}, -1, s{sOPA}
    s_cmp_ge_i32 s{sOPA}, 0
    s_cselect_b32 s{sPK}, 1, 0
    s_cbranch_scc0 k2_nopk
    s_cmp_ge_u32 s10, 64
    s_cbranch_scc1 k2_pkh
    s_bitset1_b64 s[{sBM}:{sBM+1}], s10
    s_branch k2_nopk
    k2_pkh:
    s_bitset1_b32 s{sBM+2}, s10
    k2_nopk:
    s_mov_b64 s[68:69], s[{sNB}:{sNB+1}]
    s_sub_u32 s67, s65, s64
    s_lshl_b32 s67, s67, 2
    s_add_u32 s67, s67, 1
    s_lshl_b32 s11, s{sNG}, 2
    """)
    bm("b", 71, False)
    a(f"""
    s_cselect_b32 s{sOPEN}, s66, 0
    s_add_u32 s65, s65, s63
    """)
    for j in range(ka + kb, ka + kb + kc):
        dma(j)
    a("s_waitcnt lgkmcnt(0)")
    for i in range(4):
        a(f"v_add_u32 v{i}, v{i}, v{4+i}")
    for i in range(4):
        a(f"""
        v_and_b32 v{4+i}, 1, v{i}
        v_lshrrev_b32 v{12+i}, 1, v{i}
        v_lshlrev_b32 v{12+i}, 2, v{12+i}
        v_mad_u32_u24 v{4+i}, v{4+i}, s62, v{12+i}
        v_lshlrev_b32 v{i}, 3, v{i}
        """)
    for i in range(3):
        a(f"""
        s_mov_b64 exec, s[{sM+2*i}:{sM+2*i+1}]
        s_cbranch_execz k2_w0
        ds_write_b32 v{4+i}, v{22+4*i} offset:{L_XS}
        ds_write_b64 v{i}, v[{20+4*i}:{21+4*i}] offset:{L_YS}
        """)
    a(f"""
    k2_w0:
    s_mov_b64 exec, s[6:7]
    s_cbranch_execz k2_nopad
    v_mov_b32 v13, {hex(0x7fff | CAP << 16)}
    v_mov_b64 v[14:15], 0
    ds_write_b32 v7, v13 offset:{L_XS}
    ds_write_b64 v3, v[14:15] offset:{L_YS}
    k2_nopad:
    s_mov_b64 exec, -1
    """)
    for j in range(ka + kb + kc, 6):
        dma(j)
    a(f"""
    s_lshl_b32 s3, s65, 4
    s_add_u32 s3, s3, {L_XS}
    v_mov_b32 v12, s3
    v_mad_u32_u24 v{VX}, v11, s62, v12
    v_lshrrev_b32 v13, 3, v10
    v_lshl_add_u32 v12, v13, 4, v12
    v_and_b32 v13, 3, v10
    v_lshl_add_u32 v12, v13, 2, v12
    v_bfe_u32 v13, v10, 2, 1
    v_mad_u32_u24 v{VEF}, v13, s62, v12
    s_lshl_b32 s3, s65, 6
    s_add_u32 s3, s3, {L_YS}
    v_lshlrev_b32 v12, 3, v11
    v_lshl_add_u32 v12, v10, 4, v12
    v_add_u32 v{VY}, s3, v12
    v_lshlrev_b32 v12, 4, v11
    v_add_u32 v{VHB}, {L_EF}, v12
    v_lshlrev_b32 v{VJ4}, 4, v{vL}
    v_lshlrev_b32 v{VXO}, 4, v10
    """)
    for k in range(4):
        a(f"v_mov_b64 {v(ACC+2*k,2)}, 0")
    a(f"""
    v_and_or_b32 v{ZE+8}, v{VXO}, 48, s{sCG}
    s_mov_b32 s{sREM}, s{sNG}
    s_lshr_b32 s{sTH}, s{sNG}, 1
    s_mov_b32 s{sPR}, 3
    {"s_setprio 3" if "prio" in o.exp else ""}
    s_waitcnt lgkmcnt(0)
    s_barrier
    """)
    stamp(a, o, 5, "pc")
    XS = f"s[{sX}:{sX+3}]"

    def xadr(r):
        a(f"v_mad_u32_u16 v{r}, v{r}, s{s512}, v{VXO}")

    def efnext(off):
        a(f"""
        v_mad_u32_u16 v{EE}, v{VRI}, 32, v{VHB} op_sel:[1,0,0,0]
        ds_read_b128 {v(EF,4)}, v{EE}
        ds_read_b32 v{VRI}, v{VEF} offset:{off}
        """)
    a(f"""
    ds_read_b128 {v(XI,4)}, v{VX}
    ds_read_b128 {v(XI+4,4)}, v{VX} offset:16
    ds_read_b32 v{VRI}, v{VEF}
    ds_read_b64 {v(YY,2)}, v{VY}
    ds_read_b128 {v(ZE,4)}, v{ZE+8}
    ds_read_b128 {v(ZE+4,4)}, v{ZE+8} offset:64
    s_cmp_gt_u32 s{sREM}, 0
    s_cselect_b32 s{sX+2}, s{sXNR}, 0
    s_waitcnt lgkmcnt(5)
    """)
    def x03(k0, k1):
        for k in range(k0, k1):
            xadr(XI + k)
            a(f"buffer_load_dwordx4 {v(X+4*k,4)}, v{XI+k}, {XS}, 0 offen {XF}")
        if k1 == 4:
            a(f"""
            s_cmp_gt_u32 s{sREM}, 1
            s_cselect_b32 s{sX+2}, s{sXNR}, 0
            """)
    x03(0, min(o.nx, 4))
    a("s_waitcnt lgkmcnt(4)")

    def x47():
        for k in range(4, 8):
            xadr(XI + k)
            a(f"buffer_load_dwordx4 {v(X+4*k,4)}, v{XI+k}, {XS}, 0 offen {XF}")
        a(f"ds_read_b128 {v(XI,4)}, v{VX} offset:32")
    if o.nx == 8:
        x47()
    stamp(a, o, 6, "pc")
    a(f"s_waitcnt vmcnt({o.nx})")
    stamp(a, o, 7, "pc")
    a("s_barrier")
    stamp(a, o, 4)
    a(f"""
    s_cmp_eq_u32 s{sNG}, 0
    s_cbranch_scc1 k2_done
    s_waitcnt lgkmcnt(0)
    """)
    efnext(64)
    if o.nx < 4:
        x03(o.nx, 4)
    if o.nx <= 4:
        x47()

    def group_start(g):
        b = XI + 4 * (g % 2)
        nb = XI + 4 * ((g + 1) % 2)
        if "noadd" in o.exp:
            a("s_nop 3")
        else:
            for k in range(4):
                xadr(b + k)
        a(f"ds_read_b128 {v(nb,4)}, v{VX} offset:{16*(g+3)}")
        a(f"s_cmp_gt_u32 s{sREM}, 2\ns_cselect_b32 s{sX+2}, s{sXNR}, 0")

    def mf(d, ar, br, c):
        a(f"v_mfma_f32_32x32x16_bf16 {v(d,16)}, {v(ar,4)}, {v(br,4)}, {c}")

    def rprol():
        a(f"""
        v_exp_f32 v{EE}, v{ZE}
        v_exp_f32 v{EE+1}, v{ZE+1}
        v_exp_f32 v{EE+2}, v{ZO}
        v_exp_f32 v{EE+3}, v{ZO+1}
        v_pk_add_f32 {v(EE,2)}, {v(EE,2)}, s[{sONE}:{sONE+1}]
        v_pk_add_f32 {v(EE+2,2)}, {v(EE+2,2)}, s[{sONE}:{sONE+1}]
        v_rcp_f32 v{EE}, v{EE}
        v_rcp_f32 v{EE+1}, v{EE+1}
        v_rcp_f32 v{EE+2}, v{EE+2}
        v_rcp_f32 v{EE+3}, v{EE+3}
        v_pk_mul_f32 {v(ZE,2)}, {v(ZE,2)}, {v(EE,2)}
        v_pk_mul_f32 {v(ZO,2)}, {v(ZO,2)}, {v(EE+2,2)}
        """)

    a("k2_blk:")
    for t in range(32):
        g, r = t // 4, t % 16
        if t == 0:
            a("s_waitcnt lgkmcnt(0)")
            for i in range(4):
                a(f"v_mfma_f32_4x4x4_16b_bf16 {v(ZO+4*i,4)}, {v(YY,2)}, {v(ZE+2*i,2)}, 0")
            a(f"ds_read_b64 {v(YY,2)}, v{VY} offset:512")
            a(f"v_add_u32 v{VY}, 512, v{VY}")
            mf(ZE, EF, W, "0")
            for m in range(4):
                a(f"v_cvt_pk_bf16_f32 v{TA+2*m}, v{ZO+m}, v{ZO+4+m}")
            for m in range(4):
                a(f"v_cvt_pk_bf16_f32 v{TA+2*m+1}, v{ZO+8+m}, v{ZO+12+m}")
            mf(ZO, EF, W + 4, "0")
            efnext(128)
            group_start(g)
            a("s_nop 3")
            rprol()
        elif t == 16:
            a("s_waitcnt lgkmcnt(0)")
            mf(ZE, EF, W, "0")
            mf(ZO, EF, W + 4, "0")
            efnext(192)
            a(f"v_add_u32 v{VEF}, 128, v{VEF}")
            group_start(g)
            a("s_nop 2")
            rprol()
        elif t % 4 == 0:
            a("s_waitcnt lgkmcnt(0)")
            group_start(g)
            if t == 28:
                a(f"""
                v_and_or_b32 v{ZE+8}, v{VXO}, 48, s{sCG}
                ds_read_b128 {v(ZE,4)}, v{ZE+8}
                ds_read_b128 {v(ZE+4,4)}, v{ZE+8} offset:64
                """)
        k = t % 8
        xr = X + 4 * k
        ar = TA + 2 * (t % 4)
        p0 = r & ~1
        last = p0 == 14
        tr = "v_exp_f32" if r % 2 == 0 else "v_rcp_f32"

        def trn(e, z):
            if last or "notrans" in o.exp:
                return
            src = z if r % 2 == 0 else e
            a(f"{tr} v{e}, v{src}")

        def mid(e, z):
            if last:
                return
            if "v2mid" in o.exp:
                for u in range(2):
                    a(f"v_add_f32 v{e+u}, 1.0, v{e+u}" if r % 2 == 0 else f"v_mul_f32 v{z+u}, v{z+u}, v{e+u}")
            elif r % 2 == 0:
                a(f"v_pk_add_f32 {v(e,2)}, {v(e,2)}, s[{sONE}:{sONE+1}]")
            else:
                a(f"v_pk_mul_f32 {v(z,2)}, {v(z,2)}, {v(e,2)}")

        sel = "op_sel_hi:[0,1,1]" if r % 2 == 0 else "op_sel:[1,0,0] op_sel_hi:[1,1,1]"

        def fma(acc, z, tp):
            if "nofma" in o.exp:
                return
            if "v2fma" in o.exp:
                for u in range(2):
                    a(f"v_fmac_f32 v{acc+u}, v{z+r%2}, v{tp+u}")
                return
            a(f"v_pk_fma_f32 {v(acc,2)}, {v(z,2)}, {v(tp,2)}, {v(acc,2)} {sel}")

        cb = "" if "nocbsz" in o.exp else f"cbsz:3 abid:{t//4}"
        a("s_waitcnt vmcnt(7)")
        if "nomf" not in o.exp:
            a(f"v_mfma_f32_4x4x4_16b_bf16 {v(TP,4)}, {v(ar,2)}, {v(xr,2)}, 0 {cb}")
        trn(EE, ZE + p0 + 2)
        trn(EE + 1, ZE + p0 + 3)
        if "nomf" not in o.exp:
            a(f"v_mfma_f32_4x4x4_16b_bf16 {v(TP+4,4)}, {v(ar,2)}, {v(xr+2,2)}, 0 {cb}")
        if "noload" not in o.exp:
            a(f"buffer_load_dwordx4 {v(xr,4)}, v{XI+4*(g%2)+t%4}, {XS}, 0 offen {XF}")
        trn(EE + 2, ZO + p0 + 2)
        trn(EE + 3, ZO + p0 + 3)
        mid(EE, ZE + p0 + 2)
        if last:
            a("s_nop 2")
        fma(ACC, ZE + p0, TP)
        fma(ACC + 2, ZE + p0, TP + 2)
        mid(EE + 2, ZO + p0 + 2)
        fma(ACC + 4, ZO + p0, TP + 4)
        fma(ACC + 6, ZO + p0, TP + 6)
        if "nobr" in o.exp:
            a(f"k2_bk{t}:")
        else:
            a(f"s_bitcmp1_b32 s{sBM}, {t}\ns_cbranch_scc1 k2_fl{t}\nk2_bk{t}:")
        if t % 4 == 3:
            if "prio" in o.exp:
                a(f"s_sub_u32 s{sREM}, s{sREM}, 1\ns_cmp_eq_u32 s{sREM}, s{sTH}\ns_cbranch_scc1 k2_th{g}\nk2_tb{g}:")
            else:
                a(f"s_sub_u32 s{sREM}, s{sREM}, 1\ns_cmp_eq_u32 s{sREM}, 0\ns_cbranch_scc1 k2_done")
    a(f"""
    s_mov_b32 s{sBM}, s{sBM+1}
    s_mov_b32 s{sBM+1}, s{sBM+2}
    v_add_u32 v{VX}, 128, v{VX}
    s_branch k2_blk
    """)
    if "prio" in o.exp:
        for g in range(8):
            a(f"k2_th{g}:\ns_cmp_eq_u32 s{sTH}, 0\ns_cbranch_scc1 k2_done\ns_call_b64 s[{sRET}:{sRET+1}], k2_thr\ns_branch k2_tb{g}")
        a(f"""
        k2_thr:
        s_lshr_b32 s{sTH}, s{sTH}, 1
        s_sub_u32 s{sPR}, s{sPR}, 1
        s_cmp_eq_u32 s{sPR}, 2
        s_cbranch_scc1 k2_p2
        s_cmp_eq_u32 s{sPR}, 1
        s_cbranch_scc1 k2_p1x
        s_mov_b32 s{sTH}, 0
        s_setprio 0
        s_setpc_b64 s[{sRET}:{sRET+1}]
        k2_p2:
        s_setprio 2
        s_setpc_b64 s[{sRET}:{sRET+1}]
        k2_p1x:
        s_setprio 1
        s_setpc_b64 s[{sRET}:{sRET+1}]
        """)
    for t in range(32):
        a(f"k2_fl{t}:\ns_call_b64 s[{sRET}:{sRET+1}], k2_flush\ns_branch k2_bk{t}")
    def node_addr(sn):
        a(f"""
        s_lshl_b32 s58, s{sn}, 10
        s_and_b32 s59, s{sn}, 7
        s_lshl_b32 s59, s59, 4
        s_or_b32 s58, s58, s59
        s_lshl_b32 s59, s{sn}, 2
        v_xor_b32 v{TP}, s58, v{VJ4}
        """)

    def reduce_acc(dst):
        for q in range(4):
            a(f"v_permlane32_swap_b32 v{ACC+q}, v{ACC+4+q}")
        a(f"""
        v_pk_add_f32 {v(dst,2)}, {v(ACC,2)}, {v(ACC+4,2)}
        v_pk_add_f32 {v(dst+2,2)}, {v(ACC+2,2)}, {v(ACC+6,2)}
        v_mov_b64 {v(ACC+4,2)}, 0
        v_mov_b64 {v(ACC+6,2)}, 0
        """)

    def rmw(src):
        a(f"""
        v_pk_add_f32 {v(TP+4,2)}, {v(TP+4,2)}, {v(src,2)}
        v_pk_add_f32 {v(TP+6,2)}, {v(TP+6,2)}, {v(src+2,2)}
        v_mov_b64 {v(src,2)}, 0
        v_mov_b64 {v(src+2,2)}, 0
        ds_write_b128 v{TP}, {v(TP+4,4)} offset:{L_AGG}
        """)
    RET = f"s_setpc_b64 s[{sRET}:{sRET+1}]"
    SPIN = ""
    if o.spin:
        SPIN = f"""s_add_u32 s{sSPIN}, s{sSPIN}, 1
        s_cmp_lt_u32 s{sSPIN}, {o.spin}
        s_cbranch_scc1 k2_flw
        s_waitcnt lgkmcnt(0)
        v_mov_b32 v{TP+2}, 1"""
    a(f"""
    k2_flush:
    s_cmp_eq_u32 s{sEA}, 0
    s_cbranch_scc1 k2_flb
    s_sub_u32 s{sEA}, s{sEA}, 1
    s_ff1_i32_b64 s{sCUR}, s[{sNM}:{sNM+1}]
    s_bitset0_b64 s[{sNM}:{sNM+1}], s{sCUR}
    """)
    node_addr(sCUR)
    a(f"ds_read_b128 {v(TP+4,4)}, v{TP} offset:{L_AGG}")
    reduce_acc(ACC)
    a(f"v_mov_b32 v{TP+1}, s59\ns_waitcnt lgkmcnt(0)")
    rmw(ACC)
    a(f"""
    s_mov_b64 exec, 1
    ds_write_b32 v{TP+1}, v{VX} offset:{L_FLAG}
    s_mov_b64 exec, -1
    {RET}
    k2_flb:
    s_cmp_eq_u32 s{sPK}, 0
    s_cbranch_scc1 k2_flb2
    s_mov_b32 s{sPK}, 0
    """)
    reduce_acc(PARK)
    a(f"""
    v_mov_b64 {v(ACC,2)}, 0
    v_mov_b64 {v(ACC+2,2)}, 0
    {RET}
    k2_flb2:
    s_ff1_i32_b64 s{sCUR}, s[{sNB}:{sNB+1}]
    s_bitset0_b64 s[{sNB}:{sNB+1}], s{sCUR}
    """)
    node_addr(sCUR)
    a(f"""
    v_mov_b32 v{TP+1}, s59
    ds_read_b32 v{TP+2}, v{TP+1} offset:{L_FLAG}
    ds_read_b128 {v(TP+4,4)}, v{TP} offset:{L_AGG}
    """)
    reduce_acc(ACC)
    a(f"""
    k2_flw:
    s_waitcnt lgkmcnt(0)
    v_cmp_eq_u32 vcc, 0, v{TP+2}
    s_cbranch_vccnz k2_flr
    """)
    rmw(ACC)
    a(f"""
    {RET}
    k2_flr:
    ds_read_b32 v{TP+2}, v{TP+1} offset:{L_FLAG}
    ds_read_b128 {v(TP+4,4)}, v{TP} offset:{L_AGG}
    {SPIN}
    s_branch k2_flw
    k2_opena:
    s_cmp_lt_i32 s{sOPA}, 0
    s_cbranch_scc1 k2_openret
    """)
    node_addr(sOPA)
    a(f"""
    s_cmp_eq_u32 s{sSLOW}, 0
    s_cbranch_scc0 k2_opas
    ds_read_b128 {v(TP+4,4)}, v{TP} offset:{L_AGG}
    s_waitcnt lgkmcnt(0)
    """)
    rmw(PARK)
    a(f"{RET}\nk2_opas:")
    for q in range(4):
        a(f"ds_add_f32 v{TP}, v{PARK+q} offset:{L_AGG+4*q}")
    a(f"""
    {RET}
    k2_open:
    s_cmp_eq_u32 s{sOPEN}, 0
    s_cbranch_scc1 k2_openret
    s_cmp_eq_u64 s[{sNB}:{sNB+1}], 0
    s_cbranch_scc1 k2_openret
    s_cmp_eq_u32 s{sSLOW}, 0
    s_cbranch_scc1 k2_flb2
    s_ff1_i32_b64 s{sCUR}, s[{sNB}:{sNB+1}]
    """)
    node_addr(sCUR)
    reduce_acc(ACC)
    for q in range(4):
        a(f"ds_add_f32 v{TP}, v{ACC+q} offset:{L_AGG+4*q}")
    a(f"""
    k2_openret:
    {RET}
    """)
    a(f"""
    k2_done:
    s_waitcnt vmcnt(0)
    s_add_u32 s{sW0}, s{sW0}, {CAP}
    v_and_b32 v{vL}, 63, v{VTID}
    s_cmp_lt_u32 s{sW0}, s{sTOT}
    s_cbranch_scc0 k2_last
    s_waitcnt lgkmcnt(0)
    s_barrier
    s_call_b64 s[{sRET}:{sRET+1}], k2_opena
    s_waitcnt lgkmcnt(0)
    s_barrier
    s_call_b64 s[{sRET}:{sRET+1}], k2_open
    s_waitcnt lgkmcnt(0)
    s_barrier
    v_lshlrev_b32 v1, 4, v{VTID}
    v_mov_b64 v[8:9], 0
    v_mov_b64 v[10:11], 0
    ds_write_b128 v1, v[8:11] offset:{L_XS}
    s_cmp_lg_u32 s{sWAVE}, {PW}
    s_cbranch_scc1 k2_p1
    s_branch k2_tg
    k2_last:
    """)
    stamp(a, o, 5)
    a(f"""
    s_cmp_ge_u32 s{sWAVE}, 5
    s_cbranch_scc1 k2_nowm
    v_lshlrev_b32 v64, 4, v{vL}
    s_mov_b32 s58, {TB_WM}
    s_mov_b32 s59, {TB_WM+4096}
    """)
    for q in range(8):
        a(f"buffer_load_dwordx4 {v(4*q,4)}, v64, s[{sTB}:{sTB+3}], s{58+q//4} offen offset:{1024*(q%4)} sc1")
    a(f"""
    k2_nowm:
    v_and_b32 v64, 31, v{vL}
    v_lshrrev_b32 v65, 5, v{vL}
    v_lshrrev_b32 v66, 2, v64
    v_mul_u32_u24 v66, 1040, v66
    v_lshl_add_u32 v66, v65, 7, v66
    v_and_b32 v67, 3, v64
    v_lshl_add_u32 v66, v67, 2, v66
    s_lshl_b32 s3, s{sWAVE}, 13
    v_add_u32 v113, s3, v66
    v_lshlrev_b32 v64, 4, v64
    v_lshl_add_u32 v112, v65, 9, v64
    """)
    for i in range(1, 8):
        a(f"v_xor_b32 v{113+i}, {16*i}, v113")
    a(f"""
    s_lshl_b32 s3, s{sWAVE}, 12
    s_mov_b32 s10, 0xbf317218
    s_mov_b32 s11, 0xbf317218
    s_waitcnt lgkmcnt(0)
    s_barrier
    """)
    stamp(a, o, 6)
    a(f"""
    s_call_b64 s[{sRET}:{sRET+1}], k2_opena
    s_waitcnt lgkmcnt(0)
    s_barrier
    s_call_b64 s[{sRET}:{sRET+1}], k2_open
    s_waitcnt lgkmcnt(0)
    s_barrier
    s_cmp_ge_u32 s{sWAVE}, 5
    s_cbranch_scc1 {"k2_tm" if o.timing else "k2_end"}
    """)
    for i in range(8):
        for u in range(2):
            a(f"ds_read2st64_b32 {v(32+4*i+2*u,2)}, v{113+i} offset0:{2*u} offset1:{2*u+1}")
    for k in range(4):
        a(f"s_waitcnt lgkmcnt({12-4*k})")
        for r in range(32 + 8 * k, 40 + 8 * k, 2):
            a(f"v_pk_mul_f32 {v(r,2)}, {v(r,2)}, s[10:11]")
        for sx in range(4):
            a(f"v_cvt_pk_bf16_f32 v{64+4*sx+k}, v{32+8*k+sx}, v{36+8*k+sx}")
    a("s_waitcnt vmcnt(0)\ns_nop 0")
    for sx in range(4):
        mf(80, 64 + 4 * sx, 8 * sx, "0" if sx == 0 else v(80, 16))
        mf(96, 64 + 4 * sx, 8 * sx + 4, "0" if sx == 0 else v(96, 16))
    a("s_nop 10")
    for rq in range(4):
        b = 32 + 4 * rq
        a(f"""
        v_cvt_pk_bf16_f32 v{b}, v{80+4*rq}, v{81+4*rq}
        v_cvt_pk_bf16_f32 v{b+1}, v{82+4*rq}, v{83+4*rq}
        v_cvt_pk_bf16_f32 v{b+2}, v{96+4*rq}, v{97+4*rq}
        v_cvt_pk_bf16_f32 v{b+3}, v{98+4*rq}, v{99+4*rq}
        buffer_store_dwordx4 {v(b,4)}, v112, s[{sOUT}:{sOUT+3}], s3 offen offset:{1024*rq} {o.outst}
        """)
    if o.timing:
        a("k2_tm:\ns_waitcnt vmcnt(0)")
        stamp(a, o, 7)
        a(f"s_mov_b64 exec, 1")
        stamp_store(a, o, 1, 8, 8, sWAVE)
        stamp_store(a, o, 0, 5, 8, sWAVE, lambda i: 96 + i)
    a("k2_end:\ns_endpgm")


def desc(name, vg, sg):
    return f""".p2align 6
.amdhsa_kernel {name}
  .amdhsa_next_free_vgpr {vg}
  .amdhsa_next_free_sgpr {sg}
  .amdhsa_accum_offset {(vg+3)//4*4}
  .amdhsa_group_segment_fixed_size 0
  .amdhsa_kernarg_size 88
  .amdhsa_user_sgpr_count 2
  .amdhsa_user_sgpr_kernarg_segment_ptr 1
  .amdhsa_system_sgpr_workgroup_id_x 1
.end_amdhsa_kernel
"""


def main():
    p = argparse.ArgumentParser()
    p.add_argument("-o", default="cdna_kernels/" + NAME + ".s")
    p.add_argument("--timing", action="store_true")
    p.add_argument("--k1ld", default="nt")
    p.add_argument("--k1st", default="sc1")
    p.add_argument("--k2ld", default="sc1")
    p.add_argument("--xld", default="")
    p.add_argument("--outst", default="sc1")
    p.add_argument("--exp", default="prio,ybar")
    p.add_argument("--spin", type=int, default=0)
    p.add_argument("--psl", type=int, default=4)
    p.add_argument("--pmax", type=int, default=100000)
    p.add_argument("--k1n", default="1,2,1")
    p.add_argument("--pw", type=int, default=0)
    p.add_argument("--pd", type=int, default=1)
    p.add_argument("--wd", type=int, default=1)
    p.add_argument("--wsl", type=int, default=0)
    p.add_argument("--efld", default="sc1")
    p.add_argument("--k2n", default="3,0,3")
    p.add_argument("--sig", default="watch")
    p.add_argument("--k1p", type=int, default=0)
    p.add_argument("--nx", type=int, default=2)
    o = p.parse_args()
    o.exp = set(o.exp.split(","))
    K = NAME + "_kernel"
    a = A()
    o.ph2 = True
    k1(a, o)
    k2(a, o)
    t = f"""; TFN tensor-product message passing in one launch of 256 co-resident workgroups.
; @launch grid=({G},1,1) block=(1024,1,1) lds={LDS_SZ}
.amdgcn_target "amdgcn-amd-amdhsa--gfx950"
.text
.globl {K}
.p2align 8
.type {K},@function
{K}:
{a.text()}
.section .rodata,"a"
{desc(K, 128, 102)}"""
    open(o.o, "w").write(t)


main()
```

```python
import sys, argparse

NAME = "gather_scatter__tensor_product_equiv_tfn__graph"
E, N = 640000, 10000
G, CH = 256, 2500
BMUL = 26843
WS_EF = 0
WS_YI = E * 32
WS_TB = WS_YI + E * 12
TB_WM = 262144
TB_MB = TB_WM + 8192
TB_SZ = TB_MB + 65536
WS_TM = WS_TB + 524288
HALF = 5000
L1_HIST, L1_ST, L1_INV, L1_YI = 0, 1024, 2048, 7168
L1_RAW = 81920
L1_WR, L1_CG = 37376, 39424
LDS_SZ = 163840
CAP, C = 2720, 2816
SEG = 170
L_AGG = 0
L_XS = 40960
XHALF = C // 2 * 4
L_CNT = L_XS + C * 4
L_FLAG = L_CNT + 256
L_SH = L_FLAG + 256
L_YS = L_SH + C // 8 * 2
L_CG = L_YS + C * 8
L_EF = L_CG + 128
L_SZ = L_EF + (CAP + 1) * 32
L_TT = L_EF
assert L_SZ <= 163840 and L_CG % 64 == 0 and XHALF % 16 == 0 and L_YS % 16 == 0 and L_EF % 16 == 0
assert L_CG >= 65536 and SEG * 16 == CAP


class A:
    def __init__(s):
        s.l = []

    def __call__(s, t):
        for x in t.strip("\n").split("\n"):
            x = x.strip()
            if x:
                s.l.append(x if x.endswith(":") else "    " + x)

    def text(s):
        return "\n".join(s.l) + "\n"


def v(a, n=1):
    return f"v{a}" if n == 1 else f"v[{a}:{a+n-1}]"


def s(a, n=1):
    return f"s{a}" if n == 1 else f"s[{a}:{a+n-1}]"


def srd(a, r, ptr, off, nr):
    if off is None:
        a(f"s_mov_b32 s{r}, s{ptr}\ns_mov_b32 s{r+1}, s{ptr+1}")
    else:
        a(f"s_add_u32 s{r}, s{ptr}, {off}\ns_addc_u32 s{r+1}, s{ptr+1}, 0")
    a(f"s_mov_b32 s{r+2}, {nr}\ns_mov_b32 s{r+3}, 0x20000")


DPPS = ["row_shr:1 row_mask:0xf bank_mask:0xf bound_ctrl:1",
        "row_shr:2 row_mask:0xf bank_mask:0xf bound_ctrl:1",
        "row_shr:4 row_mask:0xf bank_mask:0xf bound_ctrl:1",
        "row_shr:8 row_mask:0xf bank_mask:0xf bound_ctrl:1",
        "row_bcast:15 row_mask:0xa bank_mask:0xf",
        "row_bcast:31 row_mask:0xc bank_mask:0xf"]


def scan(a, op, regs):
    for d in DPPS:
        for r in regs:
            a(f"{op}_dpp v{r}, v{r}, v{r} {d}")
        if len(regs) < 3:
            a(f"s_nop {2 - len(regs)}")


def stamp(a, o, i, alt=False):
    sets = [x for x in ("pst", "pc", "pd") if x in o.exp]
    alt = "pst" if alt is True else alt
    if sets and i >= 5 and not alt:
        return
    if alt and alt not in sets:
        return
    if o.timing:
        a(f"{'s_memtime' if 'clk' in o.exp else 's_memrealtime'} s[{72+2*i}:{73+2*i}]")


def stamp_store(a, o, kern, n, ptr, sw, reg=lambda i: 72 + 2 * i):
    if not o.timing:
        return
    a(f"""
    s_waitcnt lgkmcnt(0)
    s_lshl_b32 s3, s2, 4
    s_add_u32 s3, s3, s{sw}
    s_lshl_b32 s3, s3, 6
    s_add_u32 s3, s3, {WS_TM + kern*262144}
    """)
    srd(a, 68, ptr, "s3", 64)
    a("s_nop 4\nv_mov_b32 v0, 0")
    for i in range(n):
        a(f"v_mov_b32 v1, s{reg(i)}\nbuffer_store_dword v1, v0, s[68:71], 0 offen offset:{4*i}\ns_nop 1")


X, ZE, ZO, TA, TP, ACC, EE, W, EF, YY, XI = 0, 32, 48, 64, 72, 80, 88, 92, 108, 112, 114
PARK, VRI, VHB = 100, 104, 105
VXO, VX, VY, VEF, VJ4, VTID = 122, 123, 124, 125, 126, 127
sX, sEF, sYI, sTB, sOUT = 12, 16, 20, 24, 28
sWAVE, sB4, sN0, sW0, sTOT, sLIM, sP = 32, 33, 34, 35, 36, 37, 38
sNG = 39
sONE, sXNR, sREM, sBM, sNM, sCUR, sCG = 40, 42, 43, 44, 48, 50, 51
sM = 52
sRET = 60
sSLOW, sOPEN = 47, 70
sTH, sPR = 71, 11
sNB, sEA, sOPA, sPK, s512 = 88, 90, 91, 92, 93
sDP, sSPIN, sSIG, sLATE = 94, 101, 60, 61


def bcast(a, word, tag):
    a(f"""
    v_readfirstlane_b32 s3, v64
    s_and_b32 s3, s3, {G-1}
    s_cmp_lg_u32 s3, {G-1}
    s_cbranch_scc1 {tag}
    v_and_b32 v65, 63, v{VTID}
    v_mov_b32 v64, 1
    v_lshlrev_b32 v65, 8, v65
    s_mov_b32 s3, {TB_MB + word}
    """)
    for i in range(4):
        a(f"buffer_store_dword v64, v65, s[{sTB}:{sTB+3}], s3 offen sc1")
        if i < 3:
            a("s_add_u32 s3, s3, 16384")
    a(f"{tag}:")


def arrive(a, word, tag):
    a(f"""
    v_mov_b32 v64, 1
    v_mov_b32 v65, {L_FLAG + word // 32}
    s_mov_b32 s{sSIG}, 0
    s_mov_b64 exec, 1
    ds_add_rtn_u32 v65, v65, v64
    s_waitcnt lgkmcnt(0)
    v_readfirstlane_b32 s3, v65
    s_cmp_lg_u32 s3, 15
    s_cbranch_scc1 {tag}
    buffer_atomic_add v64, off, s[48:51], 0 offset:{word} sc0 sc1
    s_mov_b32 s{sSIG}, 1
    {tag}:
    s_mov_b64 exec, -1
    """)


def poll(a, o, word, tag):
    a(f"""
    s_lshl_b32 s3, s2, 8
    s_add_u32 s3, s3, {TB_MB + word}
    v_mov_b32 v{EE}, 0
    s_mov_b64 exec, 1
    {tag}:
    buffer_load_dword v{EE}, off, s[{sTB}:{sTB+3}], s3 sc1
    s_add_u32 s{sSPIN}, s{sSPIN}, 1
    {f"s_sleep {o.psl}" if o.psl and o.pd > 1 else ""}
    s_waitcnt vmcnt({o.pd - 1})
    v_readfirstlane_b32 s10, v{EE}
    s_cmp_eq_u32 s10, 1
    s_cbranch_scc1 {tag}d
    s_cmp_ge_u32 s{sSPIN}, {o.pmax}
    s_cbranch_scc1 {tag}d
    {f"s_sleep {o.psl}" if o.psl and o.pd == 1 else ""}
    s_branch {tag}
    {tag}d:
    s_mov_b64 exec, -1
    """)


def shard(o):
    if o.s1sh == 3:
        return """s_mul_i32 s3, s2, 171
        s_lshr_b32 s3, s3, 9
        s_mul_i32 s3, s3, 3
        s_sub_u32 s3, s2, s3
        s_lshl_b32 s3, s3, 6
        s_cmp_eq_u32 s3, 128
        s_cselect_b32 s3, 192, s3"""
    return f"""s_lshr_b32 s3, s2, {o.s1sf}
    s_and_b32 s3, s3, {o.s1sh-1}
    s_mul_i32 s3, s3, {o.s1st}"""


def bucket4(a):
    a(f"""
    s_and_b32 s3, s2, 7
    s_lshl_b32 s3, s3, 5
    s_lshr_b32 s10, s2, 3
    s_or_b32 s3, s3, s10
    s_lshl_b32 s{sB4}, s3, 2
    """)


def tgather(a, o, vl, dst):
    if "w0" in o.exp:
        a(f"v_lshlrev_b32 v{dst+4}, 12, v{vl}")
        for i in range(4):
            a(f"buffer_load_dword v{dst+i}, v{dst+4}, s[{sTB}:{sTB+3}], s{sB4} offen offset:{1024*i} sc1")
        return
    a(f"v_lshlrev_b32 v{dst+4}, 10, v{vl}\ns_mov_b32 s3, s{sB4}")
    for i in range(4):
        a(f"buffer_load_dword v{dst+i}, v{dst+4}, s[{sTB}:{sTB+3}], s3 offen sc1")
        if i < 3:
            a("s_add_u32 s3, s3, 65536")


def k1(a, o):
    LD = o.k1ld
    ST = o.k1st
    na, nb, nc = [int(x) for x in o.k1n.split(",")]
    nd = 5 - na - nb - nc
    a(f"""
    s_cmp_ge_u32 s2, {G}
    s_cbranch_scc1 k2_end
    """)
    stamp(a, o, 0)
    a(f"""
    s_load_dwordx4 s[4:7], s[0:1], 8
    s_load_dwordx4 s[8:11], s[0:1], 24
    s_load_dwordx4 s[12:15], s[0:1], 40
    s_load_dwordx2 s[16:17], s[0:1], 56
    s_load_dwordx2 s[18:19], s[0:1], 80
    s_load_dwordx2 s[68:69], s[0:1], 0
    s_load_dwordx2 s[70:71], s[0:1], 64
    s_load_dwordx2 s[{sDP}:{sDP+1}], s[0:1], 72
    v_lshlrev_b32 v1, 2, v0
    v_lshlrev_b32 v2, 3, v0
    v_lshlrev_b32 v3, 4, v0
    v_and_b32 v46, 0x3fc, v1
    v_mov_b64 v[48:49], 0
    v_mov_b64 v[50:51], 0
    v_lshrrev_b32 v62, 6, v0
    v_and_b32 v63, 63, v0
    ds_write_b32 v46, v48 offset:{L1_HIST}
    v_readfirstlane_b32 s62, v62
    v_cmp_gt_u32 vcc, {CH - 2048}, v0
    v_mov_b32 v{VTID}, v0
    s_movk_i32 s52, 4096
    s_movk_i32 s53, 8192
    s_movk_i32 s54, 16384
    s_mov_b32 s55, 32768
    s_mov_b32 s56, 65536
    s_mov_b32 s57, 49152
    s_mov_b64 s[60:61], vcc
    s_mul_i32 s3, s2, {CH*4}
    s_mul_i32 s58, s2, {CH*8}
    s_mul_i32 s59, s2, {CH*32}
    s_mov_b32 s{sSPIN}, 0
    s_cmp_lt_u32 s2, 4
    s_cselect_b32 s63, s2, 6
    s_cmp_eq_u32 s62, 13
    s_cselect_b32 s63, s63, 6
    s_waitcnt lgkmcnt(0)
    """)
    srd(a, 24, 6, "s3", CH * 4)
    a(f"""
    s_cmp_ge_u32 s63, 4
    s_cbranch_scc1 k1_noimg0
    v_and_b32 v64, 31, v63
    v_lshrrev_b32 v65, 5, v63
    v_lshlrev_b32 v64, 2, v64
    """)
    srd(a, 48, 16, None, 8192)
    a(f"""
    v_lshl_add_u32 v64, v65, 11, v64
    s_and_b32 s64, s63, 1
    s_lshl_b32 s64, s64, 12
    s_lshr_b32 s65, s63, 1
    s_lshl_b32 s65, s65, 7
    s_add_u32 s64, s64, s65
    """)
    for i in range(8):
        a(f"buffer_load_dword v{66+i}, v64, s[48:51], s64 offen offset:{256*i}")
    a("k1_noimg0:")
    so4 = ["0", "s52", "s53"]
    so8 = ["0", "s53", "s54"]
    so16 = ["0", "s54", "s55", "s57", "s56"]
    for i in range(3):
        a(f"buffer_load_dword v{4+i}, v1, s[24:27], {so4[i]} offen {LD}")
    srd(a, 20, 4, "s3", CH * 4)
    srd(a, 28, 8, "s58", CH * 8)
    srd(a, 36, 12, None, 2048)
    srd(a, 40, 14, None, 128)
    for i in range(3):
        a(f"buffer_load_dword v{7+i}, v1, s[20:23], {so4[i]} offen {LD}")
    a(f"""
    v_lshlrev_b32 v61, 4, v63
    s_lshl_b32 s64, s62, 7
    s_add_u32 m0, s64, {L1_WR}
    s_mov_b64 exec, 0xff
    buffer_load_dwordx4 v61, s[36:39], s64 offen lds
    s_mov_b32 m0, {L1_CG}
    s_nop 0
    buffer_load_dwordx4 v61, s[40:43], 0 offen lds
    s_mov_b64 exec, -1
    """)
    for i in range(3):
        a(f"buffer_load_dwordx2 v[{10+2*i}:{11+2*i}], v2, s[28:31], {so8[i]} offen {LD}")
    srd(a, 32, 10, "s59", CH * 32)
    jj = [0]

    def ld_ef(n):
        for _ in range(n):
            j = jj[0]
            a(f"buffer_load_dwordx4 v3, s[32:35], {so16[j]} offen {LD} lds")
            if j < 4:
                a("s_add_u32 m0, m0, 16384\ns_nop 0")
            jj[0] += 1
    a(f"""
    ds_write_b128 v3, v[48:51] offset:{L_XS}
    s_lshl_b32 s3, s62, 10
    s_add_u32 m0, s3, {L1_RAW}
    s_lshl_b32 s66, s2, 10
    s_mov_b32 s67, {L1_YI}
    v_mov_b32 v47, 1
    v_mov_b32 v60, {1<<28}
    s_movk_i32 s10, {HALF}
    s_barrier
    """)
    ld_ef(na)
    a(f"s_add_u32 s59, s59, {WS_EF}")
    srd(a, 36, 18, "s59", CH * 32)
    a(f"s_mul_i32 s58, s2, {CH*12}\ns_add_u32 s58, s58, {WS_YI}")
    srd(a, 40, 18, "s58", CH * 12)
    srd(a, 44, 18, WS_TB, TB_SZ)
    a(f"s_waitcnt vmcnt({8+na})")
    stamp(a, o, 1)
    for i in range(3):
        a(f"v_mul_u32_u24 v{16+i}, {BMUL}, v{4+i}")
    for i in range(3):
        a(f"v_lshrrev_b32 v{16+i}, 20, v{16+i}")
    for i in range(3):
        a(f"v_lshlrev_b32 v{40+i}, 2, v{16+i}")
    a(f"""
    ds_add_rtn_u32 v43, v40, v47 offset:{L1_HIST}
    ds_add_rtn_u32 v44, v41, v47 offset:{L1_HIST}
    s_mov_b64 exec, s[60:61]
    s_cbranch_execz k1_a
    ds_add_rtn_u32 v45, v42, v47 offset:{L1_HIST}
    k1_a:
    s_mov_b64 exec, -1
    """)
    ld_ef(nb)
    for i in range(3):
        a(f"v_mul_u32_u24 v{16+i}, 320007, v{16+i}")
    for i in range(3):
        a(f"v_add_u32 v{16+i}, 8160, v{16+i}")
    for i in range(3):
        a(f"v_lshrrev_b32 v{16+i}, 13, v{16+i}")
    for i in range(3):
        a(f"v_sub_u32 v{4+i}, v{4+i}, v{16+i}")
    for i in range(3):
        a(f"v_lshlrev_b32 v{4+i}, 18, v{4+i}")
    a(f"""
    s_waitcnt lgkmcnt(0)
    s_barrier
    ds_read_b128 v[48:51], v61 offset:{L1_HIST}
    s_waitcnt vmcnt({5+na+nb})
    """)
    for i in range(3):
        a(f"v_cmp_le_u32 s[{4+2*i}:{5+2*i}], s10, v{7+i}")
    for i in range(3):
        a(f"v_cndmask_b32 v{16+i}, 0, v60, s[{4+2*i}:{5+2*i}]")
    for i in range(3):
        a(f"v_or3_b32 v{7+i}, v{7+i}, v{4+i}, v{16+i}")
    a(f"""
    s_waitcnt lgkmcnt(0)
    v_add_u32 v54, v48, v49
    v_add_u32 v55, v54, v50
    v_add_u32 v56, v55, v51
    v_mov_b32 v57, v56
    s_nop 1
    """)
    scan(a, "v_add_u32", [57])
    a(f"""
    v_sub_u32 v52, v57, v56
    v_add_u32 v53, v52, v48
    v_add_u32 v54, v52, v54
    v_add_u32 v55, v52, v55
    ds_write_b128 v61, v[52:55] offset:{L1_ST}
    ds_read_b32 v56, v40 offset:{L1_ST}
    ds_read_b32 v57, v41 offset:{L1_ST}
    ds_read_b32 v58, v42 offset:{L1_ST}
    v_lshl_or_b32 v48, v48, 16, v52
    v_lshl_or_b32 v49, v49, 16, v53
    v_lshl_or_b32 v50, v50, 16, v54
    v_lshl_or_b32 v51, v51, 16, v55
    v_add_u32 v17, 1024, v0
    v_add_u32 v18, 2048, v0
    s_waitcnt lgkmcnt(0)
    """)
    for i in range(3):
        a(f"v_add_u32 v{43+i}, v{43+i}, v{56+i}")
    for i in range(3):
        a(f"v_mad_u32_u24 v{40+i}, v{43+i}, 12, s67")
        a(f"v_lshlrev_b32 v{43+i}, 1, v{43+i}")
    stamp(a, o, 2)
    a(f"""
    ds_write_b16 v43, v0 offset:{L1_INV}
    ds_write_b16 v44, v17 offset:{L1_INV}
    s_waitcnt vmcnt({na+nb})
    """)
    for i in range(2):
        a(f"ds_write2_b32 v{40+i}, v{10+2*i}, v{11+2*i} offset0:0 offset1:1")
        a(f"ds_write_b32 v{40+i}, v{7+i} offset:8")
    a(f"""
    s_mov_b64 exec, s[60:61]
    s_cbranch_execz k1_b
    ds_write_b16 v45, v18 offset:{L1_INV}
    ds_write2_b32 v42, v14, v15 offset0:0 offset1:1
    ds_write_b32 v42, v9 offset:8
    k1_b:
    s_mov_b64 exec, -1
    s_cmp_lg_u32 s62, 0
    s_cbranch_scc1 k1_c
    buffer_store_dwordx4 v[48:51], v61, s[44:47], s66 offen sc1
    s_lshl_b32 s4, s2, 8
    s_add_u32 s4, s4, {TB_MB}
    v_lshlrev_b32 v64, 7, v63
    v_mov_b32 v65, 0
    s_mov_b64 exec, 3
    buffer_store_dword v65, v64, s[44:47], s4 offen sc1
    s_mov_b64 exec, -1
    k1_c:
    """)
    ld_ef(nc)
    a(f"""
    v_and_b32 v1, -2, v0
    v_and_b32 v2, 1, v0
    v_lshlrev_b32 v2, 4, v2
    v_add_u32 v2, {L1_RAW}, v2
    v_and_b32 v4, 31, v63
    v_lshrrev_b32 v5, 5, v63
    v_lshlrev_b32 v4, 2, v4
    v_lshl_add_u32 v4, v5, 10, v4
    v_add_u32 v4, {L1_WR}, v4
    s_waitcnt lgkmcnt(0)
    s_barrier
    ds_read_b128 v[24:27], v3 offset:{L1_YI}
    ds_read_b128 v[28:31], v3 offset:{L1_YI+16384}
    """)
    for j in range(5):
        a(f"ds_read_u16 v{32+j}, v1 offset:{L1_INV+1024*j}")
    for i in range(4):
        a(f"ds_read2_b32 v[{104+2*i}:{105+2*i}], v4 offset0:{64*i} offset1:{64*i+32}")
    a(f"""
    s_waitcnt lgkmcnt(10)
    buffer_store_dwordx4 v[24:27], v3, s[40:43], 0 offen {ST}
    s_waitcnt lgkmcnt(9)
    buffer_store_dwordx4 v[28:31], v3, s[40:43], s54 offen {ST}
    {"s_barrier" if "ybar" in o.exp else ""}
    """)
    ld_ef(nd)
    srd(a, sTB, 18, WS_TB, TB_SZ)
    srd(a, 48, sDP, None, 256)
    a(f"""
    s_cmp_lg_u32 s62, 12
    s_cbranch_scc1 k1_nocg
    v_and_b32 v64, 3, v63
    v_lshlrev_b32 v64, 1, v64
    s_waitcnt lgkmcnt(0)
    """)
    for h in range(2):
        for i in range(8):
            a(f"ds_read_u16 v{66+8*h+i}, v64 offset:{L1_CG+8*(8*h+i)}")
        a("s_waitcnt lgkmcnt(0)")
    for k in range(8):
        a(f"v_lshl_or_b32 v{84+k}, v{67+2*k}, 16, v{66+2*k}")
    a(f"""
    v_add_u32 v64, {L_CG}, v61
    s_mov_b64 exec, 15
    ds_write_b128 v64, v[84:87]
    ds_write_b128 v64, v[88:91] offset:64
    s_mov_b64 exec, -1
    k1_nocg:
    s_mov_b32 s4, 0xbfb8aa3b
    s_mov_b32 s5, 0xffff0000
    s_waitcnt lgkmcnt(0)
    """)
    for j in range(5):
        a(f"v_lshl_add_u32 v{32+j}, v{32+j}, 5, v2")
    for par in range(2):
        for k in range(4):
            for u in range(2):
                if par == 0:
                    a(f"v_lshlrev_b32 v{76+u}, 16, v{104+2*k+u}")
                else:
                    a(f"v_and_b32 v{76+u}, s5, v{104+2*k+u}")
            a(f"""
            v_mul_f32 v76, s4, v76
            v_mul_f32 v77, s4, v77
            v_cvt_pk_bf16_f32 v{W+4*par+k}, v76, v77
            """)
    if o.sig == "ret":
        a(f"s_waitcnt vmcnt({nd})")
        stamp(a, o, 5, True)
        arrive(a, 0, "k1_ns")
        a("s_waitcnt vmcnt(0)")
        if "pb3" in o.exp:
            stamp(a, o, 7, True)
        a(f"""
        s_cmp_eq_u32 s{sSIG}, 0
        s_cbranch_scc1 k1_nb1
        """)
        bcast(a, 0, "k1_nb1")
        a("s_barrier")
        stamp(a, o, 3)
        for j in range(5):
            a(f"ds_read_b128 v[{4+4*j}:{7+4*j}], v{32+j}")
        for j in range(5):
            a(f"s_waitcnt lgkmcnt({4-j})")
            a(f"buffer_store_dwordx4 v[{4+4*j}:{7+4*j}], v3, s[36:39], {so16[j]} offen {ST}")
    elif o.sig == "early":
        p = o.k1q
        a(f"s_waitcnt vmcnt({nd})")
        stamp(a, o, 5, True)
        a(f"""
        s_barrier
        s_cmp_lg_u32 s62, 0
        s_cbranch_scc1 k1_e0
        v_mov_b32 v64, 1
        {shard(o)}
        s_mov_b64 exec, 1
        buffer_atomic_add v64, off, s[48:51], s3 sc1
        s_mov_b64 exec, -1
        s_waitcnt vmcnt(1)
        s_branch k1_e1
        k1_e0:
        s_waitcnt vmcnt(0)
        k1_e1:
        s_lshl_b32 s4, s2, 8
        s_add_u32 s4, s4, {TB_MB}
        s_barrier
        """)
        stamp(a, o, 3)
        for j in range(5):
            a(f"ds_read_b128 v[{4+4*j}:{7+4*j}], v{32+j}")
        a(f"s_mov_b32 s{sLATE}, 0")
        bucket4(a)
        for j in range(6):
            if j == o.k1c:
                a(f"""
                s_cmp_lg_u32 s62, 0
                s_cbranch_scc1 k1_e5
                s_mov_b64 exec, 1
                buffer_load_dword v{EE}, off, s[{sTB}:{sTB+3}], s4 sc1
                s_mov_b64 exec, -1
                k1_e5:
                """)
            if j == p:
                a(f"""
                s_cmp_lg_u32 s62, 0
                s_cbranch_scc1 k1_e2
                s_waitcnt vmcnt({p - o.k1c})
                v_readfirstlane_b32 s3, v{EE}
                s_cmp_lg_u32 s3, 1
                s_cbranch_scc1 k1_e3
                s_mov_b32 s{sLATE}, 1
                """)
                stamp(a, o, 6, True)
                tgather(a, o, 63, 24)
                a("k1_e3:")
                if p < 5:
                    a(f"""
                    v_mov_b32 v64, s{sLATE}
                    v_mov_b32 v65, {L_FLAG+8}
                    ds_write_b32 v65, v64
                    s_waitcnt lgkmcnt(0)
                    """)
                a("k1_e2:")
                if p < 5:
                    a(f"""
                    s_barrier
                    v_mov_b32 v65, {L_FLAG+8}
                    ds_read_b32 v65, v65
                    """)
            if j < 5:
                a(f"s_waitcnt lgkmcnt({4-j + (1 if j >= p else 0)})")
                a(f"buffer_store_dwordx4 v[{4+4*j}:{7+4*j}], v3, s[36:39], {so16[j]} offen {ST}")
        if p < 5:
            a(f"s_waitcnt lgkmcnt(0)\nv_readfirstlane_b32 s{sLATE}, v65")
        a(f"""
        s_cmp_lg_u32 s62, 0
        s_cbranch_scc1 k1_e4
        s_cmp_lg_u32 s{sLATE}, 0
        s_cbranch_scc1 k1_e4
        s_mov_b64 exec, 1
        buffer_load_dword v{EE+1}, off, s[{sTB}:{sTB+3}], s4 sc1
        s_mov_b64 exec, -1
        k1_e4:
        """)
    else:
        p = o.k1p
        if "ya" in o.exp:
            a(f"s_waitcnt vmcnt({nd})")
            stamp(a, o, 5, True)
        if "ea" in o.exp:
            a(f"""
            s_waitcnt vmcnt({nd})
            s_barrier
            s_cmp_lg_u32 s62, 0
            s_cbranch_scc1 k1_e0
            v_mov_b32 v64, 1
            {shard(o)}
            s_mov_b64 exec, 1
            buffer_atomic_add v64, off, s[48:51], s3 sc1
            s_mov_b64 exec, -1
            s_waitcnt vmcnt(1)
            s_branch k1_e1
            k1_e0:
            s_waitcnt vmcnt(0)
            k1_e1:
            s_barrier
            """)
            p = 9
        else:
            a(f"s_waitcnt vmcnt({2 if nd == 0 else 0})\ns_barrier")
        stamp(a, o, 3)
        for j in range(5):
            a(f"ds_read_b128 v[{4+4*j}:{7+4*j}], v{32+j}")
        a("v_mov_b32 v64, 1")
        for j in range(5):
            if j == p:
                a(f"s_waitcnt vmcnt({p})")
                if "ya" not in o.exp:
                    stamp(a, o, 5, True)
                if not (p == 0 and nd > 0):
                    a("s_barrier")
                a(f"""
                s_cmp_lg_u32 s62, 0
                s_cbranch_scc1 k1_ns
                {shard(o)}
                s_mov_b64 exec, 1
                buffer_atomic_add v64, off, s[48:51], s3 sc1
                s_mov_b64 exec, -1
                k1_ns:
                """)
            a(f"s_waitcnt lgkmcnt({4-j})")
            a(f"buffer_store_dwordx4 v[{4+4*j}:{7+4*j}], v3, s[36:39], {so16[j]} offen {ST}")
    a(f"""
    s_cmp_ge_u32 s63, 4
    s_cbranch_scc1 k1_arr
    s_mov_b32 s4, 0x05040100
    s_mov_b32 s5, 0x07060302
    s_lshl_b32 s58, s63, 11
    s_add_u32 s58, s58, {TB_WM}
    """)
    for k in range(4):
        a(f"v_perm_b32 v{84+k}, v{67+2*k}, v{66+2*k}, s4")
        a(f"v_perm_b32 v{88+k}, v{67+2*k}, v{66+2*k}, s5")
    a(f"""
    buffer_store_dwordx4 v[84:87], v61, s[44:47], s58 offen sc1
    buffer_store_dwordx4 v[88:91], v61, s[44:47], s58 offen offset:1024 sc1
    k1_arr:
    v_mov_b64 v[40:41], 0
    v_mov_b64 v[42:43], 0
    v_mov_b32 v44, {L_EF + CAP*32}
    ds_write_b128 v3, v[40:43] offset:{L_AGG}
    ds_write_b128 v3, v[40:43] offset:{L_AGG+16384}
    s_cmp_ge_u32 s62, 8
    s_cbranch_scc1 k1_z
    ds_write_b128 v3, v[40:43] offset:{L_AGG+32768}
    k1_z:
    s_mov_b64 exec, 1
    ds_write_b128 v44, v[40:43]
    ds_write_b128 v44, v[40:43] offset:16
    s_mov_b64 exec, -1
    """)


def k2(a, o):
    LD = o.k2ld
    XF = o.xld
    vL = VXO
    PW = o.pw
    a(f"""
    v_and_b32 v{vL}, 63, v0
    s_mov_b32 s{sWAVE}, s62
    s_and_b32 s3, s2, 7
    s_lshl_b32 s3, s3, 5
    s_lshr_b32 s10, s2, 3
    s_or_b32 s3, s3, s10
    s_lshl_b32 s{sB4}, s3, 2
    s_mul_i32 s{sN0}, s3, 320007
    s_add_u32 s10, s{sN0}, {320007+8160}
    s_add_u32 s{sN0}, s{sN0}, 8160
    s_lshr_b32 s{sN0}, s{sN0}, 13
    s_lshr_b32 s10, s10, 13
    s_min_u32 s10, s10, {N}
    s_sub_u32 s10, s10, s{sN0}
    s_lshl_b32 s10, s10, 9
    s_lshl_b32 s11, s{sN0}, 9
    s_mov_b32 s{sW0}, 0
    s_mov_b32 s{sONE}, 1.0
    s_mov_b32 s{sONE+1}, 1.0
    s_mov_b32 s{sXNR}, {0 if "nox" in o.exp else N*512}
    s_movk_i32 s{s512}, 512
    s_mov_b64 s[8:9], s[18:19]
    """)
    srd(a, sX, 68, None, N * 512)
    srd(a, sOUT, 70, "s11", "s10")
    srd(a, sYI, 8, WS_YI, E * 12)
    srd(a, sEF, 8, WS_EF, E * 32)
    LATE = o.sig == "early" and o.k1q < 5

    def s2_arrive(x):
        stamp(a, o, 4)
        arrive(a, 128, f"k2_ns{x}")
        if o.timing:
            a("s_mov_b32 s100, s80")
        a(f"""
        s_cmp_eq_u32 s{sSIG}, 0
        s_cbranch_scc1 k2_nb0{x}
        s_waitcnt vmcnt(0)
        """)
        if o.sig == "ret" or x:
            bcast(a, 128, f"k2_nb0{x}")
            return
        a(f"""
        v_readfirstlane_b32 s3, v64
        s_and_b32 s3, s3, {G-1}
        s_mov_b32 s10, {TB_MB + 128}
        s_cmp_eq_u32 s3, {G-1}
        s_cbranch_scc1 k2_bc{x}
        s_cmp_lg_u32 s3, 0
        s_cbranch_scc1 k2_nb0{x}
        v_and_b32 v65, 63, v{VTID}
        v_mul_u32_u24 v65, {o.s1st}, v65
        s_mov_b64 exec, {11 if o.s1sh == 3 else (1 << o.s1sh) - 1}
        k2_wt{x}:
        buffer_load_dword v{EE}, v65, s[48:51], 0 offen sc1
        s_add_u32 s{sSPIN}, s{sSPIN}, 1
        {f"s_sleep {o.wsl}" if o.wsl else ""}
        s_waitcnt vmcnt(0)
        v_readlane_b32 s3, v{EE}, 0
        """)
        for i in ([1, 3] if o.s1sh == 3 else range(1, o.s1sh)):
            a(f"v_readlane_b32 s10, v{EE}, {i}\ns_add_u32 s3, s3, s10")
        a(f"""
        s_cmp_ge_u32 s3, {G}
        s_cbranch_scc1 k2_wtd{x}
        s_cmp_lt_u32 s{sSPIN}, {o.pmax}
        s_cbranch_scc1 k2_wt{x}
        k2_wtd{x}:
        s_mov_b64 exec, -1
        s_mov_b32 s10, {TB_MB}
        k2_bc{x}:
        v_and_b32 v65, 63, v{VTID}
        v_mov_b32 v64, 1
        v_lshlrev_b32 v65, 8, v65
        """)
        for i in range(4):
            a(f"buffer_store_dword v64, v65, s[{sTB}:{sTB+3}], s10 offen sc1")
            if i < 3:
                a("s_add_u32 s10, s10, 16384")
        a(f"k2_nb0{x}:")
    if o.timing:
        a("s_waitcnt lgkmcnt(0)")
        for i in range(4):
            a(f"s_mov_b32 s{96+i}, s{72+2*i}")
    if LATE:
        a(f"""
        s_cmp_eq_u32 s{sLATE}, 0
        s_cbranch_scc1 k2_el
        s_cmp_lg_u32 s{sWAVE}, {PW}
        s_cbranch_scc1 k2_p1
        s_waitcnt vmcnt({5 - o.k1q})
        s_branch k2_tw
        k2_el:
        """)
    if o.sig == "early":
        a(f"""
        s_cmp_lg_u32 s{sWAVE}, {PW}
        s_cbranch_scc1 k2_wa0
        s_cmp_lg_u32 s{sLATE}, 0
        s_cbranch_scc1 k2_wa4
        s_waitcnt vmcnt(1)
        s_branch k2_wa1
        k2_wa4:
        s_waitcnt vmcnt(4)
        s_branch k2_wa1
        k2_wa0:
        s_waitcnt vmcnt(0)
        k2_wa1:
        """)
    else:
        a("s_waitcnt vmcnt(0)")
    s2_arrive("")
    a(f"""
    s_cmp_lg_u32 s{sWAVE}, {PW}
    s_cbranch_scc1 k2_p1
    """)
    if o.sig == "early":
        if not LATE:
            a(f"s_cmp_lg_u32 s{sLATE}, 0\ns_cbranch_scc1 k2_tw")
        a(f"""
        s_waitcnt vmcnt(0)
        v_readfirstlane_b32 s3, v{EE+1}
        s_cmp_eq_u32 s3, 1
        s_cbranch_scc1 k2_tg
        """)
    poll(a, o, 0, "k2_pl1")
    def ph1_w0():
        a("k2_tg:")
        stamp(a, o, 6, True)
        tgather(a, o, vL, 24)
        a(f"""
        k2_tw:
        v_mul_u32_u24 v12, {4*CH}, v{vL}
        v_lshlrev_b32 v19, 4, v{vL}
        v_lshlrev_b32 v18, 2, v{vL}
        v_add_u32 v13, {CH}, v12
        v_add_u32 v14, {2*CH}, v12
        v_add_u32 v15, {3*CH}, v12
        v_add_u32 v19, {L_TT}, v19
        v_add_u32 v18, {L_TT}, v18
        s_waitcnt vmcnt(0)
        """)
        if "pb3" not in o.exp:
            stamp(a, o, 7, True)
        for i in range(4):
            a(f"v_lshrrev_b32 v{4+i}, 16, v{24+i}")
        a(f"""
        v_add_u32 v10, v4, v5
        v_add_u32 v11, v10, v6
        v_add_u32 v16, v11, v7
        v_mov_b32 v17, v16
        """)
        fill = [f"v_and_b32 v{i}, 0xffff, v{24+i}" for i in range(4)] + [f"v_add_u32 v{12+i}, v{12+i}, v{i}" for i in range(4)]
        a(fill.pop(0) + "\n" + fill.pop(0))
        for d in DPPS:
            a(f"v_add_u32_dpp v17, v17, v17 {d}")
            if fill:
                a(fill.pop(0) + "\n" + fill.pop(0))
            else:
                a("s_nop 1")
        a(f"""
        v_sub_u32 v8, v17, v16
        ds_write_b32 v18, v17 offset:2048
        v_add_u32 v9, v8, v4
        v_add_u32 v10, v8, v10
        v_add_u32 v11, v8, v11
        """)
        for i in range(4):
            a(f"v_sub_u32 v{12+i}, v{12+i}, v{8+i}")
        a("ds_write_b128 v19, v[8:11]")
        for i in range(4):
            a(f"v_subrev_u32 v{4+i}, s{sW0}, v{8+i}")
        a("ds_write_b128 v19, v[12:15] offset:1024")
        for i in range(4):
            a(f"v_min_u32 v{4+i}, {CAP}, v{4+i}")
        for i in range(4):
            a(f"v_lshlrev_b32 v{4+i}, 2, v{4+i}")
        for i in range(4):
            a(f"ds_max_u32 v{4+i}, v{12+i} offset:{L_XS}")
        a(f"""
        k2_p1:
        s_mul_i32 s58, s{sWAVE}, {SEG}
        v_lshlrev_b32 v4, 4, v{vL}
        v_add_u32 v16, s58, v{vL}
        v_mov_b32 v19, {L_TT + 2048 + 252}
        v_add_u32 v4, {L_TT}, v4
        v_lshlrev_b32 v5, 2, v16
        v_add_u32 v17, 64, v16
        v_add_u32 v18, 128, v16
        s_add_u32 s59, s58, s{sW0}
        s_add_u32 s10, s58, {SEG}
        s_waitcnt lgkmcnt(0)
        s_barrier
        """)
        stamp(a, o, 0)
        a(f"""
        ds_read_b128 v[8:11], v4
        ds_read_b32 v19, v19
        ds_read_b128 v[12:15], v4 offset:1024
        """)
        for i in range(3):
            a(f"ds_read_b32 v{i}, v5 offset:{L_XS+256*i}")
        a("s_waitcnt lgkmcnt(5)")
        for i in range(4):
            a(f"v_cmp_ge_u32 s[{62+2*i}:{63+2*i}], s59, v{8+i}")
        a(f"""
        s_waitcnt lgkmcnt(3)
        v_readfirstlane_b32 s{sTOT}, v19
        """)
        for i in range(4):
            a(f"v_cndmask_b32 v{4+i}, 0, v{12+i}, s[{62+2*i}:{63+2*i}]")
        a(f"""
        s_sub_u32 s{sLIM}, s{sTOT}, s{sW0}
        s_min_u32 s{sLIM}, s{sLIM}, {CAP}
        s_min_u32 s10, s10, s{sLIM}
        v_max3_u32 v4, v4, v5, v6
        v_max_u32 v3, v4, v7
        v_cmp_gt_u32 s[{sM}:{sM+1}], s10, v16
        v_cmp_gt_u32 s[{sM+2}:{sM+3}], s10, v17
        v_cmp_gt_u32 s[{sM+4}:{sM+5}], s10, v18
        s_waitcnt lgkmcnt(0)
        """)

    def ph1_all():
        a("k2_tg:")
        stamp(a, o, 6, True)
        tgather(a, o, vL, 24)
        a(f"""
        s_waitcnt vmcnt(0)
        k2_tw:
        v_lshlrev_b32 v1, 2, v{vL}
        v_add_u32 v1, {L_TT}, v1
        """)
        for i in range(4):
            a(f"ds_write_b32 v1, v{24+i} offset:{256*i}")
        if "pb3" not in o.exp:
            stamp(a, o, 7, True)
        a(f"""
        k2_p1:
        v_lshlrev_b32 v1, 4, v{vL}
        v_add_u32 v1, {L_TT}, v1
        s_mul_i32 s58, s{sWAVE}, {SEG}
        s_add_u32 s59, s58, s{sW0}
        s_waitcnt lgkmcnt(0)
        s_barrier
        """)
        stamp(a, o, 0)
        a(f"""
        ds_read_b128 v[0:3], v1
        v_mul_u32_u24 v12, {4*CH}, v{vL}
        v_add_u32 v13, {CH}, v12
        v_add_u32 v14, {2*CH}, v12
        v_add_u32 v15, {3*CH}, v12
        s_waitcnt lgkmcnt(0)
        """)
        for i in range(4):
            a(f"v_lshrrev_b32 v{4+i}, 16, v{i}")
        for i in range(4):
            a(f"v_and_b32 v{i}, 0xffff, v{i}")
        a(f"""
        v_add_u32 v10, v4, v5
        v_add_u32 v11, v10, v6
        v_add_u32 v16, v11, v7
        v_mov_b32 v17, v16
        """)
        for i in range(4):
            a(f"v_add_u32 v{12+i}, v{12+i}, v{i}")
        scan(a, "v_add_u32", [17])
        a(f"""
        v_sub_u32 v8, v17, v16
        v_readlane_b32 s{sTOT}, v17, 63
        v_add_u32 v9, v8, v4
        v_add_u32 v10, v8, v10
        v_add_u32 v11, v8, v11
        """)
        for i in range(4):
            a(f"v_sub_u32 v{12+i}, v{12+i}, v{8+i}")
        for i in range(4):
            a(f"v_cmp_ge_u32 s[{62+2*i}:{63+2*i}], s59, v{8+i}")
        for i in range(4):
            a(f"v_subrev_u32 v{8+i}, s{sW0}, v{8+i}")
        for i in range(4):
            a(f"v_min_u32 v{8+i}, {CAP}, v{8+i}")
        for i in range(4):
            a(f"v_lshlrev_b32 v{8+i}, 2, v{8+i}")
        for i in range(4):
            a(f"ds_max_u32 v{8+i}, v{12+i} offset:{L_XS}")
        a(f"""
        v_add_u32 v16, s58, v{vL}
        v_lshlrev_b32 v17, 2, v16
        """)
        for i in range(3):
            a(f"ds_read_b32 v{i}, v17 offset:{L_XS+256*i}")
        for i in range(4):
            a(f"v_cndmask_b32 v{4+i}, 0, v{12+i}, s[{62+2*i}:{63+2*i}]")
        a(f"""
        v_max3_u32 v4, v4, v5, v6
        v_max_u32 v3, v4, v7
        s_sub_u32 s{sLIM}, s{sTOT}, s{sW0}
        s_min_u32 s{sLIM}, s{sLIM}, {CAP}
        s_add_u32 s10, s58, {SEG}
        s_min_u32 s10, s10, s{sLIM}
        v_add_u32 v17, 64, v16
        v_add_u32 v18, 128, v16
        v_cmp_gt_u32 s[{sM}:{sM+1}], s10, v16
        v_cmp_gt_u32 s[{sM+2}:{sM+3}], s10, v17
        v_cmp_gt_u32 s[{sM+4}:{sM+5}], s10, v18
        s_waitcnt lgkmcnt(0)
        """)

    if "w0" in o.exp:
        ph1_w0()
    else:
        ph1_all()
    scan(a, "v_max_u32", [3, 0, 1, 2])
    a(f"""
    v_readlane_b32 s62, v3, 63
    v_readlane_b32 s63, v0, 63
    v_readlane_b32 s64, v1, 63
    v_lshrrev_b32 v7, 1, v{vL}
    v_lshlrev_b32 v7, 2, v7
    v_add_u32 v8, 128, v7
    s_max_u32 s63, s63, s62
    s_max_u32 s64, s64, s63
    v_max_u32 v0, s62, v0
    v_max_u32 v1, s63, v1
    v_max_u32 v2, s64, v2
    v_mov_b32 v3, 0xf00000
    """)
    for i in range(3):
        a(f"v_add3_u32 v{i}, v{i}, v{16+i}, s{sW0}")
    for i in range(3):
        a(f"v_cndmask_b32 v{i}, v3, v{i}, s[{sM+2*i}:{sM+2*i+1}]")
    for i in range(3):
        a(f"v_mul_u32_u24 v{4+i}, 12, v{i}")
    for i in range(3):
        a(f"buffer_load_dwordx3 v[{20+4*i}:{22+4*i}], v{4+i}, s[{sYI}:{sYI+3}], 0 offen {LD}")
    stamp(a, o, 1)
    for j in range(6):
        a(f"ds_bpermute_b32 v{32+j}, v{7+j%2}, v{j//2}")
    a(f"""
    v_and_b32 v9, 1, v{vL}
    v_lshlrev_b32 v9, 4, v9
    s_lshl_b32 s3, s58, 5
    s_add_u32 m0, s3, {L_EF}
    v_mov_b32 v62, 1
    s_waitcnt lgkmcnt(0)
    """)
    for j in range(6):
        a(f"v_lshl_or_b32 v{32+j}, v{32+j}, 5, v9")

    def dma(j):
        if j == 5:
            a(f"s_mov_b64 exec, {hex((1 << (2*(SEG-160))) - 1)}")
        a(f"buffer_load_dwordx4 v{32+j}, s[{sEF}:{sEF+3}], 0 offen {o.efld} lds")
        a("s_add_u32 m0, m0, 1024" if j < 5 else "s_mov_b64 exec, -1")
        a("s_nop 0")
    if LATE:
        a(f"""
        s_cmp_eq_u32 s{sLATE}, 0
        s_cbranch_scc1 k2_nb0l
        s_waitcnt vmcnt(3)
        """)
        srd(a, 48, sDP, None, 256)
        s2_arrive("l")
    a(f"s_waitcnt vmcnt(0)")
    for i in range(3):
        a(f"v_lshrrev_b32 v{40+i}, 24, v{22+4*i}")
    for i in range(3):
        a(f"v_bfe_u32 v{56+i}, v{22+4*i}, 16, 8")
    for i in range(3):
        a(f"v_lshlrev_b32 v{44+i}, v{40+i}, v62")
    for i in range(3):
        a(f"""
        s_mov_b64 exec, s[{sM+2*i}:{sM+2*i+1}]
        s_cbranch_execz k2_h
        ds_add_rtn_u32 v{59+i}, v{56+i}, v{44+i} offset:{L_CNT}
        """)
    a(f"""
    k2_h:
    s_mov_b64 exec, -1
    s_mov_b32 s3, 0x05040100
    """)
    for i in range(3):
        a(f"v_perm_b32 v{22+4*i}, v{16+i}, v{22+4*i}, s3")
    a(f"""
    v_lshlrev_b32 v0, 2, v{vL}
    s_mov_b32 s{sCG}, {L_CG}
    """)
    stamp(a, o, 2)
    a(f"""
    s_cmp_lg_u32 s{sWAVE}, {PW}
    s_cbranch_scc1 k2_np2
    s_cmp_lg_u32 s{sW0}, 0
    s_cbranch_scc1 k2_np2
    """)
    poll(a, o, 128, "k2_pl2")
    a("k2_np2:\ns_waitcnt lgkmcnt(0)\ns_barrier")
    stamp(a, o, 3)
    ka, kb, kc = [int(x) for x in o.k2n.split(",")]
    for j in range(ka):
        dma(j)
    a(f"""
    ds_read_b32 v64, v0 offset:{L_CNT}
    s_mov_b32 s62, {XHALF}
    """)
    for i in range(3):
        a(f"v_bfe_u32 v{59+i}, v{59+i}, v{40+i}, 16")
    a(f"""
    v_and_b32 v10, 31, v{vL}
    v_lshrrev_b32 v11, 5, v{vL}
    s_waitcnt lgkmcnt(0)
    v_add_u32 v65, 0x10001, v64
    v_and_b32 v65, 0xfffefffe, v65
    v_mov_b32 v66, v65
    v_and_b32 v68, 0xffff, v64
    v_and_b32 v70, 0xffff, v65
    """)
    scan(a, "v_add_u32", [66])
    a(f"""
    v_sub_u32 v67, v66, v65
    v_readlane_b32 s{sP}, v66, 63
    v_lshrrev_b32 v69, 16, v64
    v_lshrrev_b32 v71, 16, v65
    v_cmp_eq_u32 vcc, 0, v68
    s_and_b32 s4, s{sP}, 0xffff
    s_lshr_b32 s5, s{sP}, 16
    s_add_u32 s4, s4, 7
    s_add_u32 s5, s5, 7
    s_lshr_b32 s4, s4, 3
    s_lshr_b32 s5, s5, 3
    v_cndmask_b32 v12, 0, v62, vcc
    s_lshl_b32 s3, s4, 19
    v_add_u32 v67, s3, v67
    ds_write_b32 v0, v12 offset:{L_FLAG}
    """)
    for i in range(3):
        a(f"ds_bpermute_b32 v{i}, v{56+i}, v67")
    a(f"""
    s_lshr_b32 s6, s4, 4
    s_lshr_b32 s7, s5, 4
    s_lshl_b32 s10, s6, 3
    s_lshl_b32 s11, s7, 3
    v_cmp_lt_u32 vcc, s10, v70
    v_cmp_lt_u32 s[68:69], s11, v71
    s_and_b32 s3, s4, 15
    s_mul_i32 s63, s6, s{sWAVE}
    s_min_u32 s10, s3, s{sWAVE}
    s_add_u32 s63, s63, s10
    s_cmp_lt_u32 s{sWAVE}, s3
    s_addc_u32 s64, s6, 0
    s_and_b32 s3, s5, 15
    s_add_u32 s3, s3, s{sWAVE}
    s_mul_i32 s65, s7, s{sWAVE}
    s_sub_u32 s10, s3, 16
    s_max_i32 s10, s10, 0
    s_add_u32 s65, s65, s10
    s_cmp_ge_u32 s3, 16
    s_addc_u32 s66, s7, 0
    s_or_b64 vcc, vcc, s[68:69]
    s_cmp_lg_u64 vcc, 0
    s_cselect_b32 s{sSLOW}, 1, 0
    s_add_u32 s{sNG}, s64, s66
    s_add_u32 s3, s4, s65
    s_add_u32 s10, s63, s64
    s_sub_u32 s10, s10, s4
    s_lshl_b32 s10, s10, 3
    s_lshl_b32 s11, s65, 3
    s_bfm_b64 s[68:69], s64, 0
    s_bfm_b64 vcc, s66, 32
    s_mov_b64 exec, 0xffffffff
    v_add_u32 v12, s63, v10
    v_mov_b32 v13, s11
    s_not_b64 exec, exec
    v_add_u32 v12, s3, v10
    v_mov_b32 v13, s10
    s_mov_b64 exec, -1
    v_lshlrev_b32 v12, 1, v12
    s_or_b64 exec, vcc, s[68:69]
    s_cbranch_execz k2_nosh
    ds_write_b16 v12, v13 offset:{L_SH}
    k2_nosh:
    s_mov_b64 exec, -1
    s_waitcnt lgkmcnt(0)
    """)
    for i in range(3):
        a(f"v_bfe_u32 v{i}, v{i}, v{40+i}, 16")
    for i in range(3):
        a(f"v_add_u32 v{i}, v{i}, v{59+i}")
    a(f"""
    s_mov_b64 s[6:7], 0
    s_cmp_lt_u32 s{sWAVE}, 14
    s_cbranch_scc1 k2_nopad0
    s_sub_u32 s3, s{sWAVE}, 14
    s_mul_i32 s10, s3, s5
    s_add_u32 s10, s10, s4
    s_lshl_b32 s10, s10, 3
    s_lshl_b32 s3, s3, 4
    v_bfe_u32 v12, v64, s3, 16
    v_bfe_u32 v13, v67, s3, 16
    v_subrev_u32 v14, 40, v{vL}
    v_cmp_gt_u32 vcc, 8, v14
    v_max_i32 v14, 0, v14
    v_add3_u32 v3, v12, v13, v14
    v_and_b32 v12, 1, v12
    v_cmp_gt_u32 s[68:69], s10, v3
    v_cmp_eq_u32 s[6:7], 1, v12
    s_and_b64 vcc, vcc, s[68:69]
    s_or_b64 s[6:7], s[6:7], vcc
    k2_nopad0:
    """)
    for i in range(4):
        a(f"v_lshrrev_b32 v{4+i}, 2, v{i}")
    for i in range(4):
        a(f"v_and_b32 v{4+i}, 0x7fe, v{4+i}")
    a("s_barrier")
    for i in range(4):
        a(f"ds_read_i16 v{4+i}, v{4+i} offset:{L_SH}")
    for j in range(ka, ka + kb):
        dma(j)
    a(f"""
    v_and_b32 v70, 0xffff, v66
    v_lshrrev_b32 v71, 16, v66
    s_lshl_b32 s10, s63, 3
    s_lshl_b32 s11, s65, 3
    v_cmp_lt_u32 s[{sNM}:{sNM+1}], s10, v70
    v_cmp_lt_u32 vcc, 0, v68
    v_cmp_lt_u32 s[{sNB}:{sNB+1}], s11, v71
    v_cmp_lt_u32 s[68:69], 0, v69
    s_mov_b64 s[{sBM}:{sBM+1}], 0
    s_mov_b32 s{sBM+2}, 0
    s_mov_b32 s{sEA}, 0
    s_and_b64 s[{sNM}:{sNM+1}], s[{sNM}:{sNM+1}], vcc
    s_and_b64 s[{sNB}:{sNB+1}], s[{sNB}:{sNB+1}], s[68:69]
    s_mov_b64 s[68:69], s[{sNM}:{sNM+1}]
    s_lshl_b32 s67, s63, 2
    s_add_u32 s67, s67, 1
    s_lshl_b32 s11, s64, 2
    """)

    def bm(tag, vend, cnt):
        a(f"""
        k2_bl{tag}:
        s_ff1_i32_b64 s3, s[68:69]
        s_cmp_lt_i32 s3, 0
        s_cbranch_scc1 k2_bld{tag}
        v_readlane_b32 s10, v{vend}, s3
        s_bitset0_b64 s[68:69], s3
        s_lshr_b32 s10, s10, 1
        s_sub_u32 s10, s10, s67
        s_cmp_ge_u32 s10, s11
        s_cbranch_scc1 k2_bld{tag}
        {f"s_add_u32 s{sEA}, s{sEA}, 1" if cnt else ""}
        s_cmp_ge_u32 s10, 64
        s_cbranch_scc1 k2_bh{tag}
        s_bitset1_b64 s[{sBM}:{sBM+1}], s10
        s_branch k2_bl{tag}
        k2_bh{tag}:
        s_bitset1_b32 s{sBM+2}, s10
        s_branch k2_bl{tag}
        k2_bld{tag}:
        s_sub_u32 s10, s11, 1
        s_cmp_ge_u32 s10, 64
        s_cbranch_scc1 k2_bh2{tag}
        s_bitcmp0_b64 s[{sBM}:{sBM+1}], s10
        s_branch k2_bdone{tag}
        k2_bh2{tag}:
        s_bitcmp0_b32 s{sBM+2}, s10
        k2_bdone{tag}:
        """)
    bm("a", 70, True)
    a(f"""
    s_cselect_b32 s{sOPA}, s3, -1
    s_cmp_eq_u32 s64, 0
    s_cselect_b32 s{sOPA}, -1, s{sOPA}
    s_cmp_ge_i32 s{sOPA}, 0
    s_cselect_b32 s{sPK}, 1, 0
    s_cbranch_scc0 k2_nopk
    s_cmp_ge_u32 s10, 64
    s_cbranch_scc1 k2_pkh
    s_bitset1_b64 s[{sBM}:{sBM+1}], s10
    s_branch k2_nopk
    k2_pkh:
    s_bitset1_b32 s{sBM+2}, s10
    k2_nopk:
    s_mov_b64 s[68:69], s[{sNB}:{sNB+1}]
    s_sub_u32 s67, s65, s64
    s_lshl_b32 s67, s67, 2
    s_add_u32 s67, s67, 1
    s_lshl_b32 s11, s{sNG}, 2
    """)
    bm("b", 71, False)
    a(f"""
    s_cselect_b32 s{sOPEN}, s66, 0
    s_add_u32 s65, s65, s63
    """)
    for j in range(ka + kb, ka + kb + kc):
        dma(j)
    a("s_waitcnt lgkmcnt(0)")
    for i in range(4):
        a(f"v_add_u32 v{i}, v{i}, v{4+i}")
    for i in range(4):
        a(f"""
        v_and_b32 v{4+i}, 1, v{i}
        v_lshrrev_b32 v{12+i}, 1, v{i}
        v_lshlrev_b32 v{12+i}, 2, v{12+i}
        v_mad_u32_u24 v{4+i}, v{4+i}, s62, v{12+i}
        v_lshlrev_b32 v{i}, 3, v{i}
        """)
    for i in range(3):
        a(f"""
        s_mov_b64 exec, s[{sM+2*i}:{sM+2*i+1}]
        s_cbranch_execz k2_w0
        ds_write_b32 v{4+i}, v{22+4*i} offset:{L_XS}
        ds_write_b64 v{i}, v[{20+4*i}:{21+4*i}] offset:{L_YS}
        """)
    a(f"""
    k2_w0:
    s_mov_b64 exec, s[6:7]
    s_cbranch_execz k2_nopad
    v_mov_b32 v13, {hex(0x7fff | CAP << 16)}
    v_mov_b64 v[14:15], 0
    ds_write_b32 v7, v13 offset:{L_XS}
    ds_write_b64 v3, v[14:15] offset:{L_YS}
    k2_nopad:
    s_mov_b64 exec, -1
    """)
    for j in range(ka + kb + kc, 6):
        dma(j)
    a(f"""
    s_lshl_b32 s3, s65, 4
    s_add_u32 s3, s3, {L_XS}
    v_mov_b32 v12, s3
    v_mad_u32_u24 v{VX}, v11, s62, v12
    v_lshrrev_b32 v13, 3, v10
    v_lshl_add_u32 v12, v13, 4, v12
    v_and_b32 v13, 3, v10
    v_lshl_add_u32 v12, v13, 2, v12
    v_bfe_u32 v13, v10, 2, 1
    v_mad_u32_u24 v{VEF}, v13, s62, v12
    s_lshl_b32 s3, s65, 6
    s_add_u32 s3, s3, {L_YS}
    v_lshlrev_b32 v12, 3, v11
    v_lshl_add_u32 v12, v10, 4, v12
    v_add_u32 v{VY}, s3, v12
    v_lshlrev_b32 v12, 4, v11
    v_add_u32 v{VHB}, {L_EF}, v12
    v_lshlrev_b32 v{VJ4}, 4, v{vL}
    v_lshlrev_b32 v{VXO}, 4, v10
    """)
    for k in range(4):
        a(f"v_mov_b64 {v(ACC+2*k,2)}, 0")
    a(f"""
    v_and_or_b32 v{ZE+8}, v{VXO}, 48, s{sCG}
    s_mov_b32 s{sREM}, s{sNG}
    s_lshr_b32 s{sTH}, s{sNG}, 1
    s_mov_b32 s{sPR}, 3
    {"s_setprio 3" if "prio" in o.exp else ""}
    s_waitcnt lgkmcnt(0)
    s_barrier
    """)
    stamp(a, o, 5, "pc")
    XS = f"s[{sX}:{sX+3}]"

    def xadr(r):
        a(f"v_mad_u32_u16 v{r}, v{r}, s{s512}, v{VXO}")

    def efnext(off):
        a(f"""
        v_mad_u32_u16 v{EE}, v{VRI}, 32, v{VHB} op_sel:[1,0,0,0]
        ds_read_b128 {v(EF,4)}, v{EE}
        ds_read_b32 v{VRI}, v{VEF} offset:{off}
        """)
    a(f"""
    ds_read_b128 {v(XI,4)}, v{VX}
    ds_read_b128 {v(XI+4,4)}, v{VX} offset:16
    ds_read_b32 v{VRI}, v{VEF}
    ds_read_b64 {v(YY,2)}, v{VY}
    ds_read_b128 {v(ZE,4)}, v{ZE+8}
    ds_read_b128 {v(ZE+4,4)}, v{ZE+8} offset:64
    s_cmp_gt_u32 s{sREM}, 0
    s_cselect_b32 s{sX+2}, s{sXNR}, 0
    s_waitcnt lgkmcnt(5)
    """)
    def x03(k0, k1):
        for k in range(k0, k1):
            xadr(XI + k)
            a(f"buffer_load_dwordx4 {v(X+4*k,4)}, v{XI+k}, {XS}, 0 offen {XF}")
        if k1 == 4:
            a(f"""
            s_cmp_gt_u32 s{sREM}, 1
            s_cselect_b32 s{sX+2}, s{sXNR}, 0
            """)
    x03(0, min(o.nx, 4))
    a("s_waitcnt lgkmcnt(4)")

    def x47():
        for k in range(4, 8):
            xadr(XI + k)
            a(f"buffer_load_dwordx4 {v(X+4*k,4)}, v{XI+k}, {XS}, 0 offen {XF}")
        a(f"ds_read_b128 {v(XI,4)}, v{VX} offset:32")
    if o.nx == 8:
        x47()
    stamp(a, o, 6, "pc")
    a(f"s_waitcnt vmcnt({o.nx})")
    stamp(a, o, 7, "pc")
    a("s_barrier")
    stamp(a, o, 4)
    a(f"""
    s_cmp_eq_u32 s{sNG}, 0
    s_cbranch_scc1 k2_done
    s_waitcnt lgkmcnt(0)
    """)
    efnext(64)
    if o.nx < 4:
        x03(o.nx, 4)
    if o.nx <= 4:
        x47()

    def group_start(g):
        b = XI + 4 * (g % 2)
        nb = XI + 4 * ((g + 1) % 2)
        if "noadd" in o.exp:
            a("s_nop 3")
        else:
            for k in range(4):
                xadr(b + k)
        a(f"ds_read_b128 {v(nb,4)}, v{VX} offset:{16*(g+3)}")
        a(f"s_cmp_gt_u32 s{sREM}, 2\ns_cselect_b32 s{sX+2}, s{sXNR}, 0")

    def mf(d, ar, br, c):
        a(f"v_mfma_f32_32x32x16_bf16 {v(d,16)}, {v(ar,4)}, {v(br,4)}, {c}")

    def rprol():
        a(f"""
        v_exp_f32 v{EE}, v{ZE}
        v_exp_f32 v{EE+1}, v{ZE+1}
        v_exp_f32 v{EE+2}, v{ZO}
        v_exp_f32 v{EE+3}, v{ZO+1}
        v_pk_add_f32 {v(EE,2)}, {v(EE,2)}, s[{sONE}:{sONE+1}]
        v_pk_add_f32 {v(EE+2,2)}, {v(EE+2,2)}, s[{sONE}:{sONE+1}]
        v_rcp_f32 v{EE}, v{EE}
        v_rcp_f32 v{EE+1}, v{EE+1}
        v_rcp_f32 v{EE+2}, v{EE+2}
        v_rcp_f32 v{EE+3}, v{EE+3}
        v_pk_mul_f32 {v(ZE,2)}, {v(ZE,2)}, {v(EE,2)}
        v_pk_mul_f32 {v(ZO,2)}, {v(ZO,2)}, {v(EE+2,2)}
        """)

    a("k2_blk:")
    for t in range(32):
        g, r = t // 4, t % 16
        if t == 0:
            a("s_waitcnt lgkmcnt(0)")
            for i in range(4):
                a(f"v_mfma_f32_4x4x4_16b_bf16 {v(ZO+4*i,4)}, {v(YY,2)}, {v(ZE+2*i,2)}, 0")
            a(f"ds_read_b64 {v(YY,2)}, v{VY} offset:512")
            a(f"v_add_u32 v{VY}, 512, v{VY}")
            mf(ZE, EF, W, "0")
            for m in range(4):
                a(f"v_cvt_pk_bf16_f32 v{TA+2*m}, v{ZO+m}, v{ZO+4+m}")
            for m in range(4):
                a(f"v_cvt_pk_bf16_f32 v{TA+2*m+1}, v{ZO+8+m}, v{ZO+12+m}")
            mf(ZO, EF, W + 4, "0")
            efnext(128)
            group_start(g)
            a("s_nop 3")
            rprol()
        elif t == 16:
            a("s_waitcnt lgkmcnt(0)")
            mf(ZE, EF, W, "0")
            mf(ZO, EF, W + 4, "0")
            efnext(192)
            a(f"v_add_u32 v{VEF}, 128, v{VEF}")
            group_start(g)
            a("s_nop 2")
            rprol()
        elif t % 4 == 0:
            a("s_waitcnt lgkmcnt(0)")
            group_start(g)
            if t == 28:
                a(f"""
                v_and_or_b32 v{ZE+8}, v{VXO}, 48, s{sCG}
                ds_read_b128 {v(ZE,4)}, v{ZE+8}
                ds_read_b128 {v(ZE+4,4)}, v{ZE+8} offset:64
                """)
        k = t % 8
        xr = X + 4 * k
        ar = TA + 2 * (t % 4)
        p0 = r & ~1
        last = p0 == 14
        tr = "v_exp_f32" if r % 2 == 0 else "v_rcp_f32"

        def trn(e, z):
            if last or "notrans" in o.exp:
                return
            src = z if r % 2 == 0 else e
            a(f"{tr} v{e}, v{src}")

        def mid(e, z):
            if last:
                return
            if "v2mid" in o.exp:
                for u in range(2):
                    a(f"v_add_f32 v{e+u}, 1.0, v{e+u}" if r % 2 == 0 else f"v_mul_f32 v{z+u}, v{z+u}, v{e+u}")
            elif r % 2 == 0:
                a(f"v_pk_add_f32 {v(e,2)}, {v(e,2)}, s[{sONE}:{sONE+1}]")
            else:
                a(f"v_pk_mul_f32 {v(z,2)}, {v(z,2)}, {v(e,2)}")

        sel = "op_sel_hi:[0,1,1]" if r % 2 == 0 else "op_sel:[1,0,0] op_sel_hi:[1,1,1]"

        def fma(acc, z, tp):
            if "nofma" in o.exp:
                return
            if "v2fma" in o.exp:
                for u in range(2):
                    a(f"v_fmac_f32 v{acc+u}, v{z+r%2}, v{tp+u}")
                return
            a(f"v_pk_fma_f32 {v(acc,2)}, {v(z,2)}, {v(tp,2)}, {v(acc,2)} {sel}")

        cb = "" if "nocbsz" in o.exp else f"cbsz:3 abid:{t//4}"
        a("s_waitcnt vmcnt(7)")
        if "nomf" not in o.exp:
            a(f"v_mfma_f32_4x4x4_16b_bf16 {v(TP,4)}, {v(ar,2)}, {v(xr,2)}, 0 {cb}")
        trn(EE, ZE + p0 + 2)
        trn(EE + 1, ZE + p0 + 3)
        if "nomf" not in o.exp:
            a(f"v_mfma_f32_4x4x4_16b_bf16 {v(TP+4,4)}, {v(ar,2)}, {v(xr+2,2)}, 0 {cb}")
        if "noload" not in o.exp:
            a(f"buffer_load_dwordx4 {v(xr,4)}, v{XI+4*(g%2)+t%4}, {XS}, 0 offen {XF}")
        trn(EE + 2, ZO + p0 + 2)
        trn(EE + 3, ZO + p0 + 3)
        mid(EE, ZE + p0 + 2)
        if last:
            a("s_nop 2")
        fma(ACC, ZE + p0, TP)
        fma(ACC + 2, ZE + p0, TP + 2)
        mid(EE + 2, ZO + p0 + 2)
        fma(ACC + 4, ZO + p0, TP + 4)
        fma(ACC + 6, ZO + p0, TP + 6)
        if "nobr" in o.exp:
            a(f"k2_bk{t}:")
        else:
            a(f"s_bitcmp1_b32 s{sBM}, {t}\ns_cbranch_scc1 k2_fl{t}\nk2_bk{t}:")
        if t % 4 == 3:
            if "prio" in o.exp:
                a(f"s_sub_u32 s{sREM}, s{sREM}, 1\ns_cmp_eq_u32 s{sREM}, s{sTH}\ns_cbranch_scc1 k2_th{g}\nk2_tb{g}:")
            else:
                a(f"s_sub_u32 s{sREM}, s{sREM}, 1\ns_cmp_eq_u32 s{sREM}, 0\ns_cbranch_scc1 k2_done")
    a(f"""
    s_mov_b32 s{sBM}, s{sBM+1}
    s_mov_b32 s{sBM+1}, s{sBM+2}
    v_add_u32 v{VX}, 128, v{VX}
    s_branch k2_blk
    """)
    if "prio" in o.exp:
        for g in range(8):
            a(f"k2_th{g}:\ns_cmp_eq_u32 s{sTH}, 0\ns_cbranch_scc1 k2_done\ns_call_b64 s[{sRET}:{sRET+1}], k2_thr\ns_branch k2_tb{g}")
        a(f"""
        k2_thr:
        s_lshr_b32 s{sTH}, s{sTH}, 1
        s_sub_u32 s{sPR}, s{sPR}, 1
        s_cmp_eq_u32 s{sPR}, 2
        s_cbranch_scc1 k2_p2
        s_cmp_eq_u32 s{sPR}, 1
        s_cbranch_scc1 k2_p1x
        s_mov_b32 s{sTH}, 0
        s_setprio 0
        s_setpc_b64 s[{sRET}:{sRET+1}]
        k2_p2:
        s_setprio 2
        s_setpc_b64 s[{sRET}:{sRET+1}]
        k2_p1x:
        s_setprio 1
        s_setpc_b64 s[{sRET}:{sRET+1}]
        """)
    for t in range(32):
        a(f"k2_fl{t}:\ns_call_b64 s[{sRET}:{sRET+1}], k2_flush\ns_branch k2_bk{t}")
    def node_addr(sn):
        a(f"""
        s_lshl_b32 s58, s{sn}, 10
        s_and_b32 s59, s{sn}, 7
        s_lshl_b32 s59, s59, 4
        s_or_b32 s58, s58, s59
        s_lshl_b32 s59, s{sn}, 2
        v_xor_b32 v{TP}, s58, v{VJ4}
        """)

    def reduce_acc(dst):
        for q in range(4):
            a(f"v_permlane32_swap_b32 v{ACC+q}, v{ACC+4+q}")
        a(f"""
        v_pk_add_f32 {v(dst,2)}, {v(ACC,2)}, {v(ACC+4,2)}
        v_pk_add_f32 {v(dst+2,2)}, {v(ACC+2,2)}, {v(ACC+6,2)}
        v_mov_b64 {v(ACC+4,2)}, 0
        v_mov_b64 {v(ACC+6,2)}, 0
        """)

    def rmw(src):
        a(f"""
        v_pk_add_f32 {v(TP+4,2)}, {v(TP+4,2)}, {v(src,2)}
        v_pk_add_f32 {v(TP+6,2)}, {v(TP+6,2)}, {v(src+2,2)}
        v_mov_b64 {v(src,2)}, 0
        v_mov_b64 {v(src+2,2)}, 0
        ds_write_b128 v{TP}, {v(TP+4,4)} offset:{L_AGG}
        """)
    RET = f"s_setpc_b64 s[{sRET}:{sRET+1}]"
    SPIN = ""
    if o.spin:
        SPIN = f"""s_add_u32 s{sSPIN}, s{sSPIN}, 1
        s_cmp_lt_u32 s{sSPIN}, {o.spin}
        s_cbranch_scc1 k2_flw
        s_waitcnt lgkmcnt(0)
        v_mov_b32 v{TP+2}, 1"""
    a(f"""
    k2_flush:
    s_cmp_eq_u32 s{sEA}, 0
    s_cbranch_scc1 k2_flb
    s_sub_u32 s{sEA}, s{sEA}, 1
    s_ff1_i32_b64 s{sCUR}, s[{sNM}:{sNM+1}]
    s_bitset0_b64 s[{sNM}:{sNM+1}], s{sCUR}
    """)
    node_addr(sCUR)
    a(f"ds_read_b128 {v(TP+4,4)}, v{TP} offset:{L_AGG}")
    reduce_acc(ACC)
    a(f"v_mov_b32 v{TP+1}, s59\ns_waitcnt lgkmcnt(0)")
    rmw(ACC)
    a(f"""
    s_mov_b64 exec, 1
    ds_write_b32 v{TP+1}, v{VX} offset:{L_FLAG}
    s_mov_b64 exec, -1
    {RET}
    k2_flb:
    s_cmp_eq_u32 s{sPK}, 0
    s_cbranch_scc1 k2_flb2
    s_mov_b32 s{sPK}, 0
    """)
    reduce_acc(PARK)
    a(f"""
    v_mov_b64 {v(ACC,2)}, 0
    v_mov_b64 {v(ACC+2,2)}, 0
    {RET}
    k2_flb2:
    s_ff1_i32_b64 s{sCUR}, s[{sNB}:{sNB+1}]
    s_bitset0_b64 s[{sNB}:{sNB+1}], s{sCUR}
    """)
    node_addr(sCUR)
    a(f"""
    v_mov_b32 v{TP+1}, s59
    ds_read_b32 v{TP+2}, v{TP+1} offset:{L_FLAG}
    ds_read_b128 {v(TP+4,4)}, v{TP} offset:{L_AGG}
    """)
    reduce_acc(ACC)
    a(f"""
    k2_flw:
    s_waitcnt lgkmcnt(0)
    v_cmp_eq_u32 vcc, 0, v{TP+2}
    s_cbranch_vccnz k2_flr
    """)
    rmw(ACC)
    a(f"""
    {RET}
    k2_flr:
    ds_read_b32 v{TP+2}, v{TP+1} offset:{L_FLAG}
    ds_read_b128 {v(TP+4,4)}, v{TP} offset:{L_AGG}
    {SPIN}
    s_branch k2_flw
    k2_opena:
    s_cmp_lt_i32 s{sOPA}, 0
    s_cbranch_scc1 k2_openret
    """)
    node_addr(sOPA)
    a(f"""
    s_cmp_eq_u32 s{sSLOW}, 0
    s_cbranch_scc0 k2_opas
    ds_read_b128 {v(TP+4,4)}, v{TP} offset:{L_AGG}
    s_waitcnt lgkmcnt(0)
    """)
    rmw(PARK)
    a(f"{RET}\nk2_opas:")
    for q in range(4):
        a(f"ds_add_f32 v{TP}, v{PARK+q} offset:{L_AGG+4*q}")
    a(f"""
    {RET}
    k2_open:
    s_cmp_eq_u32 s{sOPEN}, 0
    s_cbranch_scc1 k2_openret
    s_cmp_eq_u64 s[{sNB}:{sNB+1}], 0
    s_cbranch_scc1 k2_openret
    s_cmp_eq_u32 s{sSLOW}, 0
    s_cbranch_scc1 k2_flb2
    s_ff1_i32_b64 s{sCUR}, s[{sNB}:{sNB+1}]
    """)
    node_addr(sCUR)
    reduce_acc(ACC)
    for q in range(4):
        a(f"ds_add_f32 v{TP}, v{ACC+q} offset:{L_AGG+4*q}")
    a(f"""
    k2_openret:
    {RET}
    """)
    a(f"""
    k2_done:
    s_waitcnt vmcnt(0)
    s_add_u32 s{sW0}, s{sW0}, {CAP}
    v_and_b32 v{vL}, 63, v{VTID}
    s_cmp_lt_u32 s{sW0}, s{sTOT}
    s_cbranch_scc0 k2_last
    s_waitcnt lgkmcnt(0)
    s_barrier
    s_call_b64 s[{sRET}:{sRET+1}], k2_opena
    s_waitcnt lgkmcnt(0)
    s_barrier
    s_call_b64 s[{sRET}:{sRET+1}], k2_open
    s_waitcnt lgkmcnt(0)
    s_barrier
    v_lshlrev_b32 v1, 4, v{VTID}
    v_mov_b64 v[8:9], 0
    v_mov_b64 v[10:11], 0
    ds_write_b128 v1, v[8:11] offset:{L_XS}
    s_mov_b32 s{sLATE}, 0
    s_waitcnt lgkmcnt(0)
    s_barrier
    s_cmp_lg_u32 s{sWAVE}, {PW}
    s_cbranch_scc1 k2_p1
    s_branch k2_tg
    k2_last:
    """)
    stamp(a, o, 5)
    a(f"""
    s_cmp_ge_u32 s{sWAVE}, 5
    s_cbranch_scc1 k2_nowm
    v_lshlrev_b32 v64, 4, v{vL}
    s_mov_b32 s58, {TB_WM}
    s_mov_b32 s59, {TB_WM+4096}
    """)
    for q in range(8):
        a(f"buffer_load_dwordx4 {v(4*q,4)}, v64, s[{sTB}:{sTB+3}], s{58+q//4} offen offset:{1024*(q%4)} sc1")
    a(f"""
    k2_nowm:
    v_and_b32 v64, 31, v{vL}
    v_lshrrev_b32 v65, 5, v{vL}
    v_lshrrev_b32 v66, 2, v64
    v_mul_u32_u24 v66, 1040, v66
    v_lshl_add_u32 v66, v65, 7, v66
    v_and_b32 v67, 3, v64
    v_lshl_add_u32 v66, v67, 2, v66
    s_lshl_b32 s3, s{sWAVE}, 13
    v_add_u32 v113, s3, v66
    v_lshlrev_b32 v64, 4, v64
    v_lshl_add_u32 v112, v65, 9, v64
    """)
    for i in range(1, 8):
        a(f"v_xor_b32 v{113+i}, {16*i}, v113")
    a(f"""
    s_lshl_b32 s3, s{sWAVE}, 12
    s_mov_b32 s10, 0xbf317218
    s_mov_b32 s11, 0xbf317218
    s_waitcnt lgkmcnt(0)
    s_barrier
    """)
    stamp(a, o, 6)
    a(f"""
    s_call_b64 s[{sRET}:{sRET+1}], k2_opena
    s_waitcnt lgkmcnt(0)
    s_barrier
    s_call_b64 s[{sRET}:{sRET+1}], k2_open
    s_waitcnt lgkmcnt(0)
    s_barrier
    s_cmp_ge_u32 s{sWAVE}, 5
    s_cbranch_scc1 {"k2_tm" if o.timing else "k2_end"}
    """)
    for i in range(8):
        for u in range(2):
            a(f"ds_read2st64_b32 {v(32+4*i+2*u,2)}, v{113+i} offset0:{2*u} offset1:{2*u+1}")
    for k in range(4):
        a(f"s_waitcnt lgkmcnt({12-4*k})")
        for r in range(32 + 8 * k, 40 + 8 * k, 2):
            a(f"v_pk_mul_f32 {v(r,2)}, {v(r,2)}, s[10:11]")
        for sx in range(4):
            a(f"v_cvt_pk_bf16_f32 v{64+4*sx+k}, v{32+8*k+sx}, v{36+8*k+sx}")
    a("s_waitcnt vmcnt(0)\ns_nop 0")
    for sx in range(4):
        mf(80, 64 + 4 * sx, 8 * sx, "0" if sx == 0 else v(80, 16))
        mf(96, 64 + 4 * sx, 8 * sx + 4, "0" if sx == 0 else v(96, 16))
    a("s_nop 10")
    for rq in range(4):
        b = 32 + 4 * rq
        a(f"""
        v_cvt_pk_bf16_f32 v{b}, v{80+4*rq}, v{81+4*rq}
        v_cvt_pk_bf16_f32 v{b+1}, v{82+4*rq}, v{83+4*rq}
        v_cvt_pk_bf16_f32 v{b+2}, v{96+4*rq}, v{97+4*rq}
        v_cvt_pk_bf16_f32 v{b+3}, v{98+4*rq}, v{99+4*rq}
        buffer_store_dwordx4 {v(b,4)}, v112, s[{sOUT}:{sOUT+3}], s3 offen offset:{1024*rq} {o.outst}
        """)
    if o.timing:
        a("k2_tm:\ns_waitcnt vmcnt(0)")
        stamp(a, o, 7)
        a(f"s_mov_b64 exec, 1")
        stamp_store(a, o, 1, 8, 8, sWAVE)
        stamp_store(a, o, 0, 5, 8, sWAVE, lambda i: 96 + i)
    a("k2_end:\ns_endpgm")


def desc(name, vg, sg):
    return f""".p2align 6
.amdhsa_kernel {name}
  .amdhsa_next_free_vgpr {vg}
  .amdhsa_next_free_sgpr {sg}
  .amdhsa_accum_offset {(vg+3)//4*4}
  .amdhsa_group_segment_fixed_size 0
  .amdhsa_kernarg_size 88
  .amdhsa_user_sgpr_count 2
  .amdhsa_user_sgpr_kernarg_segment_ptr 1
  .amdhsa_system_sgpr_workgroup_id_x 1
.end_amdhsa_kernel
"""


def main():
    p = argparse.ArgumentParser()
    p.add_argument("-o", default="cdna_kernels/" + NAME + ".s")
    p.add_argument("--timing", action="store_true")
    p.add_argument("--k1ld", default="nt")
    p.add_argument("--k1st", default="sc1")
    p.add_argument("--k2ld", default="sc1")
    p.add_argument("--xld", default="")
    p.add_argument("--outst", default="sc1")
    p.add_argument("--exp", default="prio,ybar")
    p.add_argument("--spin", type=int, default=0)
    p.add_argument("--psl", type=int, default=4)
    p.add_argument("--pmax", type=int, default=100000)
    p.add_argument("--k1n", default="1,2,1")
    p.add_argument("--pw", type=int, default=0)
    p.add_argument("--pd", type=int, default=1)
    p.add_argument("--wd", type=int, default=1)
    p.add_argument("--wsl", type=int, default=0)
    p.add_argument("--efld", default="sc1")
    p.add_argument("--k2n", default="3,0,3")
    p.add_argument("--sig", default="watch")
    p.add_argument("--k1p", type=int, default=0)
    p.add_argument("--nx", type=int, default=2)
    p.add_argument("--k1q", type=int, default=2)
    p.add_argument("--k1c", type=int, default=1)
    p.add_argument("--s1sh", type=int, default=1)
    p.add_argument("--s1st", type=int, default=64)
    p.add_argument("--s1sf", type=int, default=0)
    o = p.parse_args()
    o.exp = set(o.exp.split(","))
    K = NAME + "_kernel"
    a = A()
    o.ph2 = True
    k1(a, o)
    k2(a, o)
    t = f"""; TFN tensor-product message passing in one launch of 256 co-resident workgroups.
; Kernarg: 0 x, 8 src, 16 dst, 24 Y, 32 edge_feat, 40 w_rad, 48 cg, 56 w_mix, 64 out, 72 debug, 80 ws
; @launch grid=({G},1,1) block=(1024,1,1) lds={LDS_SZ}
.amdgcn_target "amdgcn-amd-amdhsa--gfx950"
.text
.globl {K}
.p2align 8
.type {K},@function
{K}:
{a.text()}
.section .rodata,"a"
{desc(K, 128, 102)}"""
    open(o.o, "w").write(t)


main()
```

```python
import sys, argparse

NAME = "gather_scatter__tensor_product_equiv_tfn__graph"
E, N = 640000, 10000
G, CH = 256, 2500
BMUL = 26843
WS_EF = 0
WS_YI = E * 32
WS_TB = WS_YI + E * 12
TB_WM = 262144
TB_MB = TB_WM + 8192
TB_SZ = TB_MB + 65536
WS_TM = WS_TB + 524288
HALF = 5000
L1_HIST, L1_ST, L1_INV, L1_YI = 0, 1024, 2048, 7168
L1_RAW = 81920
L1_WR, L1_CG = 37376, 39424
LDS_SZ = 163840
CAP, C = 2720, 2816
SEG = 170
L_AGG = 0
L_XS = 40960
XHALF = C // 2 * 4
L_CNT = L_XS + C * 4
L_FLAG = L_CNT + 256
L_SH = L_FLAG + 256
L_YS = L_SH + C // 8 * 2
L_CG = L_YS + C * 8
L_EF = L_CG + 128
L_SZ = L_EF + (CAP + 1) * 32
L_TT = L_EF
assert L_SZ <= 163840 and L_CG % 64 == 0 and XHALF % 16 == 0 and L_YS % 16 == 0 and L_EF % 16 == 0
assert L_CG >= 65536 and SEG * 16 == CAP


class A:
    def __init__(s):
        s.l = []

    def __call__(s, t):
        for x in t.strip("\n").split("\n"):
            x = x.strip()
            if x:
                s.l.append(x if x.endswith(":") else "    " + x)

    def text(s):
        return "\n".join(s.l) + "\n"


def v(a, n=1):
    return f"v{a}" if n == 1 else f"v[{a}:{a+n-1}]"


def s(a, n=1):
    return f"s{a}" if n == 1 else f"s[{a}:{a+n-1}]"


def srd(a, r, ptr, off, nr):
    if off is None:
        a(f"s_mov_b32 s{r}, s{ptr}\ns_mov_b32 s{r+1}, s{ptr+1}")
    else:
        a(f"s_add_u32 s{r}, s{ptr}, {off}\ns_addc_u32 s{r+1}, s{ptr+1}, 0")
    a(f"s_mov_b32 s{r+2}, {nr}\ns_mov_b32 s{r+3}, 0x20000")


DPPS = ["row_shr:1 row_mask:0xf bank_mask:0xf bound_ctrl:1",
        "row_shr:2 row_mask:0xf bank_mask:0xf bound_ctrl:1",
        "row_shr:4 row_mask:0xf bank_mask:0xf bound_ctrl:1",
        "row_shr:8 row_mask:0xf bank_mask:0xf bound_ctrl:1",
        "row_bcast:15 row_mask:0xa bank_mask:0xf",
        "row_bcast:31 row_mask:0xc bank_mask:0xf"]


def scan(a, op, regs):
    for d in DPPS:
        for r in regs:
            a(f"{op}_dpp v{r}, v{r}, v{r} {d}")
        if len(regs) < 3:
            a(f"s_nop {2 - len(regs)}")


def stamp(a, o, i, alt=False):
    sets = [x for x in ("pst", "pc", "pd") if x in o.exp]
    alt = "pst" if alt is True else alt
    if sets and i >= 5 and not alt:
        return
    if alt and alt not in sets:
        return
    if o.timing:
        a(f"{'s_memtime' if 'clk' in o.exp else 's_memrealtime'} s[{72+2*i}:{73+2*i}]")


def stamp_store(a, o, kern, n, ptr, sw, reg=lambda i: 72 + 2 * i):
    if not o.timing:
        return
    a(f"""
    s_waitcnt lgkmcnt(0)
    s_lshl_b32 s3, s2, 4
    s_add_u32 s3, s3, s{sw}
    s_lshl_b32 s3, s3, 6
    s_add_u32 s3, s3, {WS_TM + kern*262144}
    """)
    srd(a, 68, ptr, "s3", 64)
    a("s_nop 4\nv_mov_b32 v0, 0")
    for i in range(n):
        a(f"v_mov_b32 v1, s{reg(i)}\nbuffer_store_dword v1, v0, s[68:71], 0 offen offset:{4*i}\ns_nop 1")


X, ZE, ZO, TA, TP, ACC, EE, W, EF, YY, XI = 0, 32, 48, 64, 72, 80, 88, 92, 108, 112, 114
PARK, VRI, VHB = 100, 104, 105
VXO, VX, VY, VEF, VJ4, VTID = 122, 123, 124, 125, 126, 127
sX, sEF, sYI, sTB, sOUT = 12, 16, 20, 24, 28
sWAVE, sB4, sN0, sW0, sTOT, sLIM, sP = 32, 33, 34, 35, 36, 37, 38
sNG = 39
sONE, sXNR, sREM, sBM, sNM, sCUR, sCG = 40, 42, 43, 44, 48, 50, 51
sM = 52
sRET = 60
sSLOW, sOPEN = 47, 70
sTH, sPR = 71, 11
sNB, sEA, sOPA, sPK, s512 = 88, 90, 91, 92, 93
sDP, sSPIN, sSIG, sLATE = 94, 101, 60, 61


def mbword(o, word):
    return TB_MB + ((32768 if o.mbg else 128) if word else 0)


def bstore(a, o, sr):
    a(f"v_and_b32 v65, 63, v{VTID}\nv_mov_b32 v64, 1")
    if o.mbg:
        sh = o.mbg.bit_length() - 3
        a(f"""
        v_and_b32 v66, {o.mbg//4 - 1}, v65
        v_lshrrev_b32 v65, {sh}, v65
        v_mul_u32_u24 v65, {o.mbs}, v65
        v_lshl_add_u32 v68, v66, 4, v65
        v_mov_b32 v65, 1
        v_mov_b32 v66, 1
        v_mov_b32 v67, 1
        buffer_store_dwordx4 v[64:67], v68, s[{sTB}:{sTB+3}], {sr} offen sc1
        """)
    else:
        a("v_lshlrev_b32 v65, 8, v65")
        for i in range(4):
            a(f"buffer_store_dword v64, v65, s[{sTB}:{sTB+3}], {sr} offen sc1")
            if i < 3:
                a(f"s_add_u32 {sr}, {sr}, 16384")


def watch(a, o, x):
    a(f"""
    v_and_b32 v65, 63, v{VTID}
    v_mul_u32_u24 v65, {o.s1st}, v65
    s_mov_b64 exec, {11 if o.s1sh == 3 else (1 << o.s1sh) - 1}
    k2_wt{x}:
    buffer_load_dword v{EE}, v65, s[48:51], 0 offen sc1
    s_add_u32 s{sSPIN}, s{sSPIN}, 1
    {f"s_sleep {o.wsl}" if o.wsl else ""}
    s_waitcnt vmcnt(0)
    v_readlane_b32 s3, v{EE}, 0
    """)
    for i in ([1, 3] if o.s1sh == 3 else range(1, o.s1sh)):
        a(f"v_readlane_b32 s10, v{EE}, {i}\ns_add_u32 s3, s3, s10")
    a(f"""
    s_cmp_ge_u32 s3, {G}
    s_cbranch_scc1 k2_wtd{x}
    s_cmp_lt_u32 s{sSPIN}, {o.pmax}
    s_cbranch_scc1 k2_wt{x}
    k2_wtd{x}:
    s_mov_b64 exec, -1
    """)


def bcast(a, o, word, tag):
    a(f"""
    v_readfirstlane_b32 s3, v64
    s_and_b32 s3, s3, {G-1}
    s_cmp_lg_u32 s3, {G-1}
    s_cbranch_scc1 {tag}
    s_mov_b32 s3, {mbword(o, word)}
    """)
    bstore(a, o, "s3")
    a(f"{tag}:")


def arrive(a, word, tag):
    a(f"""
    v_mov_b32 v64, 1
    v_mov_b32 v65, {L_FLAG + word // 32}
    s_mov_b32 s{sSIG}, 0
    s_mov_b64 exec, 1
    ds_add_rtn_u32 v65, v65, v64
    s_waitcnt lgkmcnt(0)
    v_readfirstlane_b32 s3, v65
    s_cmp_lg_u32 s3, 15
    s_cbranch_scc1 {tag}
    buffer_atomic_add v64, off, s[48:51], 0 offset:{word} sc0 sc1
    s_mov_b32 s{sSIG}, 1
    {tag}:
    s_mov_b64 exec, -1
    """)


def poll(a, o, word, tag):
    a(f"""
    {mbaddr(o, "s3", word)}
    v_mov_b32 v{EE}, 0
    s_mov_b64 exec, 1
    {tag}:
    buffer_load_dword v{EE}, off, s[{sTB}:{sTB+3}], s3 sc1
    s_add_u32 s{sSPIN}, s{sSPIN}, 1
    {f"s_sleep {o.psl}" if o.psl and o.pd > 1 else ""}
    s_waitcnt vmcnt({o.pd - 1})
    v_readfirstlane_b32 s10, v{EE}
    s_cmp_eq_u32 s10, 1
    s_cbranch_scc1 {tag}d
    s_cmp_ge_u32 s{sSPIN}, {o.pmax}
    s_cbranch_scc1 {tag}d
    {f"s_sleep {o.psl}" if o.psl and o.pd == 1 else ""}
    s_branch {tag}
    {tag}d:
    s_mov_b64 exec, -1
    """)


def shard(o):
    if o.s1sh == 3:
        return """s_mul_i32 s3, s2, 171
        s_lshr_b32 s3, s3, 9
        s_mul_i32 s3, s3, 3
        s_sub_u32 s3, s2, s3
        s_lshl_b32 s3, s3, 6
        s_cmp_eq_u32 s3, 128
        s_cselect_b32 s3, 192, s3"""
    return f"""s_lshr_b32 s3, s2, {o.s1sf}
    s_and_b32 s3, s3, {o.s1sh-1}
    s_mul_i32 s3, s3, {o.s1st}"""


def mbaddr(o, dst, word, tmp="s10"):
    if not o.mbg:
        return f"s_lshl_b32 {dst}, s2, 8\ns_add_u32 {dst}, {dst}, {TB_MB + word}"
    lg = o.mbg.bit_length() - 1
    if o.mbx:
        pre = f"""s_and_b32 {dst}, s2, 7
        s_lshl_b32 {dst}, {dst}, 5
        s_lshr_b32 {tmp}, s2, 3
        s_or_b32 {dst}, {dst}, {tmp}"""
    else:
        pre = f"s_mov_b32 {dst}, s2"
    return f"""{pre}
    s_and_b32 {tmp}, {dst}, {o.mbg-1}
    s_lshl_b32 {tmp}, {tmp}, 2
    s_lshr_b32 {dst}, {dst}, {lg}
    s_mul_i32 {dst}, {dst}, {o.mbs}
    s_add_u32 {dst}, {dst}, {tmp}
    s_add_u32 {dst}, {dst}, {TB_MB + (32768 if word else 0)}"""


def bucket4(a):
    a(f"""
    s_and_b32 s3, s2, 7
    s_lshl_b32 s3, s3, 5
    s_lshr_b32 s10, s2, 3
    s_or_b32 s3, s3, s10
    s_lshl_b32 s{sB4}, s3, 2
    """)


def tgather(a, o, vl, dst):
    if "w0" in o.exp:
        a(f"v_lshlrev_b32 v{dst+4}, 12, v{vl}")
        for i in range(4):
            a(f"buffer_load_dword v{dst+i}, v{dst+4}, s[{sTB}:{sTB+3}], s{sB4} offen offset:{1024*i} sc1")
        return
    a(f"v_lshlrev_b32 v{dst+4}, 10, v{vl}\ns_mov_b32 s3, s{sB4}")
    for i in range(4):
        a(f"buffer_load_dword v{dst+i}, v{dst+4}, s[{sTB}:{sTB+3}], s3 offen sc1")
        if i < 3:
            a("s_add_u32 s3, s3, 65536")


def k1(a, o):
    LD = o.k1ld
    ST = o.k1st
    na, nb, nc = [int(x) for x in o.k1n.split(",")]
    nd = 5 - na - nb - nc
    a(f"""
    s_cmp_ge_u32 s2, {G}
    s_cbranch_scc1 k2_end
    """)
    stamp(a, o, 0)
    a(f"""
    s_load_dwordx4 s[4:7], s[0:1], 8
    s_load_dwordx4 s[8:11], s[0:1], 24
    s_load_dwordx4 s[12:15], s[0:1], 40
    s_load_dwordx2 s[16:17], s[0:1], 56
    s_load_dwordx2 s[18:19], s[0:1], 80
    s_load_dwordx2 s[68:69], s[0:1], 0
    s_load_dwordx2 s[70:71], s[0:1], 64
    s_load_dwordx2 s[{sDP}:{sDP+1}], s[0:1], 72
    v_lshlrev_b32 v1, 2, v0
    v_lshlrev_b32 v2, 3, v0
    v_lshlrev_b32 v3, 4, v0
    v_and_b32 v46, 0x3fc, v1
    v_mov_b64 v[48:49], 0
    v_mov_b64 v[50:51], 0
    v_lshrrev_b32 v62, 6, v0
    v_and_b32 v63, 63, v0
    ds_write_b32 v46, v48 offset:{L1_HIST}
    v_readfirstlane_b32 s62, v62
    v_cmp_gt_u32 vcc, {CH - 2048}, v0
    v_mov_b32 v{VTID}, v0
    s_movk_i32 s52, 4096
    s_movk_i32 s53, 8192
    s_movk_i32 s54, 16384
    s_mov_b32 s55, 32768
    s_mov_b32 s56, 65536
    s_mov_b32 s57, 49152
    s_mov_b64 s[60:61], vcc
    s_mul_i32 s3, s2, {CH*4}
    s_mul_i32 s58, s2, {CH*8}
    s_mul_i32 s59, s2, {CH*32}
    s_mov_b32 s{sSPIN}, 0
    s_cmp_lt_u32 s2, 4
    s_cselect_b32 s63, s2, 6
    s_cmp_eq_u32 s62, 13
    s_cselect_b32 s63, s63, 6
    s_waitcnt lgkmcnt(0)
    """)
    srd(a, 24, 6, "s3", CH * 4)
    a(f"""
    s_cmp_ge_u32 s63, 4
    s_cbranch_scc1 k1_noimg0
    v_and_b32 v64, 31, v63
    v_lshrrev_b32 v65, 5, v63
    v_lshlrev_b32 v64, 2, v64
    """)
    srd(a, 48, 16, None, 8192)
    a(f"""
    v_lshl_add_u32 v64, v65, 11, v64
    s_and_b32 s64, s63, 1
    s_lshl_b32 s64, s64, 12
    s_lshr_b32 s65, s63, 1
    s_lshl_b32 s65, s65, 7
    s_add_u32 s64, s64, s65
    """)
    for i in range(8):
        a(f"buffer_load_dword v{66+i}, v64, s[48:51], s64 offen offset:{256*i}")
    a("k1_noimg0:")
    so4 = ["0", "s52", "s53"]
    so8 = ["0", "s53", "s54"]
    so16 = ["0", "s54", "s55", "s57", "s56"]
    for i in range(3):
        a(f"buffer_load_dword v{4+i}, v1, s[24:27], {so4[i]} offen {LD}")
    srd(a, 20, 4, "s3", CH * 4)
    srd(a, 28, 8, "s58", CH * 8)
    srd(a, 36, 12, None, 2048)
    srd(a, 40, 14, None, 128)
    for i in range(3):
        a(f"buffer_load_dword v{7+i}, v1, s[20:23], {so4[i]} offen {LD}")
    a(f"""
    v_lshlrev_b32 v61, 4, v63
    s_lshl_b32 s64, s62, 7
    s_add_u32 m0, s64, {L1_WR}
    s_mov_b64 exec, 0xff
    buffer_load_dwordx4 v61, s[36:39], s64 offen lds
    s_mov_b32 m0, {L1_CG}
    s_nop 0
    buffer_load_dwordx4 v61, s[40:43], 0 offen lds
    s_mov_b64 exec, -1
    """)
    for i in range(3):
        a(f"buffer_load_dwordx2 v[{10+2*i}:{11+2*i}], v2, s[28:31], {so8[i]} offen {LD}")
    srd(a, 32, 10, "s59", CH * 32)
    jj = [0]

    def ld_ef(n):
        for _ in range(n):
            j = jj[0]
            a(f"buffer_load_dwordx4 v3, s[32:35], {so16[j]} offen {LD} lds")
            if j < 4:
                a("s_add_u32 m0, m0, 16384\ns_nop 0")
            jj[0] += 1
    a(f"""
    ds_write_b128 v3, v[48:51] offset:{L_XS}
    s_lshl_b32 s3, s62, 10
    s_add_u32 m0, s3, {L1_RAW}
    s_lshl_b32 s66, s2, 10
    s_mov_b32 s67, {L1_YI}
    v_mov_b32 v47, 1
    v_mov_b32 v60, {1<<28}
    s_movk_i32 s10, {HALF}
    s_barrier
    """)
    ld_ef(na)
    a(f"s_add_u32 s59, s59, {WS_EF}")
    srd(a, 36, 18, "s59", CH * 32)
    a(f"s_mul_i32 s58, s2, {CH*12}\ns_add_u32 s58, s58, {WS_YI}")
    srd(a, 40, 18, "s58", CH * 12)
    srd(a, 44, 18, WS_TB, TB_SZ)
    a(f"s_waitcnt vmcnt({8+na})")
    stamp(a, o, 1)
    for i in range(3):
        a(f"v_mul_u32_u24 v{16+i}, {BMUL}, v{4+i}")
    for i in range(3):
        a(f"v_lshrrev_b32 v{16+i}, 20, v{16+i}")
    for i in range(3):
        a(f"v_lshlrev_b32 v{40+i}, 2, v{16+i}")
    a(f"""
    ds_add_rtn_u32 v43, v40, v47 offset:{L1_HIST}
    ds_add_rtn_u32 v44, v41, v47 offset:{L1_HIST}
    s_mov_b64 exec, s[60:61]
    s_cbranch_execz k1_a
    ds_add_rtn_u32 v45, v42, v47 offset:{L1_HIST}
    k1_a:
    s_mov_b64 exec, -1
    """)
    ld_ef(nb)
    for i in range(3):
        a(f"v_mul_u32_u24 v{16+i}, 320007, v{16+i}")
    for i in range(3):
        a(f"v_add_u32 v{16+i}, 8160, v{16+i}")
    for i in range(3):
        a(f"v_lshrrev_b32 v{16+i}, 13, v{16+i}")
    for i in range(3):
        a(f"v_sub_u32 v{4+i}, v{4+i}, v{16+i}")
    for i in range(3):
        a(f"v_lshlrev_b32 v{4+i}, 18, v{4+i}")
    a(f"""
    s_waitcnt lgkmcnt(0)
    s_barrier
    ds_read_b128 v[48:51], v61 offset:{L1_HIST}
    s_waitcnt vmcnt({5+na+nb})
    """)
    for i in range(3):
        a(f"v_cmp_le_u32 s[{4+2*i}:{5+2*i}], s10, v{7+i}")
    for i in range(3):
        a(f"v_cndmask_b32 v{16+i}, 0, v60, s[{4+2*i}:{5+2*i}]")
    for i in range(3):
        a(f"v_or3_b32 v{7+i}, v{7+i}, v{4+i}, v{16+i}")
    a(f"""
    s_waitcnt lgkmcnt(0)
    v_add_u32 v54, v48, v49
    v_add_u32 v55, v54, v50
    v_add_u32 v56, v55, v51
    v_mov_b32 v57, v56
    s_nop 1
    """)
    scan(a, "v_add_u32", [57])
    a(f"""
    v_sub_u32 v52, v57, v56
    v_add_u32 v53, v52, v48
    v_add_u32 v54, v52, v54
    v_add_u32 v55, v52, v55
    ds_write_b128 v61, v[52:55] offset:{L1_ST}
    ds_read_b32 v56, v40 offset:{L1_ST}
    ds_read_b32 v57, v41 offset:{L1_ST}
    ds_read_b32 v58, v42 offset:{L1_ST}
    v_lshl_or_b32 v48, v48, 16, v52
    v_lshl_or_b32 v49, v49, 16, v53
    v_lshl_or_b32 v50, v50, 16, v54
    v_lshl_or_b32 v51, v51, 16, v55
    v_add_u32 v17, 1024, v0
    v_add_u32 v18, 2048, v0
    s_waitcnt lgkmcnt(0)
    """)
    for i in range(3):
        a(f"v_add_u32 v{43+i}, v{43+i}, v{56+i}")
    for i in range(3):
        a(f"v_mad_u32_u24 v{40+i}, v{43+i}, 12, s67")
        a(f"v_lshlrev_b32 v{43+i}, 1, v{43+i}")
    stamp(a, o, 2)
    a(f"""
    ds_write_b16 v43, v0 offset:{L1_INV}
    ds_write_b16 v44, v17 offset:{L1_INV}
    s_waitcnt vmcnt({na+nb})
    """)
    for i in range(2):
        a(f"ds_write2_b32 v{40+i}, v{10+2*i}, v{11+2*i} offset0:0 offset1:1")
        a(f"ds_write_b32 v{40+i}, v{7+i} offset:8")
    a(f"""
    s_mov_b64 exec, s[60:61]
    s_cbranch_execz k1_b
    ds_write_b16 v45, v18 offset:{L1_INV}
    ds_write2_b32 v42, v14, v15 offset0:0 offset1:1
    ds_write_b32 v42, v9 offset:8
    k1_b:
    s_mov_b64 exec, -1
    s_cmp_lg_u32 s62, 0
    s_cbranch_scc1 k1_c
    buffer_store_dwordx4 v[48:51], v61, s[44:47], s66 offen sc1
    {mbaddr(o, "s4", 0, "s5")}
    v_lshlrev_b32 v64, {15 if o.mbg else 7}, v63
    v_mov_b32 v65, 0
    s_mov_b64 exec, 3
    buffer_store_dword v65, v64, s[44:47], s4 offen sc1
    s_mov_b64 exec, -1
    k1_c:
    """)
    ld_ef(nc)
    a(f"""
    v_and_b32 v1, -2, v0
    v_and_b32 v2, 1, v0
    v_lshlrev_b32 v2, 4, v2
    v_add_u32 v2, {L1_RAW}, v2
    v_and_b32 v4, 31, v63
    v_lshrrev_b32 v5, 5, v63
    v_lshlrev_b32 v4, 2, v4
    v_lshl_add_u32 v4, v5, 10, v4
    v_add_u32 v4, {L1_WR}, v4
    s_waitcnt lgkmcnt(0)
    s_barrier
    ds_read_b128 v[24:27], v3 offset:{L1_YI}
    ds_read_b128 v[28:31], v3 offset:{L1_YI+16384}
    """)
    for j in range(5):
        a(f"ds_read_u16 v{32+j}, v1 offset:{L1_INV+1024*j}")
    for i in range(4):
        a(f"ds_read2_b32 v[{104+2*i}:{105+2*i}], v4 offset0:{64*i} offset1:{64*i+32}")
    a(f"""
    s_waitcnt lgkmcnt(10)
    buffer_store_dwordx4 v[24:27], v3, s[40:43], 0 offen {ST}
    s_waitcnt lgkmcnt(9)
    buffer_store_dwordx4 v[28:31], v3, s[40:43], s54 offen {ST}
    {"s_barrier" if "ybar" in o.exp else ""}
    """)
    ld_ef(nd)
    srd(a, sTB, 18, WS_TB, TB_SZ)
    srd(a, 48, sDP, None, 256)
    a(f"""
    s_cmp_lg_u32 s62, 12
    s_cbranch_scc1 k1_nocg
    v_and_b32 v64, 3, v63
    v_lshlrev_b32 v64, 1, v64
    s_waitcnt lgkmcnt(0)
    """)
    for h in range(2):
        for i in range(8):
            a(f"ds_read_u16 v{66+8*h+i}, v64 offset:{L1_CG+8*(8*h+i)}")
        a("s_waitcnt lgkmcnt(0)")
    for k in range(8):
        a(f"v_lshl_or_b32 v{84+k}, v{67+2*k}, 16, v{66+2*k}")
    a(f"""
    v_add_u32 v64, {L_CG}, v61
    s_mov_b64 exec, 15
    ds_write_b128 v64, v[84:87]
    ds_write_b128 v64, v[88:91] offset:64
    s_mov_b64 exec, -1
    k1_nocg:
    s_mov_b32 s4, 0xbfb8aa3b
    s_mov_b32 s5, 0xffff0000
    s_waitcnt lgkmcnt(0)
    """)
    for j in range(5):
        a(f"v_lshl_add_u32 v{32+j}, v{32+j}, 5, v2")
    for par in range(2):
        for k in range(4):
            for u in range(2):
                if par == 0:
                    a(f"v_lshlrev_b32 v{76+u}, 16, v{104+2*k+u}")
                else:
                    a(f"v_and_b32 v{76+u}, s5, v{104+2*k+u}")
            a(f"""
            v_mul_f32 v76, s4, v76
            v_mul_f32 v77, s4, v77
            v_cvt_pk_bf16_f32 v{W+4*par+k}, v76, v77
            """)
    if o.sig == "ret":
        a(f"s_waitcnt vmcnt({nd})")
        stamp(a, o, 5, True)
        arrive(a, 0, "k1_ns")
        a("s_waitcnt vmcnt(0)")
        if "pb3" in o.exp:
            stamp(a, o, 7, True)
        a(f"""
        s_cmp_eq_u32 s{sSIG}, 0
        s_cbranch_scc1 k1_nb1
        """)
        bcast(a, o, 0, "k1_nb1")
        a("s_barrier")
        stamp(a, o, 3)
        for j in range(5):
            a(f"ds_read_b128 v[{4+4*j}:{7+4*j}], v{32+j}")
        for j in range(5):
            a(f"s_waitcnt lgkmcnt({4-j})")
            a(f"buffer_store_dwordx4 v[{4+4*j}:{7+4*j}], v3, s[36:39], {so16[j]} offen {ST}")
    elif o.sig == "early":
        p = o.k1q
        a(f"s_waitcnt vmcnt({nd})")
        stamp(a, o, 5, True)
        a(f"""
        s_barrier
        s_cmp_lg_u32 s62, 0
        s_cbranch_scc1 k1_e0
        v_mov_b32 v64, 1
        {shard(o)}
        s_mov_b64 exec, 1
        buffer_atomic_add v64, off, s[48:51], s3 sc1
        s_mov_b64 exec, -1
        s_waitcnt vmcnt(1)
        s_branch k1_e1
        k1_e0:
        s_waitcnt vmcnt(0)
        k1_e1:
        {mbaddr(o, "s4", 0, "s5")}
        s_barrier
        """)
        stamp(a, o, 3)
        for j in range(5):
            a(f"ds_read_b128 v[{4+4*j}:{7+4*j}], v{32+j}")
        a(f"s_mov_b32 s{sLATE}, 0")
        bucket4(a)
        for j in range(6):
            if j == o.k1c:
                a(f"""
                s_cmp_lg_u32 s62, 0
                s_cbranch_scc1 k1_e5
                s_mov_b64 exec, 1
                buffer_load_dword v{EE}, off, s[{sTB}:{sTB+3}], s4 sc1
                s_mov_b64 exec, -1
                k1_e5:
                """)
            if j == p:
                a(f"""
                s_cmp_lg_u32 s62, 0
                s_cbranch_scc1 k1_e2
                s_waitcnt vmcnt({p - o.k1c})
                v_readfirstlane_b32 s3, v{EE}
                s_cmp_lg_u32 s3, 1
                s_cbranch_scc1 k1_e3
                s_mov_b32 s{sLATE}, 1
                """)
                stamp(a, o, 6, True)
                tgather(a, o, 63, 24)
                a("k1_e3:")
                if p < 5:
                    a(f"""
                    v_mov_b32 v64, s{sLATE}
                    v_mov_b32 v65, {L_FLAG+8}
                    ds_write_b32 v65, v64
                    s_waitcnt lgkmcnt(0)
                    """)
                a("k1_e2:")
                if p < 5:
                    a(f"""
                    s_barrier
                    v_mov_b32 v65, {L_FLAG+8}
                    ds_read_b32 v65, v65
                    """)
            if j < 5:
                a(f"s_waitcnt lgkmcnt({4-j + (1 if j >= p else 0)})")
                a(f"buffer_store_dwordx4 v[{4+4*j}:{7+4*j}], v3, s[36:39], {so16[j]} offen {ST}")
        if p < 5:
            a(f"s_waitcnt lgkmcnt(0)\nv_readfirstlane_b32 s{sLATE}, v65")
        a(f"""
        s_cmp_lg_u32 s62, 0
        s_cbranch_scc1 k1_e4
        s_cmp_lg_u32 s{sLATE}, 0
        s_cbranch_scc1 k1_e4
        s_mov_b64 exec, 1
        buffer_load_dword v{EE+1}, off, s[{sTB}:{sTB+3}], s4 sc1
        s_mov_b64 exec, -1
        k1_e4:
        """)
    elif o.sig == "hold":
        h = o.k1q
        a(f"s_waitcnt vmcnt({nd})")
        stamp(a, o, 5, True)
        a(f"""
        s_barrier
        s_cmp_lg_u32 s62, 0
        s_cbranch_scc1 k1_e0
        v_mov_b32 v64, 1
        {shard(o)}
        s_mov_b64 exec, 1
        buffer_atomic_add v64, off, s[48:51], s3 sc1
        s_mov_b64 exec, -1
        s_waitcnt vmcnt(1)
        s_branch k1_e1
        k1_e0:
        s_waitcnt vmcnt(0)
        k1_e1:
        s_barrier
        """)
        stamp(a, o, 3)
        for j in range(5):
            a(f"ds_read_b128 v[{4+4*j}:{7+4*j}], v{32+j}")
        bucket4(a)
        for j in range(5):
            if j == h:
                a(f"""
                s_cmp_lg_u32 s62, 1
                s_cbranch_scc1 k1_h1
                s_cmp_lg_u32 s2, {o.ww}
                s_cbranch_scc1 k1_h2
                """)
                watch(a, o, "h")
                a(f"s_mov_b32 s10, {TB_MB}")
                bstore(a, o, "s10")
                a(f"""
                s_branch k1_h2
                k1_h1:
                s_cmp_lg_u32 s62, 0
                s_cbranch_scc1 k1_h2
                """)
                poll(a, o, 0, "k1_pl1")
                stamp(a, o, 6, True)
                tgather(a, o, 63, 24)
                a(f"k1_h2:\ns_mov_b32 s{sLATE}, 1\ns_barrier")
            a(f"s_waitcnt lgkmcnt({4-j})")
            a(f"buffer_store_dwordx4 v[{4+4*j}:{7+4*j}], v3, s[36:39], {so16[j]} offen {ST}")
    else:
        p = o.k1p
        if "ya" in o.exp:
            a(f"s_waitcnt vmcnt({nd})")
            stamp(a, o, 5, True)
        if "ea" in o.exp:
            a(f"""
            s_waitcnt vmcnt({nd})
            s_barrier
            s_cmp_lg_u32 s62, 0
            s_cbranch_scc1 k1_e0
            v_mov_b32 v64, 1
            {shard(o)}
            s_mov_b64 exec, 1
            buffer_atomic_add v64, off, s[48:51], s3 sc1
            s_mov_b64 exec, -1
            s_waitcnt vmcnt(1)
            s_branch k1_e1
            k1_e0:
            s_waitcnt vmcnt(0)
            k1_e1:
            s_barrier
            """)
            p = 9
        else:
            a(f"s_waitcnt vmcnt({2 if nd == 0 else 0})\ns_barrier")
        stamp(a, o, 3)
        for j in range(5):
            a(f"ds_read_b128 v[{4+4*j}:{7+4*j}], v{32+j}")
        a("v_mov_b32 v64, 1")
        for j in range(5):
            if j == p:
                a(f"s_waitcnt vmcnt({p})")
                if "ya" not in o.exp:
                    stamp(a, o, 5, True)
                if not (p == 0 and nd > 0):
                    a("s_barrier")
                a(f"""
                s_cmp_lg_u32 s62, 0
                s_cbranch_scc1 k1_ns
                {shard(o)}
                s_mov_b64 exec, 1
                buffer_atomic_add v64, off, s[48:51], s3 sc1
                s_mov_b64 exec, -1
                k1_ns:
                """)
            if o.k1w >= 0 and j > o.k1w:
                a(f"s_waitcnt vmcnt({o.k1w})")
            a(f"s_waitcnt lgkmcnt({4-j})")
            a(f"buffer_store_dwordx4 v[{4+4*j}:{7+4*j}], v3, s[36:39], {so16[j]} offen {ST}")
    a(f"""
    s_cmp_ge_u32 s63, 4
    s_cbranch_scc1 k1_arr
    s_mov_b32 s4, 0x05040100
    s_mov_b32 s5, 0x07060302
    s_lshl_b32 s58, s63, 11
    s_add_u32 s58, s58, {TB_WM}
    """)
    for k in range(4):
        a(f"v_perm_b32 v{84+k}, v{67+2*k}, v{66+2*k}, s4")
        a(f"v_perm_b32 v{88+k}, v{67+2*k}, v{66+2*k}, s5")
    a(f"""
    buffer_store_dwordx4 v[84:87], v61, s[44:47], s58 offen sc1
    buffer_store_dwordx4 v[88:91], v61, s[44:47], s58 offen offset:1024 sc1
    k1_arr:
    v_mov_b64 v[40:41], 0
    v_mov_b64 v[42:43], 0
    v_mov_b32 v44, {L_EF + CAP*32}
    ds_write_b128 v3, v[40:43] offset:{L_AGG}
    ds_write_b128 v3, v[40:43] offset:{L_AGG+16384}
    s_cmp_ge_u32 s62, 8
    s_cbranch_scc1 k1_z
    ds_write_b128 v3, v[40:43] offset:{L_AGG+32768}
    k1_z:
    s_mov_b64 exec, 1
    ds_write_b128 v44, v[40:43]
    ds_write_b128 v44, v[40:43] offset:16
    s_mov_b64 exec, -1
    """)


def k2(a, o):
    LD = o.k2ld
    XF = o.xld
    vL = VXO
    PW = o.pw
    a(f"""
    v_and_b32 v{vL}, 63, v0
    s_mov_b32 s{sWAVE}, s62
    s_and_b32 s3, s2, 7
    s_lshl_b32 s3, s3, 5
    s_lshr_b32 s10, s2, 3
    s_or_b32 s3, s3, s10
    s_lshl_b32 s{sB4}, s3, 2
    s_mul_i32 s{sN0}, s3, 320007
    s_add_u32 s10, s{sN0}, {320007+8160}
    s_add_u32 s{sN0}, s{sN0}, 8160
    s_lshr_b32 s{sN0}, s{sN0}, 13
    s_lshr_b32 s10, s10, 13
    s_min_u32 s10, s10, {N}
    s_sub_u32 s10, s10, s{sN0}
    s_lshl_b32 s10, s10, 9
    s_lshl_b32 s11, s{sN0}, 9
    s_mov_b32 s{sW0}, 0
    s_mov_b32 s{sONE}, 1.0
    s_mov_b32 s{sONE+1}, 1.0
    s_mov_b32 s{sXNR}, {0 if "nox" in o.exp else N*512}
    s_movk_i32 s{s512}, 512
    s_mov_b64 s[8:9], s[18:19]
    """)
    srd(a, sX, 68, None, N * 512)
    srd(a, sOUT, 70, "s11", "s10")
    srd(a, sYI, 8, WS_YI, E * 12)
    srd(a, sEF, 8, WS_EF, E * 32)
    LOCK = "lock" in o.exp
    HOLD = o.sig == "hold"
    LATE = (o.sig == "early" and o.k1q < 5) or HOLD

    def s2_arrive(x):
        stamp(a, o, 4)
        arrive(a, 128, f"k2_ns{x}")
        if o.timing:
            a("s_mov_b32 s100, s80")
        a(f"""
        s_cmp_eq_u32 s{sSIG}, 0
        s_cbranch_scc1 k2_nb0{x}
        s_waitcnt vmcnt(0)
        """)
        if o.sig == "ret" or x:
            bcast(a, o, 128, f"k2_nb0{x}")
            return
        a(f"""
        v_readfirstlane_b32 s3, v64
        s_and_b32 s3, s3, {G-1}
        s_mov_b32 s10, {mbword(o, 1)}
        s_cmp_eq_u32 s3, {G-1}
        s_cbranch_scc1 k2_bc{x}
        s_cmp_lg_u32 s3, 0
        s_cbranch_scc1 k2_nb0{x}
        """)
        watch(a, o, x)
        a(f"s_mov_b32 s10, {TB_MB}\nk2_bc{x}:")
        bstore(a, o, "s10")
        a(f"k2_nb0{x}:")
    if o.timing:
        a("s_waitcnt lgkmcnt(0)")
        for i in range(4):
            a(f"s_mov_b32 s{96+i}, s{72+2*i}")
    if HOLD:
        a(f"""
        s_cmp_lg_u32 s{sWAVE}, {PW}
        s_cbranch_scc1 k2_p1
        s_waitcnt vmcnt({5 - o.k1q})
        s_branch k2_tw
        """)
    else:
        if LATE:
            a(f"""
            s_cmp_eq_u32 s{sLATE}, 0
            s_cbranch_scc1 k2_el
            s_cmp_lg_u32 s{sWAVE}, {PW}
            s_cbranch_scc1 k2_p1
            s_waitcnt vmcnt({5 - o.k1q})
            s_branch k2_tw
            k2_el:
            """)
        if o.sig == "early":
            a(f"""
            s_cmp_lg_u32 s{sWAVE}, {PW}
            s_cbranch_scc1 k2_wa0
            s_cmp_lg_u32 s{sLATE}, 0
            s_cbranch_scc1 k2_wa4
            s_waitcnt vmcnt(1)
            s_branch k2_wa1
            k2_wa4:
            s_waitcnt vmcnt(4)
            s_branch k2_wa1
            k2_wa0:
            s_waitcnt vmcnt(0)
            k2_wa1:
            """)
        else:
            a("s_waitcnt vmcnt(0)")
        s2_arrive("")
        a(f"""
        s_cmp_lg_u32 s{sWAVE}, {PW}
        s_cbranch_scc1 k2_p1
        """)
        if o.sig == "early":
            if not LATE:
                a(f"s_cmp_lg_u32 s{sLATE}, 0\ns_cbranch_scc1 k2_tw")
            a(f"""
            s_waitcnt vmcnt(0)
            v_readfirstlane_b32 s3, v{EE+1}
            s_cmp_eq_u32 s3, 1
            s_cbranch_scc1 k2_tg
            """)
        poll(a, o, 0, "k2_pl1")

    def ph1_w0():
        a("k2_tg:")
        stamp(a, o, 6, True)
        tgather(a, o, vL, 24)
        if LATE:
            a("s_waitcnt vmcnt(0)")
        a(f"""
        k2_tw:
        v_mul_u32_u24 v12, {4*CH}, v{vL}
        v_lshlrev_b32 v19, 4, v{vL}
        v_lshlrev_b32 v18, 2, v{vL}
        v_add_u32 v13, {CH}, v12
        v_add_u32 v14, {2*CH}, v12
        v_add_u32 v15, {3*CH}, v12
        v_add_u32 v19, {L_TT}, v19
        v_add_u32 v18, {L_TT}, v18
        {"" if LATE else "s_waitcnt vmcnt(0)"}
        """)
        if "pb3" not in o.exp:
            stamp(a, o, 7, True)
        for i in range(4):
            a(f"v_lshrrev_b32 v{4+i}, 16, v{24+i}")
        a(f"""
        v_add_u32 v10, v4, v5
        v_add_u32 v11, v10, v6
        v_add_u32 v16, v11, v7
        v_mov_b32 v17, v16
        """)
        fill = [f"v_and_b32 v{i}, 0xffff, v{24+i}" for i in range(4)] + [f"v_add_u32 v{12+i}, v{12+i}, v{i}" for i in range(4)]
        a(fill.pop(0) + "\n" + fill.pop(0))
        for d in DPPS:
            a(f"v_add_u32_dpp v17, v17, v17 {d}")
            if fill:
                a(fill.pop(0) + "\n" + fill.pop(0))
            else:
                a("s_nop 1")
        a(f"""
        v_sub_u32 v8, v17, v16
        ds_write_b32 v18, v17 offset:2048
        v_add_u32 v9, v8, v4
        v_add_u32 v10, v8, v10
        v_add_u32 v11, v8, v11
        """)
        for i in range(4):
            a(f"v_sub_u32 v{12+i}, v{12+i}, v{8+i}")
        a("ds_write_b128 v19, v[8:11]")
        for i in range(4):
            a(f"v_subrev_u32 v{4+i}, s{sW0}, v{8+i}")
        a("ds_write_b128 v19, v[12:15] offset:1024")
        for i in range(4):
            a(f"v_min_u32 v{4+i}, {CAP}, v{4+i}")
        for i in range(4):
            a(f"v_lshlrev_b32 v{4+i}, 2, v{4+i}")
        for i in range(4):
            a(f"ds_max_u32 v{4+i}, v{12+i} offset:{L_XS}")
        a(f"""
        k2_p1:
        s_mul_i32 s58, s{sWAVE}, {SEG}
        v_lshlrev_b32 v4, 4, v{vL}
        v_add_u32 v16, s58, v{vL}
        v_mov_b32 v19, {L_TT + 2048 + 252}
        v_add_u32 v4, {L_TT}, v4
        v_lshlrev_b32 v5, 2, v16
        v_add_u32 v17, 64, v16
        v_add_u32 v18, 128, v16
        s_add_u32 s59, s58, s{sW0}
        s_add_u32 s10, s58, {SEG}
        s_waitcnt lgkmcnt(0)
        s_barrier
        """)
        stamp(a, o, 0)
        a(f"""
        ds_read_b128 v[8:11], v4
        ds_read_b32 v19, v19
        ds_read_b128 v[12:15], v4 offset:1024
        """)
        for i in range(3):
            a(f"ds_read_b32 v{i}, v5 offset:{L_XS+256*i}")
        a("s_waitcnt lgkmcnt(5)")
        for i in range(4):
            a(f"v_cmp_ge_u32 s[{62+2*i}:{63+2*i}], s59, v{8+i}")
        a(f"""
        s_waitcnt lgkmcnt(3)
        v_readfirstlane_b32 s{sTOT}, v19
        """)
        for i in range(4):
            a(f"v_cndmask_b32 v{4+i}, 0, v{12+i}, s[{62+2*i}:{63+2*i}]")
        a(f"""
        s_sub_u32 s{sLIM}, s{sTOT}, s{sW0}
        s_min_u32 s{sLIM}, s{sLIM}, {CAP}
        s_min_u32 s10, s10, s{sLIM}
        v_max3_u32 v4, v4, v5, v6
        v_max_u32 v3, v4, v7
        v_cmp_gt_u32 s[{sM}:{sM+1}], s10, v16
        v_cmp_gt_u32 s[{sM+2}:{sM+3}], s10, v17
        v_cmp_gt_u32 s[{sM+4}:{sM+5}], s10, v18
        s_waitcnt lgkmcnt(0)
        """)

    def ph1_all():
        a("k2_tg:")
        stamp(a, o, 6, True)
        tgather(a, o, vL, 24)
        a(f"""
        s_waitcnt vmcnt(0)
        k2_tw:
        v_lshlrev_b32 v1, 2, v{vL}
        v_add_u32 v1, {L_TT}, v1
        """)
        for i in range(4):
            a(f"ds_write_b32 v1, v{24+i} offset:{256*i}")
        if "pb3" not in o.exp:
            stamp(a, o, 7, True)
        a(f"""
        k2_p1:
        v_lshlrev_b32 v1, 4, v{vL}
        v_add_u32 v1, {L_TT}, v1
        s_mul_i32 s58, s{sWAVE}, {SEG}
        s_add_u32 s59, s58, s{sW0}
        s_waitcnt lgkmcnt(0)
        s_barrier
        """)
        stamp(a, o, 0)
        a(f"""
        ds_read_b128 v[0:3], v1
        v_mul_u32_u24 v12, {4*CH}, v{vL}
        v_add_u32 v13, {CH}, v12
        v_add_u32 v14, {2*CH}, v12
        v_add_u32 v15, {3*CH}, v12
        s_waitcnt lgkmcnt(0)
        """)
        for i in range(4):
            a(f"v_lshrrev_b32 v{4+i}, 16, v{i}")
        for i in range(4):
            a(f"v_and_b32 v{i}, 0xffff, v{i}")
        a(f"""
        v_add_u32 v10, v4, v5
        v_add_u32 v11, v10, v6
        v_add_u32 v16, v11, v7
        v_mov_b32 v17, v16
        """)
        for i in range(4):
            a(f"v_add_u32 v{12+i}, v{12+i}, v{i}")
        scan(a, "v_add_u32", [17])
        a(f"""
        v_sub_u32 v8, v17, v16
        v_readlane_b32 s{sTOT}, v17, 63
        v_add_u32 v9, v8, v4
        v_add_u32 v10, v8, v10
        v_add_u32 v11, v8, v11
        """)
        for i in range(4):
            a(f"v_sub_u32 v{12+i}, v{12+i}, v{8+i}")
        for i in range(4):
            a(f"v_cmp_ge_u32 s[{62+2*i}:{63+2*i}], s59, v{8+i}")
        for i in range(4):
            a(f"v_subrev_u32 v{8+i}, s{sW0}, v{8+i}")
        for i in range(4):
            a(f"v_min_u32 v{8+i}, {CAP}, v{8+i}")
        for i in range(4):
            a(f"v_lshlrev_b32 v{8+i}, 2, v{8+i}")
        for i in range(4):
            a(f"ds_max_u32 v{8+i}, v{12+i} offset:{L_XS}")
        a(f"""
        v_add_u32 v16, s58, v{vL}
        v_lshlrev_b32 v17, 2, v16
        """)
        for i in range(3):
            a(f"ds_read_b32 v{i}, v17 offset:{L_XS+256*i}")
        for i in range(4):
            a(f"v_cndmask_b32 v{4+i}, 0, v{12+i}, s[{62+2*i}:{63+2*i}]")
        a(f"""
        v_max3_u32 v4, v4, v5, v6
        v_max_u32 v3, v4, v7
        s_sub_u32 s{sLIM}, s{sTOT}, s{sW0}
        s_min_u32 s{sLIM}, s{sLIM}, {CAP}
        s_add_u32 s10, s58, {SEG}
        s_min_u32 s10, s10, s{sLIM}
        v_add_u32 v17, 64, v16
        v_add_u32 v18, 128, v16
        v_cmp_gt_u32 s[{sM}:{sM+1}], s10, v16
        v_cmp_gt_u32 s[{sM+2}:{sM+3}], s10, v17
        v_cmp_gt_u32 s[{sM+4}:{sM+5}], s10, v18
        s_waitcnt lgkmcnt(0)
        """)

    if "w0" in o.exp:
        ph1_w0()
    else:
        ph1_all()
    scan(a, "v_max_u32", [3, 0, 1, 2])
    a(f"""
    v_readlane_b32 s62, v3, 63
    v_readlane_b32 s63, v0, 63
    v_readlane_b32 s64, v1, 63
    v_lshrrev_b32 v7, 1, v{vL}
    v_lshlrev_b32 v7, 2, v7
    v_add_u32 v8, 128, v7
    s_max_u32 s63, s63, s62
    s_max_u32 s64, s64, s63
    v_max_u32 v0, s62, v0
    v_max_u32 v1, s63, v1
    v_max_u32 v2, s64, v2
    v_mov_b32 v3, 0xf00000
    """)
    for i in range(3):
        a(f"v_add3_u32 v{i}, v{i}, v{16+i}, s{sW0}")
    for i in range(3):
        a(f"v_cndmask_b32 v{i}, v3, v{i}, s[{sM+2*i}:{sM+2*i+1}]")
    for i in range(3):
        a(f"v_mul_u32_u24 v{4+i}, 12, v{i}")
    for i in range(3):
        a(f"buffer_load_dwordx3 v[{20+4*i}:{22+4*i}], v{4+i}, s[{sYI}:{sYI+3}], 0 offen {LD}")
    stamp(a, o, 1)
    for j in range(6):
        a(f"ds_bpermute_b32 v{32+j}, v{7+j%2}, v{j//2}")
    a(f"""
    v_and_b32 v9, 1, v{vL}
    v_lshlrev_b32 v9, 4, v9
    s_lshl_b32 s3, s58, 5
    s_add_u32 m0, s3, {L_EF}
    v_mov_b32 v62, 1
    s_waitcnt lgkmcnt(0)
    """)
    for j in range(6):
        a(f"v_lshl_or_b32 v{32+j}, v{32+j}, 5, v9")

    def dma(j):
        if j == 5:
            a(f"s_mov_b64 exec, {hex((1 << (2*(SEG-160))) - 1)}")
        a(f"buffer_load_dwordx4 v{32+j}, s[{sEF}:{sEF+3}], 0 offen {o.efld} lds")
        a("s_add_u32 m0, m0, 1024" if j < 5 else "s_mov_b64 exec, -1")
        a("s_nop 0")
    if LATE:
        a(f"""
        s_cmp_eq_u32 s{sLATE}, 0
        s_cbranch_scc1 k2_nb0l
        s_waitcnt vmcnt(3)
        """)
        srd(a, 48, sDP, None, 256)
        s2_arrive("l")
    a(f"s_waitcnt vmcnt(0)")
    for i in range(3):
        a(f"v_lshrrev_b32 v{40+i}, 24, v{22+4*i}")
    for i in range(3):
        a(f"v_bfe_u32 v{56+i}, v{22+4*i}, 16, 8")
    for i in range(3):
        a(f"v_lshlrev_b32 v{44+i}, v{40+i}, v62")
    for i in range(3):
        a(f"""
        s_mov_b64 exec, s[{sM+2*i}:{sM+2*i+1}]
        s_cbranch_execz k2_h
        ds_add_rtn_u32 v{59+i}, v{56+i}, v{44+i} offset:{L_CNT}
        """)
    a(f"""
    k2_h:
    s_mov_b64 exec, -1
    s_mov_b32 s3, 0x05040100
    """)
    for i in range(3):
        a(f"v_perm_b32 v{22+4*i}, v{16+i}, v{22+4*i}, s3")
    a(f"""
    v_lshlrev_b32 v0, 2, v{vL}
    s_mov_b32 s{sCG}, {L_CG}
    """)
    stamp(a, o, 2)
    a(f"""
    s_cmp_lg_u32 s{sWAVE}, {PW}
    s_cbranch_scc1 k2_np2
    s_cmp_lg_u32 s{sW0}, 0
    s_cbranch_scc1 k2_np2
    """)
    poll(a, o, 128, "k2_pl2")
    a("k2_np2:\ns_waitcnt lgkmcnt(0)\ns_barrier")
    stamp(a, o, 3)
    ka, kb, kc = [int(x) for x in o.k2n.split(",")]
    for j in range(ka):
        dma(j)
    a(f"""
    ds_read_b32 v64, v0 offset:{L_CNT}
    s_mov_b32 s62, {XHALF}
    """)
    for i in range(3):
        a(f"v_bfe_u32 v{59+i}, v{59+i}, v{40+i}, 16")
    a(f"""
    v_and_b32 v10, 31, v{vL}
    v_lshrrev_b32 v11, 5, v{vL}
    s_waitcnt lgkmcnt(0)
    v_add_u32 v65, 0x10001, v64
    v_and_b32 v65, 0xfffefffe, v65
    v_mov_b32 v66, v65
    v_and_b32 v68, 0xffff, v64
    v_and_b32 v70, 0xffff, v65
    """)
    scan(a, "v_add_u32", [66])
    a(f"""
    v_sub_u32 v67, v66, v65
    v_readlane_b32 s{sP}, v66, 63
    v_lshrrev_b32 v69, 16, v64
    v_lshrrev_b32 v71, 16, v65
    {"s_nop 0" if LOCK else "v_cmp_eq_u32 vcc, 0, v68"}
    s_and_b32 s4, s{sP}, 0xffff
    s_lshr_b32 s5, s{sP}, 16
    s_add_u32 s4, s4, 7
    s_add_u32 s5, s5, 7
    s_lshr_b32 s4, s4, 3
    s_lshr_b32 s5, s5, 3
    {"v_mov_b32 v12, 0" if LOCK else "v_cndmask_b32 v12, v62, 0, vcc" if "chain" in o.exp else "v_cndmask_b32 v12, 0, v62, vcc"}
    s_lshl_b32 s3, s4, 19
    v_add_u32 v67, s3, v67
    ds_write_b32 v0, v12 offset:{L_FLAG}
    """)
    for i in range(3):
        a(f"ds_bpermute_b32 v{i}, v{56+i}, v67")
    a(f"""
    s_lshr_b32 s6, s4, 4
    s_lshr_b32 s7, s5, 4
    """)
    if not LOCK:
        a(f"""
        s_lshl_b32 s10, s6, 3
        s_lshl_b32 s11, s7, 3
        v_cmp_lt_u32 vcc, s10, v70
        v_cmp_lt_u32 s[68:69], s11, v71
        """)
    a(f"""
    s_and_b32 s3, s4, 15
    s_mul_i32 s63, s6, s{sWAVE}
    s_min_u32 s10, s3, s{sWAVE}
    s_add_u32 s63, s63, s10
    s_cmp_lt_u32 s{sWAVE}, s3
    s_addc_u32 s64, s6, 0
    s_and_b32 s3, s5, 15
    s_add_u32 s3, s3, s{sWAVE}
    s_mul_i32 s65, s7, s{sWAVE}
    s_sub_u32 s10, s3, 16
    s_max_i32 s10, s10, 0
    s_add_u32 s65, s65, s10
    s_cmp_ge_u32 s3, 16
    s_addc_u32 s66, s7, 0
    """)
    if not LOCK:
        a(f"""
        s_or_b64 vcc, vcc, s[68:69]
        s_cmp_lg_u64 vcc, 0
        s_cselect_b32 s{sSLOW}, 1, 0
        """)
    a(f"""
    s_add_u32 s{sNG}, s64, s66
    s_add_u32 s3, s4, s65
    s_add_u32 s10, s63, s64
    s_sub_u32 s10, s10, s4
    s_lshl_b32 s10, s10, 3
    s_lshl_b32 s11, s65, 3
    s_bfm_b64 s[68:69], s64, 0
    s_bfm_b64 vcc, s66, 32
    s_mov_b64 exec, 0xffffffff
    v_add_u32 v12, s63, v10
    v_mov_b32 v13, s11
    s_not_b64 exec, exec
    v_add_u32 v12, s3, v10
    v_mov_b32 v13, s10
    s_mov_b64 exec, -1
    v_lshlrev_b32 v12, 1, v12
    s_or_b64 exec, vcc, s[68:69]
    s_cbranch_execz k2_nosh
    ds_write_b16 v12, v13 offset:{L_SH}
    k2_nosh:
    s_mov_b64 exec, -1
    s_waitcnt lgkmcnt(0)
    """)
    for i in range(3):
        a(f"v_bfe_u32 v{i}, v{i}, v{40+i}, 16")
    for i in range(3):
        a(f"v_add_u32 v{i}, v{i}, v{59+i}")
    a(f"""
    s_mov_b64 s[6:7], 0
    s_cmp_lt_u32 s{sWAVE}, 14
    s_cbranch_scc1 k2_nopad0
    s_sub_u32 s3, s{sWAVE}, 14
    s_mul_i32 s10, s3, s5
    s_add_u32 s10, s10, s4
    s_lshl_b32 s10, s10, 3
    s_lshl_b32 s3, s3, 4
    v_bfe_u32 v12, v64, s3, 16
    v_bfe_u32 v13, v67, s3, 16
    v_subrev_u32 v14, 40, v{vL}
    v_cmp_gt_u32 vcc, 8, v14
    v_max_i32 v14, 0, v14
    v_add3_u32 v3, v12, v13, v14
    v_and_b32 v12, 1, v12
    v_cmp_gt_u32 s[68:69], s10, v3
    v_cmp_eq_u32 s[6:7], 1, v12
    s_and_b64 vcc, vcc, s[68:69]
    s_or_b64 s[6:7], s[6:7], vcc
    k2_nopad0:
    """)
    for i in range(4):
        a(f"v_lshrrev_b32 v{4+i}, 2, v{i}")
    for i in range(4):
        a(f"v_and_b32 v{4+i}, 0x7fe, v{4+i}")
    a("s_barrier")
    for i in range(4):
        a(f"ds_read_i16 v{4+i}, v{4+i} offset:{L_SH}")
    for j in range(ka, ka + kb):
        dma(j)
    a(f"""
    v_and_b32 v70, 0xffff, v66
    v_lshrrev_b32 v71, 16, v66
    s_lshl_b32 s10, s63, 3
    s_lshl_b32 s11, s65, 3
    v_cmp_lt_u32 s[{sNM}:{sNM+1}], s10, v70
    v_cmp_lt_u32 vcc, 0, v68
    v_cmp_lt_u32 s[{sNB}:{sNB+1}], s11, v71
    v_cmp_lt_u32 s[68:69], 0, v69
    s_mov_b64 s[{sBM}:{sBM+1}], 0
    s_mov_b32 s{sBM+2}, 0
    s_mov_b32 s{sEA}, 0
    s_and_b64 s[{sNM}:{sNM+1}], s[{sNM}:{sNM+1}], vcc
    s_and_b64 s[{sNB}:{sNB+1}], s[{sNB}:{sNB+1}], s[68:69]
    s_mov_b64 s[68:69], s[{sNM}:{sNM+1}]
    s_lshl_b32 s67, s63, 2
    s_add_u32 s67, s67, 1
    s_lshl_b32 s11, s64, 2
    """)

    def bm(tag, vend, cnt):
        a(f"""
        k2_bl{tag}:
        s_ff1_i32_b64 s3, s[68:69]
        s_cmp_lt_i32 s3, 0
        s_cbranch_scc1 k2_bld{tag}
        v_readlane_b32 s10, v{vend}, s3
        s_bitset0_b64 s[68:69], s3
        s_lshr_b32 s10, s10, 1
        s_sub_u32 s10, s10, s67
        s_cmp_ge_u32 s10, s11
        s_cbranch_scc1 k2_bld{tag}
        {f"s_add_u32 s{sEA}, s{sEA}, 1" if cnt else ""}
        s_cmp_ge_u32 s10, 64
        s_cbranch_scc1 k2_bh{tag}
        s_bitset1_b64 s[{sBM}:{sBM+1}], s10
        s_branch k2_bl{tag}
        k2_bh{tag}:
        s_bitset1_b32 s{sBM+2}, s10
        s_branch k2_bl{tag}
        k2_bld{tag}:
        s_sub_u32 s10, s11, 1
        s_cmp_ge_u32 s10, 64
        s_cbranch_scc1 k2_bh2{tag}
        s_bitcmp0_b64 s[{sBM}:{sBM+1}], s10
        s_branch k2_bdone{tag}
        k2_bh2{tag}:
        s_bitcmp0_b32 s{sBM+2}, s10
        k2_bdone{tag}:
        """)
    bm("a", 70, True)
    a(f"""
    s_cselect_b32 s{sOPA}, s3, -1
    s_cmp_eq_u32 s64, 0
    s_cselect_b32 s{sOPA}, -1, s{sOPA}
    s_cmp_ge_i32 s{sOPA}, 0
    {"" if LOCK else f"s_cselect_b32 s{sPK}, 1, 0"}
    s_cbranch_scc0 k2_nopk
    {f"s_add_u32 s{sEA}, s{sEA}, 1" if LOCK else ""}
    s_cmp_ge_u32 s10, 64
    s_cbranch_scc1 k2_pkh
    s_bitset1_b64 s[{sBM}:{sBM+1}], s10
    s_branch k2_nopk
    k2_pkh:
    s_bitset1_b32 s{sBM+2}, s10
    k2_nopk:
    """)
    if "chain" in o.exp:
        a(f"""
        s_cmp_eq_u32 s{sSLOW}, 0
        s_cselect_b32 s3, s{sPK}, 0
        s_cmp_eq_u32 s3, 0
        s_cbranch_scc1 k2_noreg
        s_lshl_b32 s3, s{sOPA}, 2
        v_mov_b32 v12, s3
        s_mov_b64 exec, 1
        ds_add_u32 v12, v62 offset:{L_FLAG}
        s_mov_b64 exec, -1
        k2_noreg:
        """)
    a(f"""
    s_mov_b64 s[68:69], s[{sNB}:{sNB+1}]
    s_sub_u32 s67, s65, s64
    s_lshl_b32 s67, s67, 2
    s_add_u32 s67, s67, 1
    s_lshl_b32 s11, s{sNG}, 2
    """)
    bm("b", 71, False)
    a(f"""
    s_cselect_b32 s{sOPEN}, s66, 0
    s_add_u32 s65, s65, s63
    """)
    for j in range(ka + kb, ka + kb + kc):
        dma(j)
    a("s_waitcnt lgkmcnt(0)")
    for i in range(4):
        a(f"v_add_u32 v{i}, v{i}, v{4+i}")
    for i in range(4):
        a(f"""
        v_and_b32 v{4+i}, 1, v{i}
        v_lshrrev_b32 v{12+i}, 1, v{i}
        v_lshlrev_b32 v{12+i}, 2, v{12+i}
        v_mad_u32_u24 v{4+i}, v{4+i}, s62, v{12+i}
        v_lshlrev_b32 v{i}, 3, v{i}
        """)
    for i in range(3):
        a(f"""
        s_mov_b64 exec, s[{sM+2*i}:{sM+2*i+1}]
        s_cbranch_execz k2_w0
        ds_write_b32 v{4+i}, v{22+4*i} offset:{L_XS}
        ds_write_b64 v{i}, v[{20+4*i}:{21+4*i}] offset:{L_YS}
        """)
    a(f"""
    k2_w0:
    s_mov_b64 exec, s[6:7]
    s_cbranch_execz k2_nopad
    v_mov_b32 v13, {hex(0x7fff | CAP << 16)}
    v_mov_b64 v[14:15], 0
    ds_write_b32 v7, v13 offset:{L_XS}
    ds_write_b64 v3, v[14:15] offset:{L_YS}
    k2_nopad:
    s_mov_b64 exec, -1
    """)
    for j in range(ka + kb + kc, 6):
        dma(j)
    a(f"""
    s_lshl_b32 s3, s65, 4
    s_add_u32 s3, s3, {L_XS}
    v_mov_b32 v12, s3
    v_mad_u32_u24 v{VX}, v11, s62, v12
    v_lshrrev_b32 v13, 3, v10
    v_lshl_add_u32 v12, v13, 4, v12
    v_and_b32 v13, 3, v10
    v_lshl_add_u32 v12, v13, 2, v12
    v_bfe_u32 v13, v10, 2, 1
    v_mad_u32_u24 v{VEF}, v13, s62, v12
    s_lshl_b32 s3, s65, 6
    s_add_u32 s3, s3, {L_YS}
    v_lshlrev_b32 v12, 3, v11
    v_lshl_add_u32 v12, v10, 4, v12
    v_add_u32 v{VY}, s3, v12
    v_lshlrev_b32 v12, 4, v11
    v_add_u32 v{VHB}, {L_EF}, v12
    v_lshlrev_b32 v{VJ4}, 4, v{vL}
    v_lshlrev_b32 v{VXO}, 4, v10
    """)
    for k in range(4):
        a(f"v_mov_b64 {v(ACC+2*k,2)}, 0")
    a(f"""
    v_and_or_b32 v{ZE+8}, v{VXO}, 48, s{sCG}
    s_mov_b32 s{sREM}, s{sNG}
    s_lshr_b32 s{sTH}, s{sNG}, 1
    s_mov_b32 s{sPR}, 3
    {"s_setprio 3" if "prio" in o.exp else ""}
    s_waitcnt lgkmcnt(0)
    s_barrier
    """)
    stamp(a, o, 5, "pc")
    XS = f"s[{sX}:{sX+3}]"

    def xadr(r):
        a(f"v_mad_u32_u16 v{r}, v{r}, s{s512}, v{VXO}")

    def efnext(off):
        a(f"""
        v_mad_u32_u16 v{EE}, v{VRI}, 32, v{VHB} op_sel:[1,0,0,0]
        ds_read_b128 {v(EF,4)}, v{EE}
        ds_read_b32 v{VRI}, v{VEF} offset:{off}
        """)
    a(f"""
    ds_read_b128 {v(XI,4)}, v{VX}
    ds_read_b128 {v(XI+4,4)}, v{VX} offset:16
    ds_read_b32 v{VRI}, v{VEF}
    ds_read_b64 {v(YY,2)}, v{VY}
    ds_read_b128 {v(ZE,4)}, v{ZE+8}
    ds_read_b128 {v(ZE+4,4)}, v{ZE+8} offset:64
    s_cmp_gt_u32 s{sREM}, 0
    s_cselect_b32 s{sX+2}, s{sXNR}, 0
    s_waitcnt lgkmcnt(5)
    """)
    def x03(k0, k1):
        for k in range(k0, k1):
            xadr(XI + k)
            a(f"buffer_load_dwordx4 {v(X+4*k,4)}, v{XI+k}, {XS}, 0 offen {XF}")
        if k1 == 4:
            a(f"""
            s_cmp_gt_u32 s{sREM}, 1
            s_cselect_b32 s{sX+2}, s{sXNR}, 0
            """)
    x03(0, min(o.nx, 4))
    a("s_waitcnt lgkmcnt(4)")

    def x47():
        for k in range(4, 8):
            xadr(XI + k)
            a(f"buffer_load_dwordx4 {v(X+4*k,4)}, v{XI+k}, {XS}, 0 offen {XF}")
        a(f"ds_read_b128 {v(XI,4)}, v{VX} offset:32")
    if o.nx == 8:
        x47()
    stamp(a, o, 6, "pc")
    a(f"s_waitcnt vmcnt({o.nx})")
    stamp(a, o, 7, "pc")
    a("s_barrier")
    stamp(a, o, 4)
    a(f"""
    s_cmp_eq_u32 s{sNG}, 0
    s_cbranch_scc1 k2_done
    s_waitcnt lgkmcnt(0)
    """)
    efnext(64)
    if o.nx < 4:
        x03(o.nx, 4)
    if o.nx <= 4:
        x47()

    def group_start(g):
        b = XI + 4 * (g % 2)
        nb = XI + 4 * ((g + 1) % 2)
        if "noadd" in o.exp:
            a("s_nop 3")
        else:
            for k in range(4):
                xadr(b + k)
        a(f"ds_read_b128 {v(nb,4)}, v{VX} offset:{16*(g+3)}")
        a(f"s_cmp_gt_u32 s{sREM}, 2\ns_cselect_b32 s{sX+2}, s{sXNR}, 0")

    def mf(d, ar, br, c):
        a(f"v_mfma_f32_32x32x16_bf16 {v(d,16)}, {v(ar,4)}, {v(br,4)}, {c}")

    def rprol():
        a(f"""
        v_exp_f32 v{EE}, v{ZE}
        v_exp_f32 v{EE+1}, v{ZE+1}
        v_exp_f32 v{EE+2}, v{ZO}
        v_exp_f32 v{EE+3}, v{ZO+1}
        v_pk_add_f32 {v(EE,2)}, {v(EE,2)}, s[{sONE}:{sONE+1}]
        v_pk_add_f32 {v(EE+2,2)}, {v(EE+2,2)}, s[{sONE}:{sONE+1}]
        v_rcp_f32 v{EE}, v{EE}
        v_rcp_f32 v{EE+1}, v{EE+1}
        v_rcp_f32 v{EE+2}, v{EE+2}
        v_rcp_f32 v{EE+3}, v{EE+3}
        v_pk_mul_f32 {v(ZE,2)}, {v(ZE,2)}, {v(EE,2)}
        v_pk_mul_f32 {v(ZO,2)}, {v(ZO,2)}, {v(EE+2,2)}
        """)

    a("k2_blk:")
    for t in range(32):
        g, r = t // 4, t % 16
        if t == 0:
            a("s_waitcnt lgkmcnt(0)")
            for i in range(4):
                a(f"v_mfma_f32_4x4x4_16b_bf16 {v(ZO+4*i,4)}, {v(YY,2)}, {v(ZE+2*i,2)}, 0")
            a(f"ds_read_b64 {v(YY,2)}, v{VY} offset:512")
            a(f"v_add_u32 v{VY}, 512, v{VY}")
            mf(ZE, EF, W, "0")
            for m in range(4):
                a(f"v_cvt_pk_bf16_f32 v{TA+2*m}, v{ZO+m}, v{ZO+4+m}")
            for m in range(4):
                a(f"v_cvt_pk_bf16_f32 v{TA+2*m+1}, v{ZO+8+m}, v{ZO+12+m}")
            mf(ZO, EF, W + 4, "0")
            efnext(128)
            group_start(g)
            a("s_nop 3")
            rprol()
        elif t == 16:
            a("s_waitcnt lgkmcnt(0)")
            mf(ZE, EF, W, "0")
            mf(ZO, EF, W + 4, "0")
            efnext(192)
            a(f"v_add_u32 v{VEF}, 128, v{VEF}")
            group_start(g)
            a("s_nop 2")
            rprol()
        elif t % 4 == 0:
            a("s_waitcnt lgkmcnt(0)")
            group_start(g)
            if t == 28:
                a(f"""
                v_and_or_b32 v{ZE+8}, v{VXO}, 48, s{sCG}
                ds_read_b128 {v(ZE,4)}, v{ZE+8}
                ds_read_b128 {v(ZE+4,4)}, v{ZE+8} offset:64
                """)
        k = t % 8
        xr = X + 4 * k
        ar = TA + 2 * (t % 4)
        p0 = r & ~1
        last = p0 == 14
        tr = "v_exp_f32" if r % 2 == 0 else "v_rcp_f32"

        def trn(e, z):
            if last or "notrans" in o.exp:
                return
            src = z if r % 2 == 0 else e
            a(f"{tr} v{e}, v{src}")

        def mid(e, z):
            if last:
                return
            if "v2mid" in o.exp:
                for u in range(2):
                    a(f"v_add_f32 v{e+u}, 1.0, v{e+u}" if r % 2 == 0 else f"v_mul_f32 v{z+u}, v{z+u}, v{e+u}")
            elif r % 2 == 0:
                a(f"v_pk_add_f32 {v(e,2)}, {v(e,2)}, s[{sONE}:{sONE+1}]")
            else:
                a(f"v_pk_mul_f32 {v(z,2)}, {v(z,2)}, {v(e,2)}")

        sel = "op_sel_hi:[0,1,1]" if r % 2 == 0 else "op_sel:[1,0,0] op_sel_hi:[1,1,1]"

        def fma(acc, z, tp):
            if "nofma" in o.exp:
                return
            if "v2fma" in o.exp:
                for u in range(2):
                    a(f"v_fmac_f32 v{acc+u}, v{z+r%2}, v{tp+u}")
                return
            a(f"v_pk_fma_f32 {v(acc,2)}, {v(z,2)}, {v(tp,2)}, {v(acc,2)} {sel}")

        cb = "" if "nocbsz" in o.exp else f"cbsz:3 abid:{t//4}"
        a("s_waitcnt vmcnt(7)")
        if "nomf" not in o.exp:
            a(f"v_mfma_f32_4x4x4_16b_bf16 {v(TP,4)}, {v(ar,2)}, {v(xr,2)}, 0 {cb}")
        trn(EE, ZE + p0 + 2)
        trn(EE + 1, ZE + p0 + 3)
        if "nomf" not in o.exp:
            a(f"v_mfma_f32_4x4x4_16b_bf16 {v(TP+4,4)}, {v(ar,2)}, {v(xr+2,2)}, 0 {cb}")
        if "noload" not in o.exp:
            a(f"buffer_load_dwordx4 {v(xr,4)}, v{XI+4*(g%2)+t%4}, {XS}, 0 offen {XF}")
        trn(EE + 2, ZO + p0 + 2)
        trn(EE + 3, ZO + p0 + 3)
        mid(EE, ZE + p0 + 2)
        if last:
            a("s_nop 2")
        fma(ACC, ZE + p0, TP)
        fma(ACC + 2, ZE + p0, TP + 2)
        mid(EE + 2, ZO + p0 + 2)
        fma(ACC + 4, ZO + p0, TP + 4)
        fma(ACC + 6, ZO + p0, TP + 6)
        if "nobr" in o.exp:
            a(f"k2_bk{t}:")
        else:
            a(f"s_bitcmp1_b32 s{sBM}, {t}\ns_cbranch_scc1 k2_fl{t}\nk2_bk{t}:")
        if t % 4 == 3:
            if "prio" in o.exp:
                a(f"s_sub_u32 s{sREM}, s{sREM}, 1\ns_cmp_eq_u32 s{sREM}, s{sTH}\ns_cbranch_scc1 k2_th{g}\nk2_tb{g}:")
            else:
                a(f"s_sub_u32 s{sREM}, s{sREM}, 1\ns_cmp_eq_u32 s{sREM}, 0\ns_cbranch_scc1 k2_done")
    a(f"""
    s_mov_b32 s{sBM}, s{sBM+1}
    s_mov_b32 s{sBM+1}, s{sBM+2}
    v_add_u32 v{VX}, 128, v{VX}
    s_branch k2_blk
    """)
    if "prio" in o.exp:
        for g in range(8):
            a(f"k2_th{g}:\ns_cmp_eq_u32 s{sTH}, 0\ns_cbranch_scc1 k2_done\ns_call_b64 s[{sRET}:{sRET+1}], k2_thr\ns_branch k2_tb{g}")
        a(f"""
        k2_thr:
        s_lshr_b32 s{sTH}, s{sTH}, 1
        s_sub_u32 s{sPR}, s{sPR}, 1
        s_cmp_eq_u32 s{sPR}, 2
        s_cbranch_scc1 k2_p2
        s_cmp_eq_u32 s{sPR}, 1
        s_cbranch_scc1 k2_p1x
        s_mov_b32 s{sTH}, 0
        s_setprio 0
        s_setpc_b64 s[{sRET}:{sRET+1}]
        k2_p2:
        s_setprio 2
        s_setpc_b64 s[{sRET}:{sRET+1}]
        k2_p1x:
        s_setprio 1
        s_setpc_b64 s[{sRET}:{sRET+1}]
        """)
    for t in range(32):
        a(f"k2_fl{t}:\ns_call_b64 s[{sRET}:{sRET+1}], k2_flush\ns_branch k2_bk{t}")
    def node_addr(sn):
        a(f"""
        s_lshl_b32 s58, s{sn}, 10
        s_and_b32 s59, s{sn}, 7
        s_lshl_b32 s59, s59, 4
        s_or_b32 s58, s58, s59
        s_lshl_b32 s59, s{sn}, 2
        v_xor_b32 v{TP}, s58, v{VJ4}
        """)

    def reduce_acc(dst):
        for q in range(4):
            a(f"v_permlane32_swap_b32 v{ACC+q}, v{ACC+4+q}")
        a(f"""
        v_pk_add_f32 {v(dst,2)}, {v(ACC,2)}, {v(ACC+4,2)}
        v_pk_add_f32 {v(dst+2,2)}, {v(ACC+2,2)}, {v(ACC+6,2)}
        v_mov_b64 {v(ACC+4,2)}, 0
        v_mov_b64 {v(ACC+6,2)}, 0
        """)

    def rmw(src):
        a(f"""
        v_pk_add_f32 {v(TP+4,2)}, {v(TP+4,2)}, {v(src,2)}
        v_pk_add_f32 {v(TP+6,2)}, {v(TP+6,2)}, {v(src+2,2)}
        v_mov_b64 {v(src,2)}, 0
        v_mov_b64 {v(src+2,2)}, 0
        ds_write_b128 v{TP}, {v(TP+4,4)} offset:{L_AGG}
        """)
    RET = f"s_setpc_b64 s[{sRET}:{sRET+1}]"
    CHAIN = "chain" in o.exp
    SPIN = ""
    if o.spin:
        SPIN = f"""s_add_u32 s{sSPIN}, s{sSPIN}, 1
        s_cmp_lt_u32 s{sSPIN}, {o.spin}
        s_cbranch_scc1 k2_flw
        s_waitcnt lgkmcnt(0)
        v_mov_b32 v{TP+2}, {"s4" if CHAIN else 1}"""
    DONE = f"""
    s_mov_b64 exec, 1
    ds_sub_u32 v{TP+1}, v{TP+3} offset:{L_FLAG}
    s_mov_b64 exec, -1
    """
    def lock_flush():
        TAKE = f"""
        s_mov_b64 exec, 1
        ds_wrxchg_rtn_b32 v{TP+2}, v{TP+1}, v{VX} offset:{L_FLAG}
        s_mov_b64 exec, -1
        ds_read_b128 {v(TP+4,4)}, v{TP} offset:{L_AGG}
        """
        a(f"""
        k2_open:
        s_cmp_eq_u32 s{sOPEN}, 0
        s_cbranch_scc1 k2_openret
        s_cmp_eq_u64 s[{sNB}:{sNB+1}], 0
        s_cbranch_scc0 k2_flb
        k2_openret:
        {RET}
        k2_flush:
        s_cmp_eq_u32 s{sEA}, 0
        s_cbranch_scc1 k2_flb
        s_sub_u32 s{sEA}, s{sEA}, 1
        s_ff1_i32_b64 s{sCUR}, s[{sNM}:{sNM+1}]
        s_bitset0_b64 s[{sNM}:{sNM+1}], s{sCUR}
        s_branch k2_flb3
        k2_flb:
        s_ff1_i32_b64 s{sCUR}, s[{sNB}:{sNB+1}]
        s_bitset0_b64 s[{sNB}:{sNB+1}], s{sCUR}
        k2_flb3:
        """)
        node_addr(sCUR)
        a(f"v_mov_b32 v{TP+1}, s59")
        a(TAKE)
        reduce_acc(ACC)
        a(f"""
        k2_flw:
        s_waitcnt lgkmcnt(0)
        v_readfirstlane_b32 s3, v{TP+2}
        s_cmp_lg_u32 s3, 0
        s_cbranch_scc1 k2_flr
        """)
        rmw(ACC)
        a(f"""
        s_mov_b64 exec, 1
        ds_write_b32 v{TP+1}, v{ACC} offset:{L_FLAG}
        s_mov_b64 exec, -1
        {RET}
        k2_flr:
        """)
        a(TAKE)
        if o.spin:
            a(f"""
            s_add_u32 s{sSPIN}, s{sSPIN}, 1
            s_cmp_lt_u32 s{sSPIN}, {o.spin}
            s_cbranch_scc1 k2_flw
            s_waitcnt lgkmcnt(0)
            v_mov_b32 v{TP+2}, 0
            s_nop 0
            """)
        a("s_branch k2_flw")
    if LOCK:
        lock_flush()
        a0 = a
        a = A()
    a(f"""
    k2_flush:
    s_cmp_eq_u32 s{sEA}, 0
    s_cbranch_scc1 k2_flb
    s_sub_u32 s{sEA}, s{sEA}, 1
    s_ff1_i32_b64 s{sCUR}, s[{sNM}:{sNM+1}]
    s_bitset0_b64 s[{sNM}:{sNM+1}], s{sCUR}
    """)
    node_addr(sCUR)
    a(f"ds_read_b128 {v(TP+4,4)}, v{TP} offset:{L_AGG}")
    reduce_acc(ACC)
    if CHAIN:
        a(f"v_mov_b32 v{TP+3}, 1")
    a(f"v_mov_b32 v{TP+1}, s59\ns_waitcnt lgkmcnt(0)")
    rmw(ACC)
    if CHAIN:
        a(DONE)
    else:
        a(f"""
        s_mov_b64 exec, 1
        ds_write_b32 v{TP+1}, v{VX} offset:{L_FLAG}
        s_mov_b64 exec, -1
        """)
    a(f"""
    {RET}
    k2_flb:
    s_cmp_eq_u32 s{sPK}, 0
    s_cbranch_scc1 k2_flb2
    s_mov_b32 s{sPK}, 0
    """)
    if CHAIN:
        a(f"""
        s_mov_b32 s{sCUR}, s{sOPA}
        s_mov_b32 s4, 1
        s_cmp_eq_u32 s{sSLOW}, 0
        s_cbranch_scc1 k2_flb3
        """)
    reduce_acc(PARK)
    a(f"""
    v_mov_b64 {v(ACC,2)}, 0
    v_mov_b64 {v(ACC+2,2)}, 0
    {RET}
    k2_flb2:
    {"s_mov_b32 s4, 0" if CHAIN else ""}
    k2_flb2x:
    s_ff1_i32_b64 s{sCUR}, s[{sNB}:{sNB+1}]
    s_bitset0_b64 s[{sNB}:{sNB+1}], s{sCUR}
    k2_flb3:
    """)
    node_addr(sCUR)
    a(f"""
    v_mov_b32 v{TP+1}, s59
    ds_read_b32 v{TP+2}, v{TP+1} offset:{L_FLAG}
    ds_read_b128 {v(TP+4,4)}, v{TP} offset:{L_AGG}
    """)
    reduce_acc(ACC)
    if CHAIN:
        a(f"v_mov_b32 v{TP+3}, 1")
    a(f"""
    k2_flw:
    s_waitcnt lgkmcnt(0)
    {f"v_cmp_ne_u32 vcc, s4, v{TP+2}" if CHAIN else f"v_cmp_eq_u32 vcc, 0, v{TP+2}"}
    s_cbranch_vccnz k2_flr
    """)
    rmw(ACC)
    if CHAIN:
        a(DONE)
    a(f"""
    {RET}
    k2_flr:
    ds_read_b32 v{TP+2}, v{TP+1} offset:{L_FLAG}
    ds_read_b128 {v(TP+4,4)}, v{TP} offset:{L_AGG}
    {SPIN}
    s_branch k2_flw
    k2_opena:
    s_cmp_lt_i32 s{sOPA}, 0
    s_cbranch_scc1 k2_openret
    """)
    node_addr(sOPA)
    if not CHAIN:
        a(f"""
        s_cmp_eq_u32 s{sSLOW}, 0
        s_cbranch_scc0 k2_opas
        ds_read_b128 {v(TP+4,4)}, v{TP} offset:{L_AGG}
        s_waitcnt lgkmcnt(0)
        """)
        rmw(PARK)
        a(f"{RET}\nk2_opas:")
    for q in range(4):
        a(f"ds_add_f32 v{TP}, v{PARK+q} offset:{L_AGG+4*q}")
    a(f"""
    {RET}
    k2_open:
    s_cmp_eq_u32 s{sOPEN}, 0
    s_cbranch_scc1 k2_openret
    s_cmp_eq_u64 s[{sNB}:{sNB+1}], 0
    s_cbranch_scc1 k2_openret
    {"s_mov_b32 s4, -1" if CHAIN else ""}
    s_cmp_eq_u32 s{sSLOW}, 0
    s_cbranch_scc1 k2_flb2x
    s_ff1_i32_b64 s{sCUR}, s[{sNB}:{sNB+1}]
    """)
    node_addr(sCUR)
    reduce_acc(ACC)
    for q in range(4):
        a(f"ds_add_f32 v{TP}, v{ACC+q} offset:{L_AGG+4*q}")
    a(f"""
    k2_openret:
    {RET}
    """)

    if LOCK:
        a = a0
        CHAIN = True

    def pre_open(x):
        if LOCK:
            a(f"s_call_b64 s[{sRET}:{sRET+1}], k2_open")
            return
        a(f"""
        s_cmp_eq_u32 s{sSLOW}, 0
        s_cbranch_scc0 k2_po{x}
        s_call_b64 s[{sRET}:{sRET+1}], k2_open
        k2_po{x}:
        """)

    def post_open(x, bar):
        if LOCK:
            return
        a(f"""
        s_cmp_eq_u32 s{sSLOW}, 0
        s_cbranch_scc1 k2_pq{x}
        s_call_b64 s[{sRET}:{sRET+1}], k2_opena
        s_call_b64 s[{sRET}:{sRET+1}], k2_open
        s_waitcnt lgkmcnt(0)
        {"s_barrier" if bar else ""}
        k2_pq{x}:
        """)
    a(f"""
    k2_done:
    s_waitcnt vmcnt(0)
    s_add_u32 s{sW0}, s{sW0}, {CAP}
    v_and_b32 v{vL}, 63, v{VTID}
    s_cmp_lt_u32 s{sW0}, s{sTOT}
    s_cbranch_scc0 k2_last
    """)
    if CHAIN:
        pre_open("w")
        a("s_waitcnt lgkmcnt(0)\ns_barrier")
        post_open("w", False)
    else:
        a(f"""
        s_waitcnt lgkmcnt(0)
        s_barrier
        s_call_b64 s[{sRET}:{sRET+1}], k2_opena
        s_waitcnt lgkmcnt(0)
        s_barrier
        s_call_b64 s[{sRET}:{sRET+1}], k2_open
        s_waitcnt lgkmcnt(0)
        s_barrier
        """)
    a(f"""
    v_lshlrev_b32 v1, 4, v{VTID}
    v_mov_b64 v[8:9], 0
    v_mov_b64 v[10:11], 0
    ds_write_b128 v1, v[8:11] offset:{L_XS}
    s_mov_b32 s{sLATE}, 0
    s_waitcnt lgkmcnt(0)
    s_barrier
    s_cmp_lg_u32 s{sWAVE}, {PW}
    s_cbranch_scc1 k2_p1
    s_branch k2_tg
    k2_last:
    """)
    PD = o.timing and "pd" in o.exp
    if PD:
        a("s_memrealtime s[72:73]")
    stamp(a, o, 5)
    a(f"""
    s_cmp_ge_u32 s{sWAVE}, 5
    s_cbranch_scc1 k2_nowm
    v_lshlrev_b32 v64, 4, v{vL}
    s_mov_b32 s58, {TB_WM}
    s_mov_b32 s59, {TB_WM+4096}
    """)
    for q in range(8):
        a(f"buffer_load_dwordx4 {v(4*q,4)}, v64, s[{sTB}:{sTB+3}], s{58+q//4} offen offset:{1024*(q%4)} sc1")
    a("k2_nowm:")
    if CHAIN:
        pre_open("l")
    a(f"""
    v_and_b32 v64, 31, v{vL}
    v_lshrrev_b32 v65, 5, v{vL}
    v_lshrrev_b32 v66, 2, v64
    v_mul_u32_u24 v66, 1040, v66
    v_lshl_add_u32 v66, v65, 7, v66
    v_and_b32 v67, 3, v64
    v_lshl_add_u32 v66, v67, 2, v66
    s_lshl_b32 s3, s{sWAVE}, 13
    v_add_u32 v113, s3, v66
    v_lshlrev_b32 v64, 4, v64
    v_lshl_add_u32 v112, v65, 9, v64
    """)
    for i in range(1, 8):
        a(f"v_xor_b32 v{113+i}, {16*i}, v113")
    a(f"""
    s_lshl_b32 s3, s{sWAVE}, 12
    s_mov_b32 s10, 0xbf317218
    s_mov_b32 s11, 0xbf317218
    s_waitcnt lgkmcnt(0)
    s_barrier
    """)
    stamp(a, o, 6)
    if CHAIN:
        if PD:
            a("s_memrealtime s[74:75]\ns_memrealtime s[76:77]")
        post_open("l", True)
        if PD:
            a("s_memrealtime s[78:79]")
    else:
        a(f"""
        {"s_memrealtime s[74:75]" if PD else ""}
        s_call_b64 s[{sRET}:{sRET+1}], k2_opena
        s_waitcnt lgkmcnt(0)
        s_barrier
        {"s_memrealtime s[76:77]" if PD else ""}
        s_call_b64 s[{sRET}:{sRET+1}], k2_open
        s_waitcnt lgkmcnt(0)
        s_barrier
        {"s_memrealtime s[78:79]" if PD else ""}
        """)
    a(f"""
    s_cmp_ge_u32 s{sWAVE}, 5
    s_cbranch_scc1 {"k2_tm" if o.timing else "k2_end"}
    """)
    for i in range(8):
        for u in range(2):
            a(f"ds_read2st64_b32 {v(32+4*i+2*u,2)}, v{113+i} offset0:{2*u} offset1:{2*u+1}")
    for k in range(4):
        a(f"s_waitcnt lgkmcnt({12-4*k})")
        for r in range(32 + 8 * k, 40 + 8 * k, 2):
            a(f"v_pk_mul_f32 {v(r,2)}, {v(r,2)}, s[10:11]")
        for sx in range(4):
            a(f"v_cvt_pk_bf16_f32 v{64+4*sx+k}, v{32+8*k+sx}, v{36+8*k+sx}")
    if PD:
        a("s_memrealtime s[80:81]")
    a("s_waitcnt vmcnt(0)\ns_nop 0")
    if PD:
        a("s_memrealtime s[82:83]")
    for sx in range(4):
        mf(80, 64 + 4 * sx, 8 * sx, "0" if sx == 0 else v(80, 16))
        mf(96, 64 + 4 * sx, 8 * sx + 4, "0" if sx == 0 else v(96, 16))
    a("s_nop 10")
    for rq in range(4):
        b = 32 + 4 * rq
        a(f"""
        v_cvt_pk_bf16_f32 v{b}, v{80+4*rq}, v{81+4*rq}
        v_cvt_pk_bf16_f32 v{b+1}, v{82+4*rq}, v{83+4*rq}
        v_cvt_pk_bf16_f32 v{b+2}, v{96+4*rq}, v{97+4*rq}
        v_cvt_pk_bf16_f32 v{b+3}, v{98+4*rq}, v{99+4*rq}
        buffer_store_dwordx4 {v(b,4)}, v112, s[{sOUT}:{sOUT+3}], s3 offen offset:{1024*rq} {o.outst}
        """)
    if PD:
        a("s_memrealtime s[84:85]")
    if o.timing:
        a("k2_tm:\ns_waitcnt vmcnt(0)")
        if PD:
            a("s_memrealtime s[86:87]")
        stamp(a, o, 7)
        a(f"s_mov_b64 exec, 1")
        stamp_store(a, o, 1, 8, 8, sWAVE)
        stamp_store(a, o, 0, 5, 8, sWAVE, lambda i: 96 + i)
    a("k2_end:\ns_endpgm")


def desc(name, vg, sg):
    return f""".p2align 6
.amdhsa_kernel {name}
  .amdhsa_next_free_vgpr {vg}
  .amdhsa_next_free_sgpr {sg}
  .amdhsa_accum_offset {(vg+3)//4*4}
  .amdhsa_group_segment_fixed_size 0
  .amdhsa_kernarg_size 88
  .amdhsa_user_sgpr_count 2
  .amdhsa_user_sgpr_kernarg_segment_ptr 1
  .amdhsa_system_sgpr_workgroup_id_x 1
.end_amdhsa_kernel
"""


def main():
    p = argparse.ArgumentParser()
    p.add_argument("-o", default="cdna_kernels/" + NAME + ".s")
    p.add_argument("--timing", action="store_true")
    p.add_argument("--k1ld", default="nt")
    p.add_argument("--k1st", default="sc1")
    p.add_argument("--k2ld", default="sc1")
    p.add_argument("--xld", default="")
    p.add_argument("--outst", default="sc1")
    p.add_argument("--exp", default="prio,ybar")
    p.add_argument("--spin", type=int, default=0)
    p.add_argument("--psl", type=int, default=4)
    p.add_argument("--pmax", type=int, default=100000)
    p.add_argument("--k1n", default="1,2,1")
    p.add_argument("--pw", type=int, default=0)
    p.add_argument("--pd", type=int, default=1)
    p.add_argument("--wd", type=int, default=1)
    p.add_argument("--wsl", type=int, default=0)
    p.add_argument("--efld", default="sc1")
    p.add_argument("--k2n", default="3,0,3")
    p.add_argument("--sig", default="watch")
    p.add_argument("--k1p", type=int, default=0)
    p.add_argument("--nx", type=int, default=2)
    p.add_argument("--k1q", type=int, default=2)
    p.add_argument("--k1c", type=int, default=1)
    p.add_argument("--s1sh", type=int, default=1)
    p.add_argument("--s1st", type=int, default=64)
    p.add_argument("--s1sf", type=int, default=0)
    p.add_argument("--k1w", type=int, default=-1)
    p.add_argument("--ww", type=int, default=0)
    p.add_argument("--mbg", type=int, default=0)
    p.add_argument("--mbs", type=int, default=64)
    p.add_argument("--mbx", type=int, default=1)
    o = p.parse_args()
    o.exp = set(o.exp.split(","))
    K = NAME + "_kernel"
    a = A()
    o.ph2 = True
    k1(a, o)
    k2(a, o)
    t = f"""; TFN tensor-product message passing in one launch of 256 co-resident workgroups.
; Kernarg: 0 x, 8 src, 16 dst, 24 Y, 32 edge_feat, 40 w_rad, 48 cg, 56 w_mix, 64 out, 72 debug, 80 ws
; @launch grid=({G},1,1) block=(1024,1,1) lds={LDS_SZ}
.amdgcn_target "amdgcn-amd-amdhsa--gfx950"
.text
.globl {K}
.p2align 8
.type {K},@function
{K}:
{a.text()}
.section .rodata,"a"
{desc(K, 128, 102)}"""
    open(o.o, "w").write(t)


main()
```

```python
import sys, argparse

NAME = "gather_scatter__tensor_product_equiv_tfn__graph"
E, N = 640000, 10000
G, CH = 256, 2500
CHMAX = 2560
BMUL = 26843
WS_EF = 0
WS_YI = E * 32
WS_TB = WS_YI + E * 12
TB_WM = 262144
TB_MB = TB_WM + 8192
TB_SZ = TB_MB + 65536
WS_TM = WS_TB + 524288
HALF = 5000
L1_HIST, L1_ST, L1_INV, L1_YI = 0, 1024, 2048, 7168
L1_RAW = 81920
L1_WR, L1_CG = 37888, 39936
LDS_SZ = 163840
CAP, C = 2720, 2816
SEG = 170
L_AGG = 0
L_XS = 40960
XHALF = C // 2 * 4
L_CNT = L_XS + C * 4
L_FLAG = L_CNT + 256
L_SH = L_FLAG + 256
L_YS = L_SH + C // 8 * 2
L_CG = L_YS + C * 8
L_EF = L_CG + 128
L_SZ = L_EF + (CAP + 1) * 32
L_TT = L_EF
assert L_SZ <= 163840 and L_CG % 64 == 0 and XHALF % 16 == 0 and L_YS % 16 == 0 and L_EF % 16 == 0
assert L_CG >= 65536 and SEG * 16 == CAP


class A:
    def __init__(s):
        s.l = []

    def __call__(s, t):
        for x in t.strip("\n").split("\n"):
            x = x.strip()
            if x:
                s.l.append(x if x.endswith(":") else "    " + x)

    def text(s):
        return "\n".join(s.l) + "\n"


def v(a, n=1):
    return f"v{a}" if n == 1 else f"v[{a}:{a+n-1}]"


def s(a, n=1):
    return f"s{a}" if n == 1 else f"s[{a}:{a+n-1}]"


def srd(a, r, ptr, off, nr):
    if off is None:
        a(f"s_mov_b32 s{r}, s{ptr}\ns_mov_b32 s{r+1}, s{ptr+1}")
    else:
        a(f"s_add_u32 s{r}, s{ptr}, {off}\ns_addc_u32 s{r+1}, s{ptr+1}, 0")
    a(f"s_mov_b32 s{r+2}, {nr}\ns_mov_b32 s{r+3}, 0x20000")


DPPS = ["row_shr:1 row_mask:0xf bank_mask:0xf bound_ctrl:1",
        "row_shr:2 row_mask:0xf bank_mask:0xf bound_ctrl:1",
        "row_shr:4 row_mask:0xf bank_mask:0xf bound_ctrl:1",
        "row_shr:8 row_mask:0xf bank_mask:0xf bound_ctrl:1",
        "row_bcast:15 row_mask:0xa bank_mask:0xf",
        "row_bcast:31 row_mask:0xc bank_mask:0xf"]


def scan(a, op, regs):
    for d in DPPS:
        for r in regs:
            a(f"{op}_dpp v{r}, v{r}, v{r} {d}")
        if len(regs) < 3:
            a(f"s_nop {2 - len(regs)}")


def stamp(a, o, i, alt=False):
    sets = [x for x in ("pst", "pc", "pd") if x in o.exp]
    alt = "pst" if alt is True else alt
    if sets and i >= 5 and not alt:
        return
    if alt and alt not in sets:
        return
    if o.timing:
        a(f"{'s_memtime' if 'clk' in o.exp else 's_memrealtime'} s[{72+2*i}:{73+2*i}]")


def stamp_store(a, o, kern, n, ptr, sw, reg=lambda i: 72 + 2 * i):
    if not o.timing:
        return
    a(f"""
    s_waitcnt lgkmcnt(0)
    s_lshl_b32 s3, s2, 4
    s_add_u32 s3, s3, s{sw}
    s_lshl_b32 s3, s3, 6
    s_add_u32 s3, s3, {WS_TM + kern*262144}
    """)
    srd(a, 68, ptr, "s3", 64)
    a("s_nop 4\nv_mov_b32 v0, 0")
    for i in range(n):
        a(f"v_mov_b32 v1, s{reg(i)}\nbuffer_store_dword v1, v0, s[68:71], 0 offen offset:{4*i}\ns_nop 1")


X, ZE, ZO, TA, TP, ACC, EE, W, EF, YY, XI = 0, 32, 48, 64, 72, 80, 88, 92, 108, 112, 114
PARK, VRI, VHB = 100, 104, 105
VXO, VX, VY, VEF, VJ4, VTID = 122, 123, 124, 125, 126, 127
sX, sEF, sYI, sTB, sOUT = 12, 16, 20, 24, 28
sWAVE, sB4, sN0, sW0, sTOT, sLIM, sP = 32, 33, 34, 35, 36, 37, 38
sNG = 39
sONE, sXNR, sREM, sBM, sNM, sCUR, sCG = 40, 42, 43, 44, 48, 50, 51
sM = 52
sRET = 60
sSLOW, sOPEN = 47, 70
sTH, sPR = 71, 11
sNB, sEA, sOPA, sPK, s512 = 88, 90, 91, 92, 93
sDP, sSPIN, sSIG, sLATE = 94, 101, 60, 61


def mbword(o, word):
    return TB_MB + ((32768 if o.mbg else 128) if word else 0)


def bstore(a, o, sr):
    a(f"v_and_b32 v65, 63, v{VTID}\nv_mov_b32 v64, 1")
    if o.mbg:
        sh = o.mbg.bit_length() - 3
        a(f"""
        v_and_b32 v66, {o.mbg//4 - 1}, v65
        v_lshrrev_b32 v65, {sh}, v65
        v_mul_u32_u24 v65, {o.mbs}, v65
        v_lshl_add_u32 v68, v66, 4, v65
        v_mov_b32 v65, 1
        v_mov_b32 v66, 1
        v_mov_b32 v67, 1
        buffer_store_dwordx4 v[64:67], v68, s[{sTB}:{sTB+3}], {sr} offen sc1
        """)
    else:
        a("v_lshlrev_b32 v65, 8, v65")
        for i in range(4):
            a(f"buffer_store_dword v64, v65, s[{sTB}:{sTB+3}], {sr} offen sc1")
            if i < 3:
                a(f"s_add_u32 {sr}, {sr}, 16384")


def watch(a, o, x):
    a(f"""
    v_and_b32 v65, 63, v{VTID}
    v_mul_u32_u24 v65, {o.s1st}, v65
    s_mov_b64 exec, {11 if o.s1sh == 3 else (1 << o.s1sh) - 1}
    k2_wt{x}:
    buffer_load_dword v{EE}, v65, s[48:51], 0 offen sc1
    s_add_u32 s{sSPIN}, s{sSPIN}, 1
    {f"s_sleep {o.wsl}" if o.wsl else ""}
    s_waitcnt vmcnt(0)
    v_readlane_b32 s3, v{EE}, 0
    """)
    for i in ([1, 3] if o.s1sh == 3 else range(1, o.s1sh)):
        a(f"v_readlane_b32 s10, v{EE}, {i}\ns_add_u32 s3, s3, s10")
    a(f"""
    s_cmp_ge_u32 s3, {G}
    s_cbranch_scc1 k2_wtd{x}
    s_cmp_lt_u32 s{sSPIN}, {o.pmax}
    s_cbranch_scc1 k2_wt{x}
    k2_wtd{x}:
    s_mov_b64 exec, -1
    """)


def bcast(a, o, word, tag):
    a(f"""
    v_readfirstlane_b32 s3, v64
    s_and_b32 s3, s3, {G-1}
    s_cmp_lg_u32 s3, {G-1}
    s_cbranch_scc1 {tag}
    s_mov_b32 s3, {mbword(o, word)}
    """)
    bstore(a, o, "s3")
    a(f"{tag}:")


def arrive(a, word, tag):
    a(f"""
    v_mov_b32 v64, 1
    v_mov_b32 v65, {L_FLAG + word // 32}
    s_mov_b32 s{sSIG}, 0
    s_mov_b64 exec, 1
    ds_add_rtn_u32 v65, v65, v64
    s_waitcnt lgkmcnt(0)
    v_readfirstlane_b32 s3, v65
    s_cmp_lg_u32 s3, 15
    s_cbranch_scc1 {tag}
    buffer_atomic_add v64, off, s[48:51], 0 offset:{word} sc0 sc1
    s_mov_b32 s{sSIG}, 1
    {tag}:
    s_mov_b64 exec, -1
    """)


def poll(a, o, word, tag):
    a(f"""
    {mbaddr(o, "s3", word)}
    v_mov_b32 v{EE}, 0
    s_mov_b64 exec, 1
    {tag}:
    buffer_load_dword v{EE}, off, s[{sTB}:{sTB+3}], s3 sc1
    s_add_u32 s{sSPIN}, s{sSPIN}, 1
    {f"s_sleep {o.psl}" if o.psl and o.pd > 1 else ""}
    s_waitcnt vmcnt({o.pd - 1})
    v_readfirstlane_b32 s10, v{EE}
    s_cmp_eq_u32 s10, 1
    s_cbranch_scc1 {tag}d
    s_cmp_ge_u32 s{sSPIN}, {o.pmax}
    s_cbranch_scc1 {tag}d
    {f"s_sleep {o.psl}" if o.psl and o.pd == 1 else ""}
    s_branch {tag}
    {tag}d:
    s_mov_b64 exec, -1
    """)


def shard(o):
    if o.s1sh == 3:
        return """s_mul_i32 s3, s2, 171
        s_lshr_b32 s3, s3, 9
        s_mul_i32 s3, s3, 3
        s_sub_u32 s3, s2, s3
        s_lshl_b32 s3, s3, 6
        s_cmp_eq_u32 s3, 128
        s_cselect_b32 s3, 192, s3"""
    return f"""s_lshr_b32 s3, s2, {o.s1sf}
    s_and_b32 s3, s3, {o.s1sh-1}
    s_mul_i32 s3, s3, {o.s1st}"""


def mbaddr(o, dst, word, tmp="s10"):
    if not o.mbg:
        return f"s_lshl_b32 {dst}, s2, 8\ns_add_u32 {dst}, {dst}, {TB_MB + word}"
    lg = o.mbg.bit_length() - 1
    if o.mbx:
        pre = f"""s_and_b32 {dst}, s2, 7
        s_lshl_b32 {dst}, {dst}, 5
        s_lshr_b32 {tmp}, s2, 3
        s_or_b32 {dst}, {dst}, {tmp}"""
    else:
        pre = f"s_mov_b32 {dst}, s2"
    return f"""{pre}
    s_and_b32 {tmp}, {dst}, {o.mbg-1}
    s_lshl_b32 {tmp}, {tmp}, 2
    s_lshr_b32 {dst}, {dst}, {lg}
    s_mul_i32 {dst}, {dst}, {o.mbs}
    s_add_u32 {dst}, {dst}, {tmp}
    s_add_u32 {dst}, {dst}, {TB_MB + (32768 if word else 0)}"""


def bucket4(a):
    a(f"""
    s_and_b32 s3, s2, 7
    s_lshl_b32 s3, s3, 5
    s_lshr_b32 s10, s2, 3
    s_or_b32 s3, s3, s10
    s_lshl_b32 s{sB4}, s3, 2
    """)


def tgather(a, o, vl, dst):
    if "w0" in o.exp:
        a(f"v_lshlrev_b32 v{dst+4}, 12, v{vl}")
        for i in range(4):
            a(f"buffer_load_dword v{dst+i}, v{dst+4}, s[{sTB}:{sTB+3}], s{sB4} offen offset:{1024*i} sc1")
        return
    a(f"v_lshlrev_b32 v{dst+4}, 10, v{vl}\ns_mov_b32 s3, s{sB4}")
    for i in range(4):
        a(f"buffer_load_dword v{dst+i}, v{dst+4}, s[{sTB}:{sTB+3}], s3 offen sc1")
        if i < 3:
            a("s_add_u32 s3, s3, 65536")


def skew_tab(o):
    sz = [int(x) for x in o.skew.split(",")]
    assert len(sz) == 8 and sum(sz) == 8 * CH and all(x % 4 == 0 and 2048 <= x <= CHMAX for x in sz)
    return sz, [sum(sz[:k]) for k in range(8)]


def chunk_sizes(o):
    if not o.skew:
        return f"v_cmp_gt_u32 vcc, {CH - 2048}, v0"
    sz, pf = skew_tab(o)
    w = lambda t, k: hex(t[k] | t[k + 1] << 16)
    return f"""s_mov_b32 s88, {w(sz, 0)}
    s_mov_b32 s89, {w(sz, 2)}
    s_mov_b32 s90, {w(pf, 0)}
    s_mov_b32 s91, {w(pf, 2)}
    s_bitcmp1_b32 s2, 2
    s_cmov_b32 s88, {w(sz, 4)}
    s_cmov_b32 s89, {w(sz, 6)}
    s_cmov_b32 s90, {w(pf, 4)}
    s_cmov_b32 s91, {w(pf, 6)}
    s_and_b32 s3, s2, 3
    s_lshl_b32 s3, s3, 4
    s_lshr_b64 s[88:89], s[88:89], s3
    s_lshr_b64 s[90:91], s[90:91], s3
    s_lshr_b32 s92, s2, 3
    s_mul_i32 s92, s92, {8*CH}
    s_and_b32 s90, s90, 0xffff
    s_add_u32 s92, s92, s90
    s_and_b32 s3, s88, 0xffff
    s_lshl_b32 s88, s3, 2
    s_lshl_b32 s89, s3, 3
    s_lshl_b32 s90, s3, 5
    s_mul_i32 s91, s3, 12
    s_sub_u32 s3, s3, 2048
    v_cmp_gt_u32 vcc, s3, v0"""


def chunk_bases(o, vl):
    if not o.skew:
        return f"""v_mul_u32_u24 v12, {4*CH}, v{vl}
        v_add_u32 v13, {CH}, v12
        v_add_u32 v14, {2*CH}, v12
        v_add_u32 v15, {3*CH}, v12"""
    sz, pf = skew_tab(o)
    t = f"v_lshrrev_b32 v18, 1, v{vl}\nv_and_b32 v19, 1, v{vl}\nv_mul_u32_u24 v18, {8*CH}, v18\n"
    for i in range(4):
        t += f"v_mul_u32_u24 v{12+i}, {pf[4+i]-pf[i]}, v19\nv_add_u32 v{12+i}, {pf[i]}, v{12+i}\nv_add_u32 v{12+i}, v18, v{12+i}\n"
    return t


def k1(a, o):
    LD = o.k1ld
    ST = o.k1st
    na, nb, nc = [int(x) for x in o.k1n.split(",")]
    nd = 5 - na - nb - nc
    a(f"""
    s_cmp_ge_u32 s2, {G}
    s_cbranch_scc1 k2_end
    """)
    stamp(a, o, 0)
    if "dbg" in o.exp:
        a("s_memrealtime s[72:73]\ns_getreg_b32 s76, hwreg(HW_REG_XCC_ID)")
    a(f"""
    s_load_dwordx4 s[4:7], s[0:1], 8
    s_load_dwordx4 s[8:11], s[0:1], 24
    s_load_dwordx4 s[12:15], s[0:1], 40
    s_load_dwordx2 s[16:17], s[0:1], 56
    s_load_dwordx2 s[18:19], s[0:1], 80
    s_load_dwordx2 s[68:69], s[0:1], 0
    s_load_dwordx2 s[70:71], s[0:1], 64
    s_load_dwordx2 s[{sDP}:{sDP+1}], s[0:1], 72
    v_lshlrev_b32 v1, 2, v0
    v_lshlrev_b32 v2, 3, v0
    v_lshlrev_b32 v3, 4, v0
    v_and_b32 v46, 0x3fc, v1
    v_mov_b64 v[48:49], 0
    v_mov_b64 v[50:51], 0
    v_lshrrev_b32 v62, 6, v0
    v_and_b32 v63, 63, v0
    ds_write_b32 v46, v48 offset:{L1_HIST}
    v_readfirstlane_b32 s62, v62
    {chunk_sizes(o)}
    v_mov_b32 v{VTID}, v0
    s_movk_i32 s52, 4096
    s_movk_i32 s53, 8192
    s_movk_i32 s54, 16384
    s_mov_b32 s55, 32768
    s_mov_b32 s56, 65536
    s_mov_b32 s57, 49152
    s_mov_b64 s[60:61], vcc
    {"s_lshl_b32 s3, s92, 2" if o.skew else f"s_mul_i32 s3, s2, {CH*4}"}
    {"s_lshl_b32 s58, s92, 3" if o.skew else f"s_mul_i32 s58, s2, {CH*8}"}
    {"s_lshl_b32 s59, s92, 5" if o.skew else f"s_mul_i32 s59, s2, {CH*32}"}
    s_mov_b32 s{sSPIN}, 0
    s_cmp_lt_u32 s2, 4
    s_cselect_b32 s63, s2, 6
    s_cmp_eq_u32 s62, 13
    s_cselect_b32 s63, s63, 6
    s_waitcnt lgkmcnt(0)
    """)
    srd(a, 24, 6, "s3", "s88" if o.skew else CH * 4)
    a(f"""
    s_cmp_ge_u32 s63, 4
    s_cbranch_scc1 k1_noimg0
    v_and_b32 v64, 31, v63
    v_lshrrev_b32 v65, 5, v63
    v_lshlrev_b32 v64, 2, v64
    """)
    srd(a, 48, 16, None, 8192)
    a(f"""
    v_lshl_add_u32 v64, v65, 11, v64
    s_and_b32 s64, s63, 1
    s_lshl_b32 s64, s64, 12
    s_lshr_b32 s65, s63, 1
    s_lshl_b32 s65, s65, 7
    s_add_u32 s64, s64, s65
    """)
    for i in range(8):
        a(f"buffer_load_dword v{66+i}, v64, s[48:51], s64 offen offset:{256*i}")
    a("k1_noimg0:")
    so4 = ["0", "s52", "s53"]
    so8 = ["0", "s53", "s54"]
    so16 = ["0", "s54", "s55", "s57", "s56"]
    for i in range(3):
        a(f"buffer_load_dword v{4+i}, v1, s[24:27], {so4[i]} offen {LD}")
    srd(a, 20, 4, "s3", "s88" if o.skew else CH * 4)
    srd(a, 28, 8, "s58", "s89" if o.skew else CH * 8)
    srd(a, 36, 12, None, 2048)
    srd(a, 40, 14, None, 128)
    for i in range(3):
        a(f"buffer_load_dword v{7+i}, v1, s[20:23], {so4[i]} offen {LD}")
    a(f"""
    v_lshlrev_b32 v61, 4, v63
    s_lshl_b32 s64, s62, 7
    s_add_u32 m0, s64, {L1_WR}
    s_mov_b64 exec, 0xff
    buffer_load_dwordx4 v61, s[36:39], s64 offen lds
    s_mov_b32 m0, {L1_CG}
    s_nop 0
    buffer_load_dwordx4 v61, s[40:43], 0 offen lds
    s_mov_b64 exec, -1
    """)
    for i in range(3):
        a(f"buffer_load_dwordx2 v[{10+2*i}:{11+2*i}], v2, s[28:31], {so8[i]} offen {LD}")
    srd(a, 32, 10, "s59", "s90" if o.skew else CH * 32)
    jj = [0]

    def ld_ef(n):
        for _ in range(n):
            j = jj[0]
            a(f"buffer_load_dwordx4 v3, s[32:35], {so16[j]} offen {LD} lds")
            if j < 4:
                a("s_add_u32 m0, m0, 16384\ns_nop 0")
            jj[0] += 1
    a(f"""
    ds_write_b128 v3, v[48:51] offset:{L_XS}
    s_lshl_b32 s3, s62, 10
    s_add_u32 m0, s3, {L1_RAW}
    s_lshl_b32 s66, s2, 10
    s_mov_b32 s67, {L1_YI}
    v_mov_b32 v47, 1
    v_mov_b32 v60, {1<<28}
    s_movk_i32 s10, {HALF}
    s_barrier
    """)
    ld_ef(na)
    a(f"s_add_u32 s59, s59, {WS_EF}")
    srd(a, 36, 18, "s59", "s90" if o.skew else CH * 32)
    a(f"s_mul_i32 s58, {'s92, 12' if o.skew else f's2, {CH*12}'}\ns_add_u32 s58, s58, {WS_YI}")
    srd(a, 40, 18, "s58", "s91" if o.skew else CH * 12)
    srd(a, 44, 18, WS_TB, TB_SZ)
    a(f"s_waitcnt vmcnt({8+na})")
    stamp(a, o, 1)
    for i in range(3):
        a(f"v_mul_u32_u24 v{16+i}, {BMUL}, v{4+i}")
    for i in range(3):
        a(f"v_lshrrev_b32 v{16+i}, 20, v{16+i}")
    for i in range(3):
        a(f"v_lshlrev_b32 v{40+i}, 2, v{16+i}")
    a(f"""
    ds_add_rtn_u32 v43, v40, v47 offset:{L1_HIST}
    ds_add_rtn_u32 v44, v41, v47 offset:{L1_HIST}
    s_mov_b64 exec, s[60:61]
    s_cbranch_execz k1_a
    ds_add_rtn_u32 v45, v42, v47 offset:{L1_HIST}
    k1_a:
    s_mov_b64 exec, -1
    """)
    ld_ef(nb)
    for i in range(3):
        a(f"v_mul_u32_u24 v{16+i}, 320007, v{16+i}")
    for i in range(3):
        a(f"v_add_u32 v{16+i}, 8160, v{16+i}")
    for i in range(3):
        a(f"v_lshrrev_b32 v{16+i}, 13, v{16+i}")
    for i in range(3):
        a(f"v_sub_u32 v{4+i}, v{4+i}, v{16+i}")
    for i in range(3):
        a(f"v_lshlrev_b32 v{4+i}, 18, v{4+i}")
    a(f"""
    s_waitcnt lgkmcnt(0)
    s_barrier
    ds_read_b128 v[48:51], v61 offset:{L1_HIST}
    s_waitcnt vmcnt({5+na+nb})
    """)
    for i in range(3):
        a(f"v_cmp_le_u32 s[{4+2*i}:{5+2*i}], s10, v{7+i}")
    for i in range(3):
        a(f"v_cndmask_b32 v{16+i}, 0, v60, s[{4+2*i}:{5+2*i}]")
    for i in range(3):
        a(f"v_or3_b32 v{7+i}, v{7+i}, v{4+i}, v{16+i}")
    a(f"""
    s_waitcnt lgkmcnt(0)
    v_add_u32 v54, v48, v49
    v_add_u32 v55, v54, v50
    v_add_u32 v56, v55, v51
    v_mov_b32 v57, v56
    s_nop 1
    """)
    scan(a, "v_add_u32", [57])
    a(f"""
    v_sub_u32 v52, v57, v56
    v_add_u32 v53, v52, v48
    v_add_u32 v54, v52, v54
    v_add_u32 v55, v52, v55
    ds_write_b128 v61, v[52:55] offset:{L1_ST}
    ds_read_b32 v56, v40 offset:{L1_ST}
    ds_read_b32 v57, v41 offset:{L1_ST}
    ds_read_b32 v58, v42 offset:{L1_ST}
    v_lshl_or_b32 v48, v48, 16, v52
    v_lshl_or_b32 v49, v49, 16, v53
    v_lshl_or_b32 v50, v50, 16, v54
    v_lshl_or_b32 v51, v51, 16, v55
    v_add_u32 v17, 1024, v0
    v_add_u32 v18, 2048, v0
    s_waitcnt lgkmcnt(0)
    """)
    for i in range(3):
        a(f"v_add_u32 v{43+i}, v{43+i}, v{56+i}")
    for i in range(3):
        a(f"v_mad_u32_u24 v{40+i}, v{43+i}, 12, s67")
        a(f"v_lshlrev_b32 v{43+i}, 1, v{43+i}")
    stamp(a, o, 2)
    a(f"""
    ds_write_b16 v43, v0 offset:{L1_INV}
    ds_write_b16 v44, v17 offset:{L1_INV}
    s_waitcnt vmcnt({na+nb})
    """)
    for i in range(2):
        a(f"ds_write2_b32 v{40+i}, v{10+2*i}, v{11+2*i} offset0:0 offset1:1")
        a(f"ds_write_b32 v{40+i}, v{7+i} offset:8")
    a(f"""
    s_mov_b64 exec, s[60:61]
    s_cbranch_execz k1_b
    ds_write_b16 v45, v18 offset:{L1_INV}
    ds_write2_b32 v42, v14, v15 offset0:0 offset1:1
    ds_write_b32 v42, v9 offset:8
    k1_b:
    s_mov_b64 exec, -1
    s_cmp_lg_u32 s62, 0
    s_cbranch_scc1 k1_c
    buffer_store_dwordx4 v[48:51], v61, s[44:47], s66 offen sc1
    {mbaddr(o, "s4", 0, "s5")}
    v_lshlrev_b32 v64, {15 if o.mbg else 7}, v63
    v_mov_b32 v65, 0
    s_mov_b64 exec, 3
    buffer_store_dword v65, v64, s[44:47], s4 offen sc1
    s_mov_b64 exec, -1
    k1_c:
    """)
    ld_ef(nc)
    a(f"""
    v_and_b32 v1, -2, v0
    v_and_b32 v2, 1, v0
    v_lshlrev_b32 v2, 4, v2
    v_add_u32 v2, {L1_RAW}, v2
    v_and_b32 v4, 31, v63
    v_lshrrev_b32 v5, 5, v63
    v_lshlrev_b32 v4, 2, v4
    v_lshl_add_u32 v4, v5, 10, v4
    v_add_u32 v4, {L1_WR}, v4
    s_waitcnt lgkmcnt(0)
    s_barrier
    ds_read_b128 v[24:27], v3 offset:{L1_YI}
    ds_read_b128 v[28:31], v3 offset:{L1_YI+16384}
    """)
    for j in range(5):
        a(f"ds_read_u16 v{32+j}, v1 offset:{L1_INV+1024*j}")
    for i in range(4):
        a(f"ds_read2_b32 v[{104+2*i}:{105+2*i}], v4 offset0:{64*i} offset1:{64*i+32}")
    a(f"""
    s_waitcnt lgkmcnt(10)
    buffer_store_dwordx4 v[24:27], v3, s[40:43], 0 offen {ST}
    s_waitcnt lgkmcnt(9)
    buffer_store_dwordx4 v[28:31], v3, s[40:43], s54 offen {ST}
    {"s_barrier" if "ybar" in o.exp else ""}
    """)
    ld_ef(nd)
    srd(a, sTB, 18, WS_TB, TB_SZ)
    srd(a, 48, sDP, None, 256)
    a(f"""
    s_cmp_lg_u32 s62, 12
    s_cbranch_scc1 k1_nocg
    v_and_b32 v64, 3, v63
    v_lshlrev_b32 v64, 1, v64
    s_waitcnt lgkmcnt(0)
    """)
    for h in range(2):
        for i in range(8):
            a(f"ds_read_u16 v{66+8*h+i}, v64 offset:{L1_CG+8*(8*h+i)}")
        a("s_waitcnt lgkmcnt(0)")
    for k in range(8):
        a(f"v_lshl_or_b32 v{84+k}, v{67+2*k}, 16, v{66+2*k}")
    a(f"""
    v_add_u32 v64, {L_CG}, v61
    s_mov_b64 exec, 15
    ds_write_b128 v64, v[84:87]
    ds_write_b128 v64, v[88:91] offset:64
    s_mov_b64 exec, -1
    k1_nocg:
    s_mov_b32 s4, 0xbfb8aa3b
    s_mov_b32 s5, 0xffff0000
    s_waitcnt lgkmcnt(0)
    """)
    for j in range(5):
        a(f"v_lshl_add_u32 v{32+j}, v{32+j}, 5, v2")
    for par in range(2):
        for k in range(4):
            for u in range(2):
                if par == 0:
                    a(f"v_lshlrev_b32 v{76+u}, 16, v{104+2*k+u}")
                else:
                    a(f"v_and_b32 v{76+u}, s5, v{104+2*k+u}")
            a(f"""
            v_mul_f32 v76, s4, v76
            v_mul_f32 v77, s4, v77
            v_cvt_pk_bf16_f32 v{W+4*par+k}, v76, v77
            """)
    if o.sig == "ret":
        a(f"s_waitcnt vmcnt({nd})")
        stamp(a, o, 5, True)
        arrive(a, 0, "k1_ns")
        a("s_waitcnt vmcnt(0)")
        if "pb3" in o.exp:
            stamp(a, o, 7, True)
        a(f"""
        s_cmp_eq_u32 s{sSIG}, 0
        s_cbranch_scc1 k1_nb1
        """)
        bcast(a, o, 0, "k1_nb1")
        a("s_barrier")
        stamp(a, o, 3)
        for j in range(5):
            a(f"ds_read_b128 v[{4+4*j}:{7+4*j}], v{32+j}")
        for j in range(5):
            a(f"s_waitcnt lgkmcnt({4-j})")
            a(f"buffer_store_dwordx4 v[{4+4*j}:{7+4*j}], v3, s[36:39], {so16[j]} offen {ST}")
    elif o.sig == "early":
        p = o.k1q
        a(f"s_waitcnt vmcnt({nd})")
        stamp(a, o, 5, True)
        a(f"""
        s_barrier
        s_cmp_lg_u32 s62, 0
        s_cbranch_scc1 k1_e0
        v_mov_b32 v64, 1
        {shard(o)}
        s_mov_b64 exec, 1
        buffer_atomic_add v64, off, s[48:51], s3 sc1
        s_mov_b64 exec, -1
        s_waitcnt vmcnt(1)
        s_branch k1_e1
        k1_e0:
        s_waitcnt vmcnt(0)
        k1_e1:
        {mbaddr(o, "s4", 0, "s5")}
        s_barrier
        """)
        stamp(a, o, 3)
        for j in range(5):
            a(f"ds_read_b128 v[{4+4*j}:{7+4*j}], v{32+j}")
        a(f"s_mov_b32 s{sLATE}, 0")
        bucket4(a)
        for j in range(6):
            if j == o.k1c:
                a(f"""
                s_cmp_lg_u32 s62, 0
                s_cbranch_scc1 k1_e5
                s_mov_b64 exec, 1
                buffer_load_dword v{EE}, off, s[{sTB}:{sTB+3}], s4 sc1
                s_mov_b64 exec, -1
                k1_e5:
                """)
            if j == p:
                a(f"""
                s_cmp_lg_u32 s62, 0
                s_cbranch_scc1 k1_e2
                s_waitcnt vmcnt({p - o.k1c})
                v_readfirstlane_b32 s3, v{EE}
                s_cmp_lg_u32 s3, 1
                s_cbranch_scc1 k1_e3
                s_mov_b32 s{sLATE}, 1
                """)
                stamp(a, o, 6, True)
                tgather(a, o, 63, 24)
                a("k1_e3:")
                if p < 5:
                    a(f"""
                    v_mov_b32 v64, s{sLATE}
                    v_mov_b32 v65, {L_FLAG+8}
                    ds_write_b32 v65, v64
                    s_waitcnt lgkmcnt(0)
                    """)
                a("k1_e2:")
                if p < 5:
                    a(f"""
                    s_barrier
                    v_mov_b32 v65, {L_FLAG+8}
                    ds_read_b32 v65, v65
                    """)
            if j < 5:
                a(f"s_waitcnt lgkmcnt({4-j + (1 if j >= p else 0)})")
                a(f"buffer_store_dwordx4 v[{4+4*j}:{7+4*j}], v3, s[36:39], {so16[j]} offen {ST}")
        if p < 5:
            a(f"s_waitcnt lgkmcnt(0)\nv_readfirstlane_b32 s{sLATE}, v65")
        a(f"""
        s_cmp_lg_u32 s62, 0
        s_cbranch_scc1 k1_e4
        s_cmp_lg_u32 s{sLATE}, 0
        s_cbranch_scc1 k1_e4
        s_mov_b64 exec, 1
        buffer_load_dword v{EE+1}, off, s[{sTB}:{sTB+3}], s4 sc1
        s_mov_b64 exec, -1
        k1_e4:
        """)
    elif o.sig == "hold":
        h = o.k1q
        a(f"s_waitcnt vmcnt({nd})")
        stamp(a, o, 5, True)
        a(f"""
        s_barrier
        s_cmp_lg_u32 s62, 0
        s_cbranch_scc1 k1_e0
        v_mov_b32 v64, 1
        {shard(o)}
        s_mov_b64 exec, 1
        buffer_atomic_add v64, off, s[48:51], s3 sc1
        s_mov_b64 exec, -1
        s_waitcnt vmcnt(1)
        s_branch k1_e1
        k1_e0:
        s_waitcnt vmcnt(0)
        k1_e1:
        s_barrier
        """)
        stamp(a, o, 3)
        for j in range(5):
            a(f"ds_read_b128 v[{4+4*j}:{7+4*j}], v{32+j}")
        bucket4(a)
        for j in range(5):
            if j == h:
                a(f"""
                s_cmp_lg_u32 s62, 1
                s_cbranch_scc1 k1_h1
                s_cmp_lg_u32 s2, {o.ww}
                s_cbranch_scc1 k1_h2
                """)
                watch(a, o, "h")
                a(f"s_mov_b32 s10, {TB_MB}")
                bstore(a, o, "s10")
                a(f"""
                s_branch k1_h2
                k1_h1:
                s_cmp_lg_u32 s62, 0
                s_cbranch_scc1 k1_h2
                """)
                poll(a, o, 0, "k1_pl1")
                stamp(a, o, 6, True)
                tgather(a, o, 63, 24)
                a(f"k1_h2:\ns_mov_b32 s{sLATE}, 1\ns_barrier")
            a(f"s_waitcnt lgkmcnt({4-j})")
            a(f"buffer_store_dwordx4 v[{4+4*j}:{7+4*j}], v3, s[36:39], {so16[j]} offen {ST}")
    else:
        p = o.k1p
        if "ya" in o.exp:
            a(f"s_waitcnt vmcnt({nd})")
            stamp(a, o, 5, True)
        if "ea" in o.exp:
            a(f"""
            s_waitcnt vmcnt({nd})
            s_barrier
            s_cmp_lg_u32 s62, 0
            s_cbranch_scc1 k1_e0
            v_mov_b32 v64, 1
            {shard(o)}
            s_mov_b64 exec, 1
            buffer_atomic_add v64, off, s[48:51], s3 sc1
            s_mov_b64 exec, -1
            s_waitcnt vmcnt(1)
            s_branch k1_e1
            k1_e0:
            s_waitcnt vmcnt(0)
            k1_e1:
            s_barrier
            """)
            p = 9
        else:
            a(f"s_waitcnt vmcnt({2 if nd == 0 else 0})\ns_barrier")
        stamp(a, o, 3)
        for j in range(5):
            a(f"ds_read_b128 v[{4+4*j}:{7+4*j}], v{32+j}")
        a("v_mov_b32 v64, 1")
        for j in range(5):
            if j == p:
                a(f"s_waitcnt vmcnt({p})")
                if "ya" not in o.exp:
                    stamp(a, o, 5, True)
                if not (p == 0 and nd > 0):
                    a("s_barrier")
                a(f"""
                s_cmp_lg_u32 s62, 0
                s_cbranch_scc1 k1_ns
                {shard(o)}
                s_mov_b64 exec, 1
                buffer_atomic_add v64, off, s[48:51], s3 sc1
                s_mov_b64 exec, -1
                k1_ns:
                """)
            if o.k1w >= 0 and j > o.k1w:
                a(f"s_waitcnt vmcnt({o.k1w})")
            a(f"s_waitcnt lgkmcnt({4-j})")
            a(f"buffer_store_dwordx4 v[{4+4*j}:{7+4*j}], v3, s[36:39], {so16[j]} offen {ST}")
    a(f"""
    s_cmp_ge_u32 s63, 4
    s_cbranch_scc1 k1_arr
    s_mov_b32 s4, 0x05040100
    s_mov_b32 s5, 0x07060302
    s_lshl_b32 s58, s63, 11
    s_add_u32 s58, s58, {TB_WM}
    """)
    for k in range(4):
        a(f"v_perm_b32 v{84+k}, v{67+2*k}, v{66+2*k}, s4")
        a(f"v_perm_b32 v{88+k}, v{67+2*k}, v{66+2*k}, s5")
    a(f"""
    buffer_store_dwordx4 v[84:87], v61, s[44:47], s58 offen sc1
    buffer_store_dwordx4 v[88:91], v61, s[44:47], s58 offen offset:1024 sc1
    k1_arr:
    v_mov_b64 v[40:41], 0
    v_mov_b64 v[42:43], 0
    v_mov_b32 v44, {L_EF + CAP*32}
    ds_write_b128 v3, v[40:43] offset:{L_AGG}
    ds_write_b128 v3, v[40:43] offset:{L_AGG+16384}
    s_cmp_ge_u32 s62, 8
    s_cbranch_scc1 k1_z
    ds_write_b128 v3, v[40:43] offset:{L_AGG+32768}
    k1_z:
    """)
    if not o.skew:
        a(f"""
        s_mov_b64 exec, 1
        ds_write_b128 v44, v[40:43]
        ds_write_b128 v44, v[40:43] offset:16
        s_mov_b64 exec, -1
        """)


def k2(a, o):
    LD = o.k2ld
    XF = o.xld
    vL = VXO
    PW = o.pw
    a(f"""
    v_and_b32 v{vL}, 63, v0
    s_mov_b32 s{sWAVE}, s62
    s_and_b32 s3, s2, 7
    s_lshl_b32 s3, s3, 5
    s_lshr_b32 s10, s2, 3
    s_or_b32 s3, s3, s10
    s_lshl_b32 s{sB4}, s3, 2
    s_mul_i32 s{sN0}, s3, 320007
    s_add_u32 s10, s{sN0}, {320007+8160}
    s_add_u32 s{sN0}, s{sN0}, 8160
    s_lshr_b32 s{sN0}, s{sN0}, 13
    s_lshr_b32 s10, s10, 13
    s_min_u32 s10, s10, {N}
    s_sub_u32 s10, s10, s{sN0}
    s_lshl_b32 s10, s10, 9
    s_lshl_b32 s11, s{sN0}, 9
    s_mov_b32 s{sW0}, 0
    s_mov_b32 s{sONE}, 1.0
    s_mov_b32 s{sONE+1}, 1.0
    s_mov_b32 s{sXNR}, {0 if "nox" in o.exp else N*512}
    s_movk_i32 s{s512}, 512
    s_mov_b64 s[8:9], s[18:19]
    """)
    srd(a, sX, 68, None, N * 512)
    srd(a, sOUT, 70, "s11", "s10")
    srd(a, sYI, 8, WS_YI, E * 12)
    srd(a, sEF, 8, WS_EF, E * 32)
    LOCK = "lock" in o.exp
    HOLD = o.sig == "hold"
    LATE = (o.sig == "early" and o.k1q < 5) or HOLD

    def s2_arrive(x):
        stamp(a, o, 4)
        arrive(a, 128, f"k2_ns{x}")
        if o.timing:
            a("s_mov_b32 s100, s80")
        a(f"""
        s_cmp_eq_u32 s{sSIG}, 0
        s_cbranch_scc1 k2_nb0{x}
        s_waitcnt vmcnt(0)
        """)
        if o.sig == "ret" or x:
            bcast(a, o, 128, f"k2_nb0{x}")
            return
        a(f"""
        v_readfirstlane_b32 s3, v64
        s_and_b32 s3, s3, {G-1}
        s_mov_b32 s10, {mbword(o, 1)}
        s_cmp_eq_u32 s3, {G-1}
        s_cbranch_scc1 k2_bc{x}
        s_cmp_lg_u32 s3, 0
        s_cbranch_scc1 k2_nb0{x}
        """)
        watch(a, o, x)
        a(f"s_mov_b32 s10, {TB_MB}\nk2_bc{x}:")
        bstore(a, o, "s10")
        a(f"k2_nb0{x}:")
    if o.timing:
        a("s_waitcnt lgkmcnt(0)")
        for i in range(4):
            a(f"s_mov_b32 s{96+i}, s{72+2*i}")
    if HOLD:
        a(f"""
        s_cmp_lg_u32 s{sWAVE}, {PW}
        s_cbranch_scc1 k2_p1
        s_waitcnt vmcnt({5 - o.k1q})
        s_branch k2_tw
        """)
    else:
        if LATE:
            a(f"""
            s_cmp_eq_u32 s{sLATE}, 0
            s_cbranch_scc1 k2_el
            s_cmp_lg_u32 s{sWAVE}, {PW}
            s_cbranch_scc1 k2_p1
            s_waitcnt vmcnt({5 - o.k1q})
            s_branch k2_tw
            k2_el:
            """)
        if o.sig == "early":
            a(f"""
            s_cmp_lg_u32 s{sWAVE}, {PW}
            s_cbranch_scc1 k2_wa0
            s_cmp_lg_u32 s{sLATE}, 0
            s_cbranch_scc1 k2_wa4
            s_waitcnt vmcnt(1)
            s_branch k2_wa1
            k2_wa4:
            s_waitcnt vmcnt(4)
            s_branch k2_wa1
            k2_wa0:
            s_waitcnt vmcnt(0)
            k2_wa1:
            """)
        else:
            a("s_waitcnt vmcnt(0)")
        if "dbg" in o.exp:
            a("s_memrealtime s[74:75]")
        s2_arrive("")
        a(f"""
        s_cmp_lg_u32 s{sWAVE}, {PW}
        s_cbranch_scc1 k2_p1
        """)
        if o.sig == "early":
            if not LATE:
                a(f"s_cmp_lg_u32 s{sLATE}, 0\ns_cbranch_scc1 k2_tw")
            a(f"""
            s_waitcnt vmcnt(0)
            v_readfirstlane_b32 s3, v{EE+1}
            s_cmp_eq_u32 s3, 1
            s_cbranch_scc1 k2_tg
            """)
        poll(a, o, 0, "k2_pl1")

    def ph1_w0():
        a("k2_tg:")
        stamp(a, o, 6, True)
        tgather(a, o, vL, 24)
        if LATE:
            a("s_waitcnt vmcnt(0)")
        a(f"""
        k2_tw:
        {chunk_bases(o, vL)}
        v_lshlrev_b32 v19, 4, v{vL}
        v_lshlrev_b32 v18, 2, v{vL}
        v_add_u32 v19, {L_TT}, v19
        v_add_u32 v18, {L_TT}, v18
        {"" if LATE else "s_waitcnt vmcnt(0)"}
        """)
        if "pb3" not in o.exp:
            stamp(a, o, 7, True)
        for i in range(4):
            a(f"v_lshrrev_b32 v{4+i}, 16, v{24+i}")
        a(f"""
        v_add_u32 v10, v4, v5
        v_add_u32 v11, v10, v6
        v_add_u32 v16, v11, v7
        v_mov_b32 v17, v16
        """)
        fill = [f"v_and_b32 v{i}, 0xffff, v{24+i}" for i in range(4)] + [f"v_add_u32 v{12+i}, v{12+i}, v{i}" for i in range(4)]
        a(fill.pop(0) + "\n" + fill.pop(0))
        for d in DPPS:
            a(f"v_add_u32_dpp v17, v17, v17 {d}")
            if fill:
                a(fill.pop(0) + "\n" + fill.pop(0))
            else:
                a("s_nop 1")
        a(f"""
        v_sub_u32 v8, v17, v16
        ds_write_b32 v18, v17 offset:2048
        v_add_u32 v9, v8, v4
        v_add_u32 v10, v8, v10
        v_add_u32 v11, v8, v11
        """)
        for i in range(4):
            a(f"v_sub_u32 v{12+i}, v{12+i}, v{8+i}")
        a("ds_write_b128 v19, v[8:11]")
        for i in range(4):
            a(f"v_subrev_u32 v{4+i}, s{sW0}, v{8+i}")
        a("ds_write_b128 v19, v[12:15] offset:1024")
        for i in range(4):
            a(f"v_min_u32 v{4+i}, {CAP}, v{4+i}")
        for i in range(4):
            a(f"v_lshlrev_b32 v{4+i}, 2, v{4+i}")
        for i in range(4):
            a(f"ds_max_u32 v{4+i}, v{12+i} offset:{L_XS}")
        a(f"""
        k2_p1:
        s_mul_i32 s58, s{sWAVE}, {SEG}
        v_lshlrev_b32 v4, 4, v{vL}
        v_add_u32 v16, s58, v{vL}
        v_mov_b32 v19, {L_TT + 2048 + 252}
        v_add_u32 v4, {L_TT}, v4
        v_lshlrev_b32 v5, 2, v16
        v_add_u32 v17, 64, v16
        v_add_u32 v18, 128, v16
        s_add_u32 s59, s58, s{sW0}
        s_add_u32 s10, s58, {SEG}
        s_waitcnt lgkmcnt(0)
        s_barrier
        """)
        stamp(a, o, 0)
        if o.skew:
            a(f"""
            v_mov_b32 v44, {L_EF + CAP*32}
            v_mov_b64 v[40:41], 0
            v_mov_b64 v[42:43], 0
            s_mov_b64 exec, 1
            ds_write_b128 v44, v[40:43]
            ds_write_b128 v44, v[40:43] offset:16
            s_mov_b64 exec, -1
            """)
        a(f"""
        ds_read_b128 v[8:11], v4
        ds_read_b32 v19, v19
        ds_read_b128 v[12:15], v4 offset:1024
        """)
        for i in range(3):
            a(f"ds_read_b32 v{i}, v5 offset:{L_XS+256*i}")
        a("s_waitcnt lgkmcnt(5)")
        for i in range(4):
            a(f"v_cmp_ge_u32 s[{62+2*i}:{63+2*i}], s59, v{8+i}")
        a(f"""
        s_waitcnt lgkmcnt(3)
        v_readfirstlane_b32 s{sTOT}, v19
        """)
        for i in range(4):
            a(f"v_cndmask_b32 v{4+i}, 0, v{12+i}, s[{62+2*i}:{63+2*i}]")
        a(f"""
        s_sub_u32 s{sLIM}, s{sTOT}, s{sW0}
        s_min_u32 s{sLIM}, s{sLIM}, {CAP}
        s_min_u32 s10, s10, s{sLIM}
        v_max3_u32 v4, v4, v5, v6
        v_max_u32 v3, v4, v7
        v_cmp_gt_u32 s[{sM}:{sM+1}], s10, v16
        v_cmp_gt_u32 s[{sM+2}:{sM+3}], s10, v17
        v_cmp_gt_u32 s[{sM+4}:{sM+5}], s10, v18
        s_waitcnt lgkmcnt(0)
        """)

    def ph1_all():
        a("k2_tg:")
        stamp(a, o, 6, True)
        tgather(a, o, vL, 24)
        a(f"""
        s_waitcnt vmcnt(0)
        k2_tw:
        v_lshlrev_b32 v1, 2, v{vL}
        v_add_u32 v1, {L_TT}, v1
        """)
        for i in range(4):
            a(f"ds_write_b32 v1, v{24+i} offset:{256*i}")
        if "pb3" not in o.exp:
            stamp(a, o, 7, True)
        a(f"""
        k2_p1:
        v_lshlrev_b32 v1, 4, v{vL}
        v_add_u32 v1, {L_TT}, v1
        s_mul_i32 s58, s{sWAVE}, {SEG}
        s_add_u32 s59, s58, s{sW0}
        s_waitcnt lgkmcnt(0)
        s_barrier
        """)
        stamp(a, o, 0)
        a(f"""
        ds_read_b128 v[0:3], v1
        v_mul_u32_u24 v12, {4*CH}, v{vL}
        v_add_u32 v13, {CH}, v12
        v_add_u32 v14, {2*CH}, v12
        v_add_u32 v15, {3*CH}, v12
        s_waitcnt lgkmcnt(0)
        """)
        for i in range(4):
            a(f"v_lshrrev_b32 v{4+i}, 16, v{i}")
        for i in range(4):
            a(f"v_and_b32 v{i}, 0xffff, v{i}")
        a(f"""
        v_add_u32 v10, v4, v5
        v_add_u32 v11, v10, v6
        v_add_u32 v16, v11, v7
        v_mov_b32 v17, v16
        """)
        for i in range(4):
            a(f"v_add_u32 v{12+i}, v{12+i}, v{i}")
        scan(a, "v_add_u32", [17])
        a(f"""
        v_sub_u32 v8, v17, v16
        v_readlane_b32 s{sTOT}, v17, 63
        v_add_u32 v9, v8, v4
        v_add_u32 v10, v8, v10
        v_add_u32 v11, v8, v11
        """)
        for i in range(4):
            a(f"v_sub_u32 v{12+i}, v{12+i}, v{8+i}")
        for i in range(4):
            a(f"v_cmp_ge_u32 s[{62+2*i}:{63+2*i}], s59, v{8+i}")
        for i in range(4):
            a(f"v_subrev_u32 v{8+i}, s{sW0}, v{8+i}")
        for i in range(4):
            a(f"v_min_u32 v{8+i}, {CAP}, v{8+i}")
        for i in range(4):
            a(f"v_lshlrev_b32 v{8+i}, 2, v{8+i}")
        for i in range(4):
            a(f"ds_max_u32 v{8+i}, v{12+i} offset:{L_XS}")
        a(f"""
        v_add_u32 v16, s58, v{vL}
        v_lshlrev_b32 v17, 2, v16
        """)
        for i in range(3):
            a(f"ds_read_b32 v{i}, v17 offset:{L_XS+256*i}")
        for i in range(4):
            a(f"v_cndmask_b32 v{4+i}, 0, v{12+i}, s[{62+2*i}:{63+2*i}]")
        a(f"""
        v_max3_u32 v4, v4, v5, v6
        v_max_u32 v3, v4, v7
        s_sub_u32 s{sLIM}, s{sTOT}, s{sW0}
        s_min_u32 s{sLIM}, s{sLIM}, {CAP}
        s_add_u32 s10, s58, {SEG}
        s_min_u32 s10, s10, s{sLIM}
        v_add_u32 v17, 64, v16
        v_add_u32 v18, 128, v16
        v_cmp_gt_u32 s[{sM}:{sM+1}], s10, v16
        v_cmp_gt_u32 s[{sM+2}:{sM+3}], s10, v17
        v_cmp_gt_u32 s[{sM+4}:{sM+5}], s10, v18
        s_waitcnt lgkmcnt(0)
        """)

    if "w0" in o.exp:
        ph1_w0()
    else:
        ph1_all()
    scan(a, "v_max_u32", [3, 0, 1, 2])
    a(f"""
    v_readlane_b32 s62, v3, 63
    v_readlane_b32 s63, v0, 63
    v_readlane_b32 s64, v1, 63
    v_lshrrev_b32 v7, 1, v{vL}
    v_lshlrev_b32 v7, 2, v7
    v_add_u32 v8, 128, v7
    s_max_u32 s63, s63, s62
    s_max_u32 s64, s64, s63
    v_max_u32 v0, s62, v0
    v_max_u32 v1, s63, v1
    v_max_u32 v2, s64, v2
    v_mov_b32 v3, 0xf00000
    """)
    for i in range(3):
        a(f"v_add3_u32 v{i}, v{i}, v{16+i}, s{sW0}")
    for i in range(3):
        a(f"v_cndmask_b32 v{i}, v3, v{i}, s[{sM+2*i}:{sM+2*i+1}]")
    for i in range(3):
        a(f"v_mul_u32_u24 v{4+i}, 12, v{i}")
    for i in range(3):
        a(f"buffer_load_dwordx3 v[{20+4*i}:{22+4*i}], v{4+i}, s[{sYI}:{sYI+3}], 0 offen {LD}")
    stamp(a, o, 1)
    for j in range(6):
        a(f"ds_bpermute_b32 v{32+j}, v{7+j%2}, v{j//2}")
    a(f"""
    v_and_b32 v9, 1, v{vL}
    v_lshlrev_b32 v9, 4, v9
    s_lshl_b32 s3, s58, 5
    s_add_u32 m0, s3, {L_EF}
    v_mov_b32 v62, 1
    s_waitcnt lgkmcnt(0)
    """)
    for j in range(6):
        a(f"v_lshl_or_b32 v{32+j}, v{32+j}, 5, v9")

    def dma(j):
        if j == 5:
            a(f"s_mov_b64 exec, {hex((1 << (2*(SEG-160))) - 1)}")
        a(f"buffer_load_dwordx4 v{32+j}, s[{sEF}:{sEF+3}], 0 offen {o.efld} lds")
        a("s_add_u32 m0, m0, 1024" if j < 5 else "s_mov_b64 exec, -1")
        a("s_nop 0")
    if LATE:
        a(f"""
        s_cmp_eq_u32 s{sLATE}, 0
        s_cbranch_scc1 k2_nb0l
        s_waitcnt vmcnt(3)
        """)
        srd(a, 48, sDP, None, 256)
        s2_arrive("l")
    a(f"s_waitcnt vmcnt(0)")
    for i in range(3):
        a(f"v_lshrrev_b32 v{40+i}, 24, v{22+4*i}")
    for i in range(3):
        a(f"v_bfe_u32 v{56+i}, v{22+4*i}, 16, 8")
    for i in range(3):
        a(f"v_lshlrev_b32 v{44+i}, v{40+i}, v62")
    for i in range(3):
        a(f"""
        s_mov_b64 exec, s[{sM+2*i}:{sM+2*i+1}]
        s_cbranch_execz k2_h
        ds_add_rtn_u32 v{59+i}, v{56+i}, v{44+i} offset:{L_CNT}
        """)
    a(f"""
    k2_h:
    s_mov_b64 exec, -1
    s_mov_b32 s3, 0x05040100
    """)
    for i in range(3):
        a(f"v_perm_b32 v{22+4*i}, v{16+i}, v{22+4*i}, s3")
    a(f"""
    v_lshlrev_b32 v0, 2, v{vL}
    s_mov_b32 s{sCG}, {L_CG}
    """)
    stamp(a, o, 2)
    a(f"""
    s_cmp_lg_u32 s{sWAVE}, {PW}
    s_cbranch_scc1 k2_np2
    s_cmp_lg_u32 s{sW0}, 0
    s_cbranch_scc1 k2_np2
    """)
    poll(a, o, 128, "k2_pl2")
    a("k2_np2:\ns_waitcnt lgkmcnt(0)\ns_barrier")
    stamp(a, o, 3)
    ka, kb, kc = [int(x) for x in o.k2n.split(",")]
    for j in range(ka):
        dma(j)
    a(f"""
    ds_read_b32 v64, v0 offset:{L_CNT}
    s_mov_b32 s62, {XHALF}
    """)
    for i in range(3):
        a(f"v_bfe_u32 v{59+i}, v{59+i}, v{40+i}, 16")
    a(f"""
    v_and_b32 v10, 31, v{vL}
    v_lshrrev_b32 v11, 5, v{vL}
    s_waitcnt lgkmcnt(0)
    v_add_u32 v65, 0x10001, v64
    v_and_b32 v65, 0xfffefffe, v65
    v_mov_b32 v66, v65
    v_and_b32 v68, 0xffff, v64
    v_and_b32 v70, 0xffff, v65
    """)
    scan(a, "v_add_u32", [66])
    a(f"""
    v_sub_u32 v67, v66, v65
    v_readlane_b32 s{sP}, v66, 63
    v_lshrrev_b32 v69, 16, v64
    v_lshrrev_b32 v71, 16, v65
    {"s_nop 0" if LOCK else "v_cmp_eq_u32 vcc, 0, v68"}
    s_and_b32 s4, s{sP}, 0xffff
    s_lshr_b32 s5, s{sP}, 16
    s_add_u32 s4, s4, 7
    s_add_u32 s5, s5, 7
    s_lshr_b32 s4, s4, 3
    s_lshr_b32 s5, s5, 3
    {"v_mov_b32 v12, 0" if LOCK else "v_cndmask_b32 v12, v62, 0, vcc" if "chain" in o.exp else "v_cndmask_b32 v12, 0, v62, vcc"}
    s_lshl_b32 s3, s4, 19
    v_add_u32 v67, s3, v67
    ds_write_b32 v0, v12 offset:{L_FLAG}
    """)
    for i in range(3):
        a(f"ds_bpermute_b32 v{i}, v{56+i}, v67")
    a(f"""
    s_lshr_b32 s6, s4, 4
    s_lshr_b32 s7, s5, 4
    """)
    if not LOCK:
        a(f"""
        s_lshl_b32 s10, s6, 3
        s_lshl_b32 s11, s7, 3
        v_cmp_lt_u32 vcc, s10, v70
        v_cmp_lt_u32 s[68:69], s11, v71
        """)
    a(f"""
    s_and_b32 s3, s4, 15
    s_mul_i32 s63, s6, s{sWAVE}
    s_min_u32 s10, s3, s{sWAVE}
    s_add_u32 s63, s63, s10
    s_cmp_lt_u32 s{sWAVE}, s3
    s_addc_u32 s64, s6, 0
    s_and_b32 s3, s5, 15
    s_add_u32 s3, s3, s{sWAVE}
    s_mul_i32 s65, s7, s{sWAVE}
    s_sub_u32 s10, s3, 16
    s_max_i32 s10, s10, 0
    s_add_u32 s65, s65, s10
    s_cmp_ge_u32 s3, 16
    s_addc_u32 s66, s7, 0
    """)
    if not LOCK:
        a(f"""
        s_or_b64 vcc, vcc, s[68:69]
        s_cmp_lg_u64 vcc, 0
        s_cselect_b32 s{sSLOW}, 1, 0
        """)
    a(f"""
    s_add_u32 s{sNG}, s64, s66
    s_add_u32 s3, s4, s65
    s_add_u32 s10, s63, s64
    s_sub_u32 s10, s10, s4
    s_lshl_b32 s10, s10, 3
    s_lshl_b32 s11, s65, 3
    s_bfm_b64 s[68:69], s64, 0
    s_bfm_b64 vcc, s66, 32
    s_mov_b64 exec, 0xffffffff
    v_add_u32 v12, s63, v10
    v_mov_b32 v13, s11
    s_not_b64 exec, exec
    v_add_u32 v12, s3, v10
    v_mov_b32 v13, s10
    s_mov_b64 exec, -1
    v_lshlrev_b32 v12, 1, v12
    s_or_b64 exec, vcc, s[68:69]
    s_cbranch_execz k2_nosh
    ds_write_b16 v12, v13 offset:{L_SH}
    k2_nosh:
    s_mov_b64 exec, -1
    s_waitcnt lgkmcnt(0)
    """)
    for i in range(3):
        a(f"v_bfe_u32 v{i}, v{i}, v{40+i}, 16")
    for i in range(3):
        a(f"v_add_u32 v{i}, v{i}, v{59+i}")
    a(f"""
    s_mov_b64 s[6:7], 0
    s_cmp_lt_u32 s{sWAVE}, 14
    s_cbranch_scc1 k2_nopad0
    s_sub_u32 s3, s{sWAVE}, 14
    s_mul_i32 s10, s3, s5
    s_add_u32 s10, s10, s4
    s_lshl_b32 s10, s10, 3
    s_lshl_b32 s3, s3, 4
    v_bfe_u32 v12, v64, s3, 16
    v_bfe_u32 v13, v67, s3, 16
    v_subrev_u32 v14, 40, v{vL}
    v_cmp_gt_u32 vcc, 8, v14
    v_max_i32 v14, 0, v14
    v_add3_u32 v3, v12, v13, v14
    v_and_b32 v12, 1, v12
    v_cmp_gt_u32 s[68:69], s10, v3
    v_cmp_eq_u32 s[6:7], 1, v12
    s_and_b64 vcc, vcc, s[68:69]
    s_or_b64 s[6:7], s[6:7], vcc
    k2_nopad0:
    """)
    for i in range(4):
        a(f"v_lshrrev_b32 v{4+i}, 2, v{i}")
    for i in range(4):
        a(f"v_and_b32 v{4+i}, 0x7fe, v{4+i}")
    a("s_barrier")
    for i in range(4):
        a(f"ds_read_i16 v{4+i}, v{4+i} offset:{L_SH}")
    for j in range(ka, ka + kb):
        dma(j)
    a(f"""
    v_and_b32 v70, 0xffff, v66
    v_lshrrev_b32 v71, 16, v66
    s_lshl_b32 s10, s63, 3
    s_lshl_b32 s11, s65, 3
    v_cmp_lt_u32 s[{sNM}:{sNM+1}], s10, v70
    v_cmp_lt_u32 vcc, 0, v68
    v_cmp_lt_u32 s[{sNB}:{sNB+1}], s11, v71
    v_cmp_lt_u32 s[68:69], 0, v69
    s_mov_b64 s[{sBM}:{sBM+1}], 0
    s_mov_b32 s{sBM+2}, 0
    s_mov_b32 s{sEA}, 0
    s_and_b64 s[{sNM}:{sNM+1}], s[{sNM}:{sNM+1}], vcc
    s_and_b64 s[{sNB}:{sNB+1}], s[{sNB}:{sNB+1}], s[68:69]
    s_mov_b64 s[68:69], s[{sNM}:{sNM+1}]
    s_lshl_b32 s67, s63, 2
    s_add_u32 s67, s67, 1
    s_lshl_b32 s11, s64, 2
    """)

    def bm(tag, vend, cnt):
        a(f"""
        k2_bl{tag}:
        s_ff1_i32_b64 s3, s[68:69]
        s_cmp_lt_i32 s3, 0
        s_cbranch_scc1 k2_bld{tag}
        v_readlane_b32 s10, v{vend}, s3
        s_bitset0_b64 s[68:69], s3
        s_lshr_b32 s10, s10, 1
        s_sub_u32 s10, s10, s67
        s_cmp_ge_u32 s10, s11
        s_cbranch_scc1 k2_bld{tag}
        {f"s_add_u32 s{sEA}, s{sEA}, 1" if cnt else ""}
        s_cmp_ge_u32 s10, 64
        s_cbranch_scc1 k2_bh{tag}
        s_bitset1_b64 s[{sBM}:{sBM+1}], s10
        s_branch k2_bl{tag}
        k2_bh{tag}:
        s_bitset1_b32 s{sBM+2}, s10
        s_branch k2_bl{tag}
        k2_bld{tag}:
        s_sub_u32 s10, s11, 1
        s_cmp_ge_u32 s10, 64
        s_cbranch_scc1 k2_bh2{tag}
        s_bitcmp0_b64 s[{sBM}:{sBM+1}], s10
        s_branch k2_bdone{tag}
        k2_bh2{tag}:
        s_bitcmp0_b32 s{sBM+2}, s10
        k2_bdone{tag}:
        """)
    bm("a", 70, True)
    a(f"""
    s_cselect_b32 s{sOPA}, s3, -1
    s_cmp_eq_u32 s64, 0
    s_cselect_b32 s{sOPA}, -1, s{sOPA}
    s_cmp_ge_i32 s{sOPA}, 0
    {"" if LOCK else f"s_cselect_b32 s{sPK}, 1, 0"}
    s_cbranch_scc0 k2_nopk
    {f"s_add_u32 s{sEA}, s{sEA}, 1" if LOCK else ""}
    s_cmp_ge_u32 s10, 64
    s_cbranch_scc1 k2_pkh
    s_bitset1_b64 s[{sBM}:{sBM+1}], s10
    s_branch k2_nopk
    k2_pkh:
    s_bitset1_b32 s{sBM+2}, s10
    k2_nopk:
    """)
    if "chain" in o.exp:
        a(f"""
        s_cmp_eq_u32 s{sSLOW}, 0
        s_cselect_b32 s3, s{sPK}, 0
        s_cmp_eq_u32 s3, 0
        s_cbranch_scc1 k2_noreg
        s_lshl_b32 s3, s{sOPA}, 2
        v_mov_b32 v12, s3
        s_mov_b64 exec, 1
        ds_add_u32 v12, v62 offset:{L_FLAG}
        s_mov_b64 exec, -1
        k2_noreg:
        """)
    a(f"""
    s_mov_b64 s[68:69], s[{sNB}:{sNB+1}]
    s_sub_u32 s67, s65, s64
    s_lshl_b32 s67, s67, 2
    s_add_u32 s67, s67, 1
    s_lshl_b32 s11, s{sNG}, 2
    """)
    bm("b", 71, False)
    a(f"""
    s_cselect_b32 s{sOPEN}, s66, 0
    s_add_u32 s65, s65, s63
    """)
    for j in range(ka + kb, ka + kb + kc):
        dma(j)
    a("s_waitcnt lgkmcnt(0)")
    for i in range(4):
        a(f"v_add_u32 v{i}, v{i}, v{4+i}")
    for i in range(4):
        a(f"""
        v_and_b32 v{4+i}, 1, v{i}
        v_lshrrev_b32 v{12+i}, 1, v{i}
        v_lshlrev_b32 v{12+i}, 2, v{12+i}
        v_mad_u32_u24 v{4+i}, v{4+i}, s62, v{12+i}
        v_lshlrev_b32 v{i}, 3, v{i}
        """)
    for i in range(3):
        a(f"""
        s_mov_b64 exec, s[{sM+2*i}:{sM+2*i+1}]
        s_cbranch_execz k2_w0
        ds_write_b32 v{4+i}, v{22+4*i} offset:{L_XS}
        ds_write_b64 v{i}, v[{20+4*i}:{21+4*i}] offset:{L_YS}
        """)
    a(f"""
    k2_w0:
    s_mov_b64 exec, s[6:7]
    s_cbranch_execz k2_nopad
    v_mov_b32 v13, {hex(0x7fff | CAP << 16)}
    v_mov_b64 v[14:15], 0
    ds_write_b32 v7, v13 offset:{L_XS}
    ds_write_b64 v3, v[14:15] offset:{L_YS}
    k2_nopad:
    s_mov_b64 exec, -1
    """)
    for j in range(ka + kb + kc, 6):
        dma(j)
    a(f"""
    s_lshl_b32 s3, s65, 4
    s_add_u32 s3, s3, {L_XS}
    v_mov_b32 v12, s3
    v_mad_u32_u24 v{VX}, v11, s62, v12
    v_lshrrev_b32 v13, 3, v10
    v_lshl_add_u32 v12, v13, 4, v12
    v_and_b32 v13, 3, v10
    v_lshl_add_u32 v12, v13, 2, v12
    v_bfe_u32 v13, v10, 2, 1
    v_mad_u32_u24 v{VEF}, v13, s62, v12
    s_lshl_b32 s3, s65, 6
    s_add_u32 s3, s3, {L_YS}
    v_lshlrev_b32 v12, 3, v11
    v_lshl_add_u32 v12, v10, 4, v12
    v_add_u32 v{VY}, s3, v12
    v_lshlrev_b32 v12, 4, v11
    v_add_u32 v{VHB}, {L_EF}, v12
    v_lshlrev_b32 v{VJ4}, 4, v{vL}
    v_lshlrev_b32 v{VXO}, 4, v10
    """)
    for k in range(4):
        a(f"v_mov_b64 {v(ACC+2*k,2)}, 0")
    a(f"""
    v_and_or_b32 v{ZE+8}, v{VXO}, 48, s{sCG}
    s_mov_b32 s{sREM}, s{sNG}
    s_lshr_b32 s{sTH}, s{sNG}, 1
    s_mov_b32 s{sPR}, 3
    {"s_setprio 3" if "prio" in o.exp else ""}
    s_waitcnt lgkmcnt(0)
    s_barrier
    """)
    stamp(a, o, 5, "pc")
    XS = f"s[{sX}:{sX+3}]"

    def xadr(r):
        a(f"v_mad_u32_u16 v{r}, v{r}, s{s512}, v{VXO}")

    def efnext(off):
        a(f"""
        v_mad_u32_u16 v{EE}, v{VRI}, 32, v{VHB} op_sel:[1,0,0,0]
        ds_read_b128 {v(EF,4)}, v{EE}
        ds_read_b32 v{VRI}, v{VEF} offset:{off}
        """)
    a(f"""
    ds_read_b128 {v(XI,4)}, v{VX}
    ds_read_b128 {v(XI+4,4)}, v{VX} offset:16
    ds_read_b32 v{VRI}, v{VEF}
    ds_read_b64 {v(YY,2)}, v{VY}
    ds_read_b128 {v(ZE,4)}, v{ZE+8}
    ds_read_b128 {v(ZE+4,4)}, v{ZE+8} offset:64
    s_cmp_gt_u32 s{sREM}, 0
    s_cselect_b32 s{sX+2}, s{sXNR}, 0
    s_waitcnt lgkmcnt(5)
    """)
    def x03(k0, k1):
        for k in range(k0, k1):
            xadr(XI + k)
            a(f"buffer_load_dwordx4 {v(X+4*k,4)}, v{XI+k}, {XS}, 0 offen {XF}")
        if k1 == 4:
            a(f"""
            s_cmp_gt_u32 s{sREM}, 1
            s_cselect_b32 s{sX+2}, s{sXNR}, 0
            """)
    x03(0, min(o.nx, 4))
    a("s_waitcnt lgkmcnt(4)")

    def x47():
        for k in range(4, 8):
            xadr(XI + k)
            a(f"buffer_load_dwordx4 {v(X+4*k,4)}, v{XI+k}, {XS}, 0 offen {XF}")
        a(f"ds_read_b128 {v(XI,4)}, v{VX} offset:32")
    if o.nx == 8:
        x47()
    stamp(a, o, 6, "pc")
    a(f"s_waitcnt vmcnt({o.nx})")
    stamp(a, o, 7, "pc")
    a("s_barrier")
    stamp(a, o, 4)
    a(f"""
    s_cmp_eq_u32 s{sNG}, 0
    s_cbranch_scc1 k2_done
    s_waitcnt lgkmcnt(0)
    """)
    efnext(64)
    if o.nx < 4:
        x03(o.nx, 4)
    if o.nx <= 4:
        x47()

    def group_start(g):
        b = XI + 4 * (g % 2)
        nb = XI + 4 * ((g + 1) % 2)
        if "noadd" in o.exp:
            a("s_nop 3")
        else:
            for k in range(4):
                xadr(b + k)
        a(f"ds_read_b128 {v(nb,4)}, v{VX} offset:{16*(g+3)}")
        a(f"s_cmp_gt_u32 s{sREM}, 2\ns_cselect_b32 s{sX+2}, s{sXNR}, 0")

    def mf(d, ar, br, c):
        a(f"v_mfma_f32_32x32x16_bf16 {v(d,16)}, {v(ar,4)}, {v(br,4)}, {c}")

    def rprol():
        a(f"""
        v_exp_f32 v{EE}, v{ZE}
        v_exp_f32 v{EE+1}, v{ZE+1}
        v_exp_f32 v{EE+2}, v{ZO}
        v_exp_f32 v{EE+3}, v{ZO+1}
        v_pk_add_f32 {v(EE,2)}, {v(EE,2)}, s[{sONE}:{sONE+1}]
        v_pk_add_f32 {v(EE+2,2)}, {v(EE+2,2)}, s[{sONE}:{sONE+1}]
        v_rcp_f32 v{EE}, v{EE}
        v_rcp_f32 v{EE+1}, v{EE+1}
        v_rcp_f32 v{EE+2}, v{EE+2}
        v_rcp_f32 v{EE+3}, v{EE+3}
        v_pk_mul_f32 {v(ZE,2)}, {v(ZE,2)}, {v(EE,2)}
        v_pk_mul_f32 {v(ZO,2)}, {v(ZO,2)}, {v(EE+2,2)}
        """)

    a("k2_blk:")
    for t in range(32):
        g, r = t // 4, t % 16
        if t == 0:
            a("s_waitcnt lgkmcnt(0)")
            for i in range(4):
                a(f"v_mfma_f32_4x4x4_16b_bf16 {v(ZO+4*i,4)}, {v(YY,2)}, {v(ZE+2*i,2)}, 0")
            a(f"ds_read_b64 {v(YY,2)}, v{VY} offset:512")
            a(f"v_add_u32 v{VY}, 512, v{VY}")
            mf(ZE, EF, W, "0")
            for m in range(4):
                a(f"v_cvt_pk_bf16_f32 v{TA+2*m}, v{ZO+m}, v{ZO+4+m}")
            for m in range(4):
                a(f"v_cvt_pk_bf16_f32 v{TA+2*m+1}, v{ZO+8+m}, v{ZO+12+m}")
            mf(ZO, EF, W + 4, "0")
            efnext(128)
            group_start(g)
            a("s_nop 3")
            rprol()
        elif t == 16:
            a("s_waitcnt lgkmcnt(0)")
            mf(ZE, EF, W, "0")
            mf(ZO, EF, W + 4, "0")
            efnext(192)
            a(f"v_add_u32 v{VEF}, 128, v{VEF}")
            group_start(g)
            a("s_nop 2")
            rprol()
        elif t % 4 == 0:
            a("s_waitcnt lgkmcnt(0)")
            group_start(g)
            if t == 28:
                a(f"""
                v_and_or_b32 v{ZE+8}, v{VXO}, 48, s{sCG}
                ds_read_b128 {v(ZE,4)}, v{ZE+8}
                ds_read_b128 {v(ZE+4,4)}, v{ZE+8} offset:64
                """)
        k = t % 8
        xr = X + 4 * k
        ar = TA + 2 * (t % 4)
        p0 = r & ~1
        last = p0 == 14
        tr = "v_exp_f32" if r % 2 == 0 else "v_rcp_f32"

        def trn(e, z):
            if last or "notrans" in o.exp:
                return
            src = z if r % 2 == 0 else e
            a(f"{tr} v{e}, v{src}")

        def mid(e, z):
            if last:
                return
            if "v2mid" in o.exp:
                for u in range(2):
                    a(f"v_add_f32 v{e+u}, 1.0, v{e+u}" if r % 2 == 0 else f"v_mul_f32 v{z+u}, v{z+u}, v{e+u}")
            elif r % 2 == 0:
                a(f"v_pk_add_f32 {v(e,2)}, {v(e,2)}, s[{sONE}:{sONE+1}]")
            else:
                a(f"v_pk_mul_f32 {v(z,2)}, {v(z,2)}, {v(e,2)}")

        sel = "op_sel_hi:[0,1,1]" if r % 2 == 0 else "op_sel:[1,0,0] op_sel_hi:[1,1,1]"

        def fma(acc, z, tp):
            if "nofma" in o.exp:
                return
            if "v2fma" in o.exp:
                for u in range(2):
                    a(f"v_fmac_f32 v{acc+u}, v{z+r%2}, v{tp+u}")
                return
            a(f"v_pk_fma_f32 {v(acc,2)}, {v(z,2)}, {v(tp,2)}, {v(acc,2)} {sel}")

        cb = "" if "nocbsz" in o.exp else f"cbsz:3 abid:{t//4}"
        a("s_waitcnt vmcnt(7)")
        if "nomf" not in o.exp:
            a(f"v_mfma_f32_4x4x4_16b_bf16 {v(TP,4)}, {v(ar,2)}, {v(xr,2)}, 0 {cb}")
        trn(EE, ZE + p0 + 2)
        trn(EE + 1, ZE + p0 + 3)
        if "nomf" not in o.exp:
            a(f"v_mfma_f32_4x4x4_16b_bf16 {v(TP+4,4)}, {v(ar,2)}, {v(xr+2,2)}, 0 {cb}")
        if "noload" not in o.exp:
            a(f"buffer_load_dwordx4 {v(xr,4)}, v{XI+4*(g%2)+t%4}, {XS}, 0 offen {XF}")
        trn(EE + 2, ZO + p0 + 2)
        trn(EE + 3, ZO + p0 + 3)
        mid(EE, ZE + p0 + 2)
        if last:
            a("s_nop 2")
        fma(ACC, ZE + p0, TP)
        fma(ACC + 2, ZE + p0, TP + 2)
        mid(EE + 2, ZO + p0 + 2)
        fma(ACC + 4, ZO + p0, TP + 4)
        fma(ACC + 6, ZO + p0, TP + 6)
        if "nobr" in o.exp:
            a(f"k2_bk{t}:")
        else:
            a(f"s_bitcmp1_b32 s{sBM}, {t}\ns_cbranch_scc1 k2_fl{t}\nk2_bk{t}:")
        if t % 4 == 3:
            if "prio" in o.exp:
                a(f"s_sub_u32 s{sREM}, s{sREM}, 1\ns_cmp_eq_u32 s{sREM}, s{sTH}\ns_cbranch_scc1 k2_th{g}\nk2_tb{g}:")
            else:
                a(f"s_sub_u32 s{sREM}, s{sREM}, 1\ns_cmp_eq_u32 s{sREM}, 0\ns_cbranch_scc1 k2_done")
    a(f"""
    s_mov_b32 s{sBM}, s{sBM+1}
    s_mov_b32 s{sBM+1}, s{sBM+2}
    v_add_u32 v{VX}, 128, v{VX}
    s_branch k2_blk
    """)
    if "prio" in o.exp:
        for g in range(8):
            a(f"k2_th{g}:\ns_cmp_eq_u32 s{sTH}, 0\ns_cbranch_scc1 k2_done\ns_call_b64 s[{sRET}:{sRET+1}], k2_thr\ns_branch k2_tb{g}")
        a(f"""
        k2_thr:
        s_lshr_b32 s{sTH}, s{sTH}, 1
        s_sub_u32 s{sPR}, s{sPR}, 1
        s_cmp_eq_u32 s{sPR}, 2
        s_cbranch_scc1 k2_p2
        s_cmp_eq_u32 s{sPR}, 1
        s_cbranch_scc1 k2_p1x
        s_mov_b32 s{sTH}, 0
        s_setprio 0
        s_setpc_b64 s[{sRET}:{sRET+1}]
        k2_p2:
        s_setprio 2
        s_setpc_b64 s[{sRET}:{sRET+1}]
        k2_p1x:
        s_setprio 1
        s_setpc_b64 s[{sRET}:{sRET+1}]
        """)
    for t in range(32):
        a(f"k2_fl{t}:\ns_call_b64 s[{sRET}:{sRET+1}], k2_flush\ns_branch k2_bk{t}")
    def node_addr(sn):
        a(f"""
        s_lshl_b32 s58, s{sn}, 10
        s_and_b32 s59, s{sn}, 7
        s_lshl_b32 s59, s59, 4
        s_or_b32 s58, s58, s59
        s_lshl_b32 s59, s{sn}, 2
        v_xor_b32 v{TP}, s58, v{VJ4}
        """)

    def reduce_acc(dst):
        for q in range(4):
            a(f"v_permlane32_swap_b32 v{ACC+q}, v{ACC+4+q}")
        a(f"""
        v_pk_add_f32 {v(dst,2)}, {v(ACC,2)}, {v(ACC+4,2)}
        v_pk_add_f32 {v(dst+2,2)}, {v(ACC+2,2)}, {v(ACC+6,2)}
        v_mov_b64 {v(ACC+4,2)}, 0
        v_mov_b64 {v(ACC+6,2)}, 0
        """)

    def rmw(src):
        a(f"""
        v_pk_add_f32 {v(TP+4,2)}, {v(TP+4,2)}, {v(src,2)}
        v_pk_add_f32 {v(TP+6,2)}, {v(TP+6,2)}, {v(src+2,2)}
        v_mov_b64 {v(src,2)}, 0
        v_mov_b64 {v(src+2,2)}, 0
        ds_write_b128 v{TP}, {v(TP+4,4)} offset:{L_AGG}
        """)
    RET = f"s_setpc_b64 s[{sRET}:{sRET+1}]"
    CHAIN = "chain" in o.exp
    SPIN = ""
    if o.spin:
        SPIN = f"""s_add_u32 s{sSPIN}, s{sSPIN}, 1
        s_cmp_lt_u32 s{sSPIN}, {o.spin}
        s_cbranch_scc1 k2_flw
        s_waitcnt lgkmcnt(0)
        v_mov_b32 v{TP+2}, {"s4" if CHAIN else 1}"""
    DONE = f"""
    s_mov_b64 exec, 1
    ds_sub_u32 v{TP+1}, v{TP+3} offset:{L_FLAG}
    s_mov_b64 exec, -1
    """
    def lock_flush():
        TAKE = f"""
        s_mov_b64 exec, 1
        ds_wrxchg_rtn_b32 v{TP+2}, v{TP+1}, v{VX} offset:{L_FLAG}
        s_mov_b64 exec, -1
        ds_read_b128 {v(TP+4,4)}, v{TP} offset:{L_AGG}
        """
        a(f"""
        k2_open:
        s_cmp_eq_u32 s{sOPEN}, 0
        s_cbranch_scc1 k2_openret
        s_cmp_eq_u64 s[{sNB}:{sNB+1}], 0
        s_cbranch_scc0 k2_flb
        k2_openret:
        {RET}
        k2_flush:
        s_cmp_eq_u32 s{sEA}, 0
        s_cbranch_scc1 k2_flb
        s_sub_u32 s{sEA}, s{sEA}, 1
        s_ff1_i32_b64 s{sCUR}, s[{sNM}:{sNM+1}]
        s_bitset0_b64 s[{sNM}:{sNM+1}], s{sCUR}
        s_branch k2_flb3
        k2_flb:
        s_ff1_i32_b64 s{sCUR}, s[{sNB}:{sNB+1}]
        s_bitset0_b64 s[{sNB}:{sNB+1}], s{sCUR}
        k2_flb3:
        """)
        node_addr(sCUR)
        a(f"v_mov_b32 v{TP+1}, s59")
        a(TAKE)
        reduce_acc(ACC)
        a(f"""
        k2_flw:
        s_waitcnt lgkmcnt(0)
        v_readfirstlane_b32 s3, v{TP+2}
        s_cmp_lg_u32 s3, 0
        s_cbranch_scc1 k2_flr
        """)
        rmw(ACC)
        a(f"""
        s_mov_b64 exec, 1
        ds_write_b32 v{TP+1}, v{ACC} offset:{L_FLAG}
        s_mov_b64 exec, -1
        {RET}
        k2_flr:
        """)
        a(TAKE)
        if o.spin:
            a(f"""
            s_add_u32 s{sSPIN}, s{sSPIN}, 1
            s_cmp_lt_u32 s{sSPIN}, {o.spin}
            s_cbranch_scc1 k2_flw
            s_waitcnt lgkmcnt(0)
            v_mov_b32 v{TP+2}, 0
            s_nop 0
            """)
        a("s_branch k2_flw")
    if LOCK:
        lock_flush()
        a0 = a
        a = A()
    a(f"""
    k2_flush:
    s_cmp_eq_u32 s{sEA}, 0
    s_cbranch_scc1 k2_flb
    s_sub_u32 s{sEA}, s{sEA}, 1
    s_ff1_i32_b64 s{sCUR}, s[{sNM}:{sNM+1}]
    s_bitset0_b64 s[{sNM}:{sNM+1}], s{sCUR}
    """)
    node_addr(sCUR)
    a(f"ds_read_b128 {v(TP+4,4)}, v{TP} offset:{L_AGG}")
    reduce_acc(ACC)
    if CHAIN:
        a(f"v_mov_b32 v{TP+3}, 1")
    a(f"v_mov_b32 v{TP+1}, s59\ns_waitcnt lgkmcnt(0)")
    rmw(ACC)
    if CHAIN:
        a(DONE)
    else:
        a(f"""
        s_mov_b64 exec, 1
        ds_write_b32 v{TP+1}, v{VX} offset:{L_FLAG}
        s_mov_b64 exec, -1
        """)
    a(f"""
    {RET}
    k2_flb:
    s_cmp_eq_u32 s{sPK}, 0
    s_cbranch_scc1 k2_flb2
    s_mov_b32 s{sPK}, 0
    """)
    if CHAIN:
        a(f"""
        s_mov_b32 s{sCUR}, s{sOPA}
        s_mov_b32 s4, 1
        s_cmp_eq_u32 s{sSLOW}, 0
        s_cbranch_scc1 k2_flb3
        """)
    reduce_acc(PARK)
    a(f"""
    v_mov_b64 {v(ACC,2)}, 0
    v_mov_b64 {v(ACC+2,2)}, 0
    {RET}
    k2_flb2:
    {"s_mov_b32 s4, 0" if CHAIN else ""}
    k2_flb2x:
    s_ff1_i32_b64 s{sCUR}, s[{sNB}:{sNB+1}]
    s_bitset0_b64 s[{sNB}:{sNB+1}], s{sCUR}
    k2_flb3:
    """)
    node_addr(sCUR)
    a(f"""
    v_mov_b32 v{TP+1}, s59
    ds_read_b32 v{TP+2}, v{TP+1} offset:{L_FLAG}
    ds_read_b128 {v(TP+4,4)}, v{TP} offset:{L_AGG}
    """)
    reduce_acc(ACC)
    if CHAIN:
        a(f"v_mov_b32 v{TP+3}, 1")
    a(f"""
    k2_flw:
    s_waitcnt lgkmcnt(0)
    {f"v_cmp_ne_u32 vcc, s4, v{TP+2}" if CHAIN else f"v_cmp_eq_u32 vcc, 0, v{TP+2}"}
    s_cbranch_vccnz k2_flr
    """)
    rmw(ACC)
    if CHAIN:
        a(DONE)
    a(f"""
    {RET}
    k2_flr:
    ds_read_b32 v{TP+2}, v{TP+1} offset:{L_FLAG}
    ds_read_b128 {v(TP+4,4)}, v{TP} offset:{L_AGG}
    {SPIN}
    s_branch k2_flw
    k2_opena:
    s_cmp_lt_i32 s{sOPA}, 0
    s_cbranch_scc1 k2_openret
    """)
    node_addr(sOPA)
    if not CHAIN:
        a(f"""
        s_cmp_eq_u32 s{sSLOW}, 0
        s_cbranch_scc0 k2_opas
        ds_read_b128 {v(TP+4,4)}, v{TP} offset:{L_AGG}
        s_waitcnt lgkmcnt(0)
        """)
        rmw(PARK)
        a(f"{RET}\nk2_opas:")
    for q in range(4):
        a(f"ds_add_f32 v{TP}, v{PARK+q} offset:{L_AGG+4*q}")
    a(f"""
    {RET}
    k2_open:
    s_cmp_eq_u32 s{sOPEN}, 0
    s_cbranch_scc1 k2_openret
    s_cmp_eq_u64 s[{sNB}:{sNB+1}], 0
    s_cbranch_scc1 k2_openret
    {"s_mov_b32 s4, -1" if CHAIN else ""}
    s_cmp_eq_u32 s{sSLOW}, 0
    s_cbranch_scc1 k2_flb2x
    s_ff1_i32_b64 s{sCUR}, s[{sNB}:{sNB+1}]
    """)
    node_addr(sCUR)
    reduce_acc(ACC)
    for q in range(4):
        a(f"ds_add_f32 v{TP}, v{ACC+q} offset:{L_AGG+4*q}")
    a(f"""
    k2_openret:
    {RET}
    """)

    if LOCK:
        a = a0
        CHAIN = True

    def pre_open(x):
        if LOCK:
            a(f"s_call_b64 s[{sRET}:{sRET+1}], k2_open")
            return
        a(f"""
        s_cmp_eq_u32 s{sSLOW}, 0
        s_cbranch_scc0 k2_po{x}
        s_call_b64 s[{sRET}:{sRET+1}], k2_open
        k2_po{x}:
        """)

    def post_open(x, bar):
        if LOCK:
            return
        a(f"""
        s_cmp_eq_u32 s{sSLOW}, 0
        s_cbranch_scc1 k2_pq{x}
        s_call_b64 s[{sRET}:{sRET+1}], k2_opena
        s_call_b64 s[{sRET}:{sRET+1}], k2_open
        s_waitcnt lgkmcnt(0)
        {"s_barrier" if bar else ""}
        k2_pq{x}:
        """)
    a(f"""
    k2_done:
    s_waitcnt vmcnt(0)
    s_add_u32 s{sW0}, s{sW0}, {CAP}
    v_and_b32 v{vL}, 63, v{VTID}
    s_cmp_lt_u32 s{sW0}, s{sTOT}
    s_cbranch_scc0 k2_last
    """)
    if CHAIN:
        pre_open("w")
        a("s_waitcnt lgkmcnt(0)\ns_barrier")
        post_open("w", False)
    else:
        a(f"""
        s_waitcnt lgkmcnt(0)
        s_barrier
        s_call_b64 s[{sRET}:{sRET+1}], k2_opena
        s_waitcnt lgkmcnt(0)
        s_barrier
        s_call_b64 s[{sRET}:{sRET+1}], k2_open
        s_waitcnt lgkmcnt(0)
        s_barrier
        """)
    a(f"""
    v_lshlrev_b32 v1, 4, v{VTID}
    v_mov_b64 v[8:9], 0
    v_mov_b64 v[10:11], 0
    ds_write_b128 v1, v[8:11] offset:{L_XS}
    s_mov_b32 s{sLATE}, 0
    s_waitcnt lgkmcnt(0)
    s_barrier
    s_cmp_lg_u32 s{sWAVE}, {PW}
    s_cbranch_scc1 k2_p1
    s_branch k2_tg
    k2_last:
    """)
    if "dbg" in o.exp:
        a(f"""
        s_cmp_lg_u32 s{sWAVE}, 15
        s_cbranch_scc1 k2_nodbg
        s_memrealtime s[78:79]
        s_waitcnt lgkmcnt(0)
        s_sub_u32 s3, s2, {o.dbg}
        s_cmp_ge_u32 s3, 15
        s_cbranch_scc1 k2_nodbg
        s_and_b32 s72, s72, 0xfff
        s_sub_u32 s74, s74, s72
        s_and_b32 s74, s74, 0xfff
        s_lshl_b32 s74, s74, 12
        s_and_b32 s76, s76, 15
        s_lshl_b32 s76, s76, 24
        s_or_b32 s72, s72, s74
        s_or_b32 s72, s72, s76
        s_lshl_b32 s3, s3, 2
        s_add_u32 s3, s3, 4
        s_mov_b32 s80, s{sDP}
        s_mov_b32 s81, s{sDP+1}
        s_mov_b32 s82, 256
        s_mov_b32 s83, 0x20000
        v_mov_b32 v1, s72
        s_nop 4
        buffer_store_dword v1, off, s[80:83], s3
        k2_nodbg:
        """)
    PD = o.timing and "pd" in o.exp
    if PD:
        a("s_memrealtime s[72:73]")
    stamp(a, o, 5)
    a(f"""
    s_cmp_ge_u32 s{sWAVE}, 5
    s_cbranch_scc1 k2_nowm
    v_lshlrev_b32 v64, 4, v{vL}
    s_mov_b32 s58, {TB_WM}
    s_mov_b32 s59, {TB_WM+4096}
    """)
    for q in range(8):
        a(f"buffer_load_dwordx4 {v(4*q,4)}, v64, s[{sTB}:{sTB+3}], s{58+q//4} offen offset:{1024*(q%4)} sc1")
    a("k2_nowm:")
    if CHAIN:
        pre_open("l")
    a(f"""
    v_and_b32 v64, 31, v{vL}
    v_lshrrev_b32 v65, 5, v{vL}
    v_lshrrev_b32 v66, 2, v64
    v_mul_u32_u24 v66, 1040, v66
    v_lshl_add_u32 v66, v65, 7, v66
    v_and_b32 v67, 3, v64
    v_lshl_add_u32 v66, v67, 2, v66
    s_lshl_b32 s3, s{sWAVE}, 13
    v_add_u32 v113, s3, v66
    v_lshlrev_b32 v64, 4, v64
    v_lshl_add_u32 v112, v65, 9, v64
    """)
    for i in range(1, 8):
        a(f"v_xor_b32 v{113+i}, {16*i}, v113")
    a(f"""
    s_lshl_b32 s3, s{sWAVE}, 12
    s_mov_b32 s10, 0xbf317218
    s_mov_b32 s11, 0xbf317218
    s_waitcnt lgkmcnt(0)
    s_barrier
    """)
    stamp(a, o, 6)
    if CHAIN:
        if PD:
            a("s_memrealtime s[74:75]\ns_memrealtime s[76:77]")
        post_open("l", True)
        if PD:
            a("s_memrealtime s[78:79]")
    else:
        a(f"""
        {"s_memrealtime s[74:75]" if PD else ""}
        s_call_b64 s[{sRET}:{sRET+1}], k2_opena
        s_waitcnt lgkmcnt(0)
        s_barrier
        {"s_memrealtime s[76:77]" if PD else ""}
        s_call_b64 s[{sRET}:{sRET+1}], k2_open
        s_waitcnt lgkmcnt(0)
        s_barrier
        {"s_memrealtime s[78:79]" if PD else ""}
        """)
    a(f"""
    s_cmp_ge_u32 s{sWAVE}, 5
    s_cbranch_scc1 {"k2_tm" if o.timing else "k2_end"}
    """)
    for i in range(8):
        for u in range(2):
            a(f"ds_read2st64_b32 {v(32+4*i+2*u,2)}, v{113+i} offset0:{2*u} offset1:{2*u+1}")
    for k in range(4):
        a(f"s_waitcnt lgkmcnt({12-4*k})")
        for r in range(32 + 8 * k, 40 + 8 * k, 2):
            a(f"v_pk_mul_f32 {v(r,2)}, {v(r,2)}, s[10:11]")
        for sx in range(4):
            a(f"v_cvt_pk_bf16_f32 v{64+4*sx+k}, v{32+8*k+sx}, v{36+8*k+sx}")
    if PD:
        a("s_memrealtime s[80:81]")
    a("s_waitcnt vmcnt(0)\ns_nop 0")
    if PD:
        a("s_memrealtime s[82:83]")
    for sx in range(4):
        mf(80, 64 + 4 * sx, 8 * sx, "0" if sx == 0 else v(80, 16))
        mf(96, 64 + 4 * sx, 8 * sx + 4, "0" if sx == 0 else v(96, 16))
    a("s_nop 10")
    for rq in range(4):
        b = 32 + 4 * rq
        a(f"""
        v_cvt_pk_bf16_f32 v{b}, v{80+4*rq}, v{81+4*rq}
        v_cvt_pk_bf16_f32 v{b+1}, v{82+4*rq}, v{83+4*rq}
        v_cvt_pk_bf16_f32 v{b+2}, v{96+4*rq}, v{97+4*rq}
        v_cvt_pk_bf16_f32 v{b+3}, v{98+4*rq}, v{99+4*rq}
        buffer_store_dwordx4 {v(b,4)}, v112, s[{sOUT}:{sOUT+3}], s3 offen offset:{1024*rq} {o.outst}
        """)
    if PD:
        a("s_memrealtime s[84:85]")
    if o.timing:
        a("k2_tm:\ns_waitcnt vmcnt(0)")
        if PD:
            a("s_memrealtime s[86:87]")
        stamp(a, o, 7)
        a(f"s_mov_b64 exec, 1")
        stamp_store(a, o, 1, 8, 8, sWAVE)
        stamp_store(a, o, 0, 5, 8, sWAVE, lambda i: 96 + i)
    a("k2_end:\ns_endpgm")


def desc(name, vg, sg):
    return f""".p2align 6
.amdhsa_kernel {name}
  .amdhsa_next_free_vgpr {vg}
  .amdhsa_next_free_sgpr {sg}
  .amdhsa_accum_offset {(vg+3)//4*4}
  .amdhsa_group_segment_fixed_size 0
  .amdhsa_kernarg_size 88
  .amdhsa_user_sgpr_count 2
  .amdhsa_user_sgpr_kernarg_segment_ptr 1
  .amdhsa_system_sgpr_workgroup_id_x 1
.end_amdhsa_kernel
"""


def main():
    p = argparse.ArgumentParser()
    p.add_argument("-o", default="cdna_kernels/" + NAME + ".s")
    p.add_argument("--timing", action="store_true")
    p.add_argument("--k1ld", default="nt")
    p.add_argument("--k1st", default="sc1")
    p.add_argument("--k2ld", default="sc1")
    p.add_argument("--xld", default="")
    p.add_argument("--outst", default="sc1")
    p.add_argument("--exp", default="prio,ybar,ea,w0,lock")
    p.add_argument("--spin", type=int, default=0)
    p.add_argument("--skew", default="")
    p.add_argument("--dbg", type=int, default=0)
    p.add_argument("--psl", type=int, default=4)
    p.add_argument("--pmax", type=int, default=100000)
    p.add_argument("--k1n", default="1,2,1")
    p.add_argument("--pw", type=int, default=0)
    p.add_argument("--pd", type=int, default=1)
    p.add_argument("--wd", type=int, default=1)
    p.add_argument("--wsl", type=int, default=0)
    p.add_argument("--efld", default="sc1")
    p.add_argument("--k2n", default="3,0,3")
    p.add_argument("--sig", default="watch")
    p.add_argument("--k1p", type=int, default=0)
    p.add_argument("--nx", type=int, default=2)
    p.add_argument("--k1q", type=int, default=2)
    p.add_argument("--k1c", type=int, default=1)
    p.add_argument("--s1sh", type=int, default=3)
    p.add_argument("--s1st", type=int, default=64)
    p.add_argument("--s1sf", type=int, default=0)
    p.add_argument("--k1w", type=int, default=-1)
    p.add_argument("--ww", type=int, default=0)
    p.add_argument("--mbg", type=int, default=16)
    p.add_argument("--mbs", type=int, default=128)
    p.add_argument("--mbx", type=int, default=1)
    o = p.parse_args()
    o.exp = set(o.exp.split(","))
    K = NAME + "_kernel"
    a = A()
    o.ph2 = True
    k1(a, o)
    k2(a, o)
    t = f"""; TFN tensor-product message passing in one launch of 256 co-resident workgroups.
; Kernarg: 0 x, 8 src, 16 dst, 24 Y, 32 edge_feat, 40 w_rad, 48 cg, 56 w_mix, 64 out, 72 debug, 80 ws
; @launch grid=({G},1,1) block=(1024,1,1) lds={LDS_SZ}
.amdgcn_target "amdgcn-amd-amdhsa--gfx950"
.text
.globl {K}
.p2align 8
.type {K},@function
{K}:
{a.text()}
.section .rodata,"a"
{desc(K, 128, 102)}"""
    open(o.o, "w").write(t)


main()
```

```python
import sys, argparse

NAME = "gather_scatter__tensor_product_equiv_tfn__graph"
E, N = 640000, 10000
G, CH = 256, 2500
CHMAX = 2560
BMUL = 26843
WS_EF = 0
WS_YI = E * 32
WS_TB = WS_YI + E * 12
TB_WM = 262144
TB_MB = TB_WM + 8192
TB_SZ = TB_MB + 65536
WS_TM = WS_TB + 524288
HALF = 5000
L1_HIST, L1_ST, L1_INV, L1_YI = 0, 1024, 2048, 7168
L1_RAW = 81920
L1_WR, L1_CG = 37888, 39936
LDS_SZ = 163840
CAP, C = 2720, 2816
SEG = 170
L_AGG = 0
L_XS = 40960
XHALF = C // 2 * 4
L_CNT = L_XS + C * 4
L_FLAG = L_CNT + 256
L_SH = L_FLAG + 256
L_YS = L_SH + C // 8 * 2
L_CG = L_YS + C * 8
L_EF = L_CG + 128
L_SZ = L_EF + (CAP + 1) * 32
L_TT = L_EF
assert L_SZ <= 163840 and L_CG % 64 == 0 and XHALF % 16 == 0 and L_YS % 16 == 0 and L_EF % 16 == 0
assert L_CG >= 65536 and SEG * 16 == CAP


CHS = CH
ZF = ZZ = ZN6 = 0
L_WON = L_FLAG + 12


def zone_layout(w0):
    global ZF, ZZ, ZN6, CHS, WS_YI, L1_YI, L1_RAW, L1_WR, L1_CG, L_TT
    ZF = 2048 + 64 * w0
    ZZ = 2 * CH - 2 * ZF
    CHS = (ZF + ZZ + 31) // 32 * 32
    ZN6 = max(0, (CHS - 2560) // 32)
    WS_YI = 29360128
    L1_YI = L1_INV + 2 * max(CHS, 2560)
    L1_RAW = LDS_SZ - 32 * max(CHS, 2560)
    L1_WR, L1_CG, L_TT = 57344, 59392, 59520
    assert ZZ > 0 and L1_YI % 16 == 0 and L1_YI + 32768 <= L_XS and (ZF + ZZ) * 12 <= 32768 and L1_RAW >= L_EF
    assert G * CHS * 32 <= WS_TB and L_TT + 2304 <= L_CG and (ZF * 12) % 16 == 0 and ((ZF + ZZ) * 12) % 16 == 0


class A:
    def __init__(s):
        s.l = []

    def __call__(s, t):
        for x in t.strip("\n").split("\n"):
            x = x.strip()
            if x:
                s.l.append(x if x.endswith(":") else "    " + x)

    def text(s):
        return "\n".join(s.l) + "\n"


def v(a, n=1):
    return f"v{a}" if n == 1 else f"v[{a}:{a+n-1}]"


def s(a, n=1):
    return f"s{a}" if n == 1 else f"s[{a}:{a+n-1}]"


def srd(a, r, ptr, off, nr):
    if off is None:
        a(f"s_mov_b32 s{r}, s{ptr}\ns_mov_b32 s{r+1}, s{ptr+1}")
    else:
        a(f"s_add_u32 s{r}, s{ptr}, {off}\ns_addc_u32 s{r+1}, s{ptr+1}, 0")
    a(f"s_mov_b32 s{r+2}, {nr}\ns_mov_b32 s{r+3}, 0x20000")


DPPS = ["row_shr:1 row_mask:0xf bank_mask:0xf bound_ctrl:1",
        "row_shr:2 row_mask:0xf bank_mask:0xf bound_ctrl:1",
        "row_shr:4 row_mask:0xf bank_mask:0xf bound_ctrl:1",
        "row_shr:8 row_mask:0xf bank_mask:0xf bound_ctrl:1",
        "row_bcast:15 row_mask:0xa bank_mask:0xf",
        "row_bcast:31 row_mask:0xc bank_mask:0xf"]


def scan(a, op, regs):
    for d in DPPS:
        for r in regs:
            a(f"{op}_dpp v{r}, v{r}, v{r} {d}")
        if len(regs) < 3:
            a(f"s_nop {2 - len(regs)}")


def stamp(a, o, i, alt=False):
    sets = [x for x in ("pst", "pc", "pd") if x in o.exp]
    alt = "pst" if alt is True else alt
    if sets and i >= 5 and not alt:
        return
    if alt and alt not in sets:
        return
    if o.timing:
        a(f"{'s_memtime' if 'clk' in o.exp else 's_memrealtime'} s[{72+2*i}:{73+2*i}]")


def stamp_store(a, o, kern, n, ptr, sw, reg=lambda i: 72 + 2 * i):
    if not o.timing:
        return
    a(f"""
    s_waitcnt lgkmcnt(0)
    s_lshl_b32 s3, s2, 4
    s_add_u32 s3, s3, s{sw}
    s_lshl_b32 s3, s3, 6
    s_add_u32 s3, s3, {WS_TM + kern*262144}
    """)
    srd(a, 68, ptr, "s3", 64)
    a("s_nop 4\nv_mov_b32 v0, 0")
    for i in range(n):
        a(f"v_mov_b32 v1, s{reg(i)}\nbuffer_store_dword v1, v0, s[68:71], 0 offen offset:{4*i}\ns_nop 1")


X, ZE, ZO, TA, TP, ACC, EE, W, EF, YY, XI = 0, 32, 48, 64, 72, 80, 88, 92, 108, 112, 114
PARK, VRI, VHB = 100, 104, 105
VXO, VX, VY, VEF, VJ4, VTID = 122, 123, 124, 125, 126, 127
sX, sEF, sYI, sTB, sOUT = 12, 16, 20, 24, 28
sWAVE, sB4, sN0, sW0, sTOT, sLIM, sP = 32, 33, 34, 35, 36, 37, 38
sNG = 39
sONE, sXNR, sREM, sBM, sNM, sCUR, sCG = 40, 42, 43, 44, 48, 50, 51
sM = 52
sRET = 60
sSLOW, sOPEN = 47, 70
sTH, sPR = 71, 11
sNB, sEA, sOPA, sPK, s512 = 88, 90, 91, 92, 93
sDP, sSPIN, sSIG, sLATE = 94, 101, 60, 61


def mbword(o, word):
    return TB_MB + ((32768 if o.mbg else 128) if word else 0)


def bstore(a, o, sr):
    a(f"v_and_b32 v65, 63, v{VTID}\nv_mov_b32 v64, 1")
    if o.mbg:
        sh = o.mbg.bit_length() - 3
        a(f"""
        v_and_b32 v66, {o.mbg//4 - 1}, v65
        v_lshrrev_b32 v65, {sh}, v65
        v_mul_u32_u24 v65, {o.mbs}, v65
        v_lshl_add_u32 v68, v66, 4, v65
        v_mov_b32 v65, 1
        v_mov_b32 v66, 1
        v_mov_b32 v67, 1
        buffer_store_dwordx4 v[64:67], v68, s[{sTB}:{sTB+3}], {sr} offen sc1
        """)
    else:
        a("v_lshlrev_b32 v65, 8, v65")
        for i in range(4):
            a(f"buffer_store_dword v64, v65, s[{sTB}:{sTB+3}], {sr} offen sc1")
            if i < 3:
                a(f"s_add_u32 {sr}, {sr}, 16384")


def watch(a, o, x):
    a(f"""
    v_and_b32 v65, 63, v{VTID}
    v_mul_u32_u24 v65, {o.s1st}, v65
    s_mov_b64 exec, {11 if o.s1sh == 3 else (1 << o.s1sh) - 1}
    k2_wt{x}:
    buffer_load_dword v{EE}, v65, s[48:51], 0 offen sc1
    s_add_u32 s{sSPIN}, s{sSPIN}, 1
    {f"s_sleep {o.wsl}" if o.wsl else ""}
    s_waitcnt vmcnt(0)
    v_readlane_b32 s3, v{EE}, 0
    """)
    for i in ([1, 3] if o.s1sh == 3 else range(1, o.s1sh)):
        a(f"v_readlane_b32 s10, v{EE}, {i}\ns_add_u32 s3, s3, s10")
    a(f"""
    s_cmp_ge_u32 s3, {G}
    s_cbranch_scc1 k2_wtd{x}
    s_cmp_lt_u32 s{sSPIN}, {o.pmax}
    s_cbranch_scc1 k2_wt{x}
    k2_wtd{x}:
    s_mov_b64 exec, -1
    """)


def bcast(a, o, word, tag):
    a(f"""
    v_readfirstlane_b32 s3, v64
    s_and_b32 s3, s3, {G-1}
    s_cmp_lg_u32 s3, {G-1}
    s_cbranch_scc1 {tag}
    s_mov_b32 s3, {mbword(o, word)}
    """)
    bstore(a, o, "s3")
    a(f"{tag}:")


def arrive(a, word, tag):
    a(f"""
    v_mov_b32 v64, 1
    v_mov_b32 v65, {L_FLAG + word // 32}
    s_mov_b32 s{sSIG}, 0
    s_mov_b64 exec, 1
    ds_add_rtn_u32 v65, v65, v64
    s_waitcnt lgkmcnt(0)
    v_readfirstlane_b32 s3, v65
    s_cmp_lg_u32 s3, 15
    s_cbranch_scc1 {tag}
    buffer_atomic_add v64, off, s[48:51], 0 offset:{word} sc0 sc1
    s_mov_b32 s{sSIG}, 1
    {tag}:
    s_mov_b64 exec, -1
    """)


def poll(a, o, word, tag):
    a(f"""
    {mbaddr(o, "s3", word)}
    v_mov_b32 v{EE}, 0
    s_mov_b64 exec, 1
    {tag}:
    buffer_load_dword v{EE}, off, s[{sTB}:{sTB+3}], s3 sc1
    s_add_u32 s{sSPIN}, s{sSPIN}, 1
    {f"s_sleep {o.psl}" if o.psl and o.pd > 1 else ""}
    s_waitcnt vmcnt({o.pd - 1})
    v_readfirstlane_b32 s10, v{EE}
    s_cmp_eq_u32 s10, 1
    s_cbranch_scc1 {tag}d
    s_cmp_ge_u32 s{sSPIN}, {o.pmax}
    s_cbranch_scc1 {tag}d
    {f"s_sleep {o.psl}" if o.psl and o.pd == 1 else ""}
    s_branch {tag}
    {tag}d:
    s_mov_b64 exec, -1
    """)


def shard(o):
    if o.s1sh == 3:
        return """s_mul_i32 s3, s2, 171
        s_lshr_b32 s3, s3, 9
        s_mul_i32 s3, s3, 3
        s_sub_u32 s3, s2, s3
        s_lshl_b32 s3, s3, 6
        s_cmp_eq_u32 s3, 128
        s_cselect_b32 s3, 192, s3"""
    return f"""s_lshr_b32 s3, s2, {o.s1sf}
    s_and_b32 s3, s3, {o.s1sh-1}
    s_mul_i32 s3, s3, {o.s1st}"""


def mbaddr(o, dst, word, tmp="s10"):
    if not o.mbg:
        return f"s_lshl_b32 {dst}, s2, 8\ns_add_u32 {dst}, {dst}, {TB_MB + word}"
    lg = o.mbg.bit_length() - 1
    if o.mbx:
        pre = f"""s_and_b32 {dst}, s2, 7
        s_lshl_b32 {dst}, {dst}, 5
        s_lshr_b32 {tmp}, s2, 3
        s_or_b32 {dst}, {dst}, {tmp}"""
    else:
        pre = f"s_mov_b32 {dst}, s2"
    return f"""{pre}
    s_and_b32 {tmp}, {dst}, {o.mbg-1}
    s_lshl_b32 {tmp}, {tmp}, 2
    s_lshr_b32 {dst}, {dst}, {lg}
    s_mul_i32 {dst}, {dst}, {o.mbs}
    s_add_u32 {dst}, {dst}, {tmp}
    s_add_u32 {dst}, {dst}, {TB_MB + (32768 if word else 0)}"""


def bucket4(a):
    a(f"""
    s_and_b32 s3, s2, 7
    s_lshl_b32 s3, s3, 5
    s_lshr_b32 s10, s2, 3
    s_or_b32 s3, s3, s10
    s_lshl_b32 s{sB4}, s3, 2
    """)


def tgather(a, o, vl, dst):
    if "w0" in o.exp:
        a(f"v_lshlrev_b32 v{dst+4}, 12, v{vl}")
        for i in range(4):
            a(f"buffer_load_dword v{dst+i}, v{dst+4}, s[{sTB}:{sTB+3}], s{sB4} offen offset:{1024*i} sc1")
        return
    a(f"v_lshlrev_b32 v{dst+4}, 10, v{vl}\ns_mov_b32 s3, s{sB4}")
    for i in range(4):
        a(f"buffer_load_dword v{dst+i}, v{dst+4}, s[{sTB}:{sTB+3}], s3 offen sc1")
        if i < 3:
            a("s_add_u32 s3, s3, 65536")


def skew_tab(o):
    sz = [int(x) for x in o.skew.split(",")]
    assert len(sz) == 8 and sum(sz) == 8 * CH and all(x % 4 == 0 and 2048 <= x <= CHMAX for x in sz)
    return sz, [sum(sz[:k]) for k in range(8)]


def chunk_sizes(o):
    if o.zone:
        return f"""s_lshr_b32 s97, s2, 3
        s_lshl_b32 s97, s97, 2
        s_and_b32 s3, s2, 3
        s_or_b32 s98, s97, s3
        s_mul_i32 s97, s98, {ZZ}
        s_sub_u32 s3, {G-1}, s2
        s_mul_i32 s3, s3, {ZF}
        s_add_u32 s96, s97, s3
        s_add_u32 s97, s96, {ZF+ZZ}
        s_cmp_ge_u32 s62, {o.zone}
        s_cselect_b32 s3, s96, 0
        s_lshl_b32 s92, s3, 2
        s_lshl_b32 s93, s3, 3
        s_add_u32 s92, s92, 8192
        s_add_u32 s93, s93, 16384
        s_lshl_b32 s96, s96, 5
        v_cmp_gt_u32 vcc, {ZF + ZZ - 2048}, v0"""
    if not o.skew:
        return f"v_cmp_gt_u32 vcc, {CH - 2048}, v0"
    sz, pf = skew_tab(o)
    w = lambda t, k: hex(t[k] | t[k + 1] << 16)
    return f"""s_mov_b32 s88, {w(sz, 0)}
    s_mov_b32 s89, {w(sz, 2)}
    s_mov_b32 s90, {w(pf, 0)}
    s_mov_b32 s91, {w(pf, 2)}
    s_bitcmp1_b32 s2, 2
    s_cmov_b32 s88, {w(sz, 4)}
    s_cmov_b32 s89, {w(sz, 6)}
    s_cmov_b32 s90, {w(pf, 4)}
    s_cmov_b32 s91, {w(pf, 6)}
    s_and_b32 s3, s2, 3
    s_lshl_b32 s3, s3, 4
    s_lshr_b64 s[88:89], s[88:89], s3
    s_lshr_b64 s[90:91], s[90:91], s3
    s_lshr_b32 s92, s2, 3
    s_mul_i32 s92, s92, {8*CH}
    s_and_b32 s90, s90, 0xffff
    s_add_u32 s92, s92, s90
    s_and_b32 s3, s88, 0xffff
    s_lshl_b32 s88, s3, 2
    s_lshl_b32 s89, s3, 3
    s_lshl_b32 s90, s3, 5
    s_mul_i32 s91, s3, 12
    s_sub_u32 s3, s3, 2048
    v_cmp_gt_u32 vcc, s3, v0"""


def chunk_bases(o, vl):
    if not o.skew:
        return f"""v_mul_u32_u24 v12, {4*CHS}, v{vl}
        v_add_u32 v13, {CHS}, v12
        v_add_u32 v14, {2*CHS}, v12
        v_add_u32 v15, {3*CHS}, v12"""
    sz, pf = skew_tab(o)
    t = f"v_lshrrev_b32 v18, 1, v{vl}\nv_and_b32 v19, 1, v{vl}\nv_mul_u32_u24 v18, {8*CH}, v18\n"
    for i in range(4):
        t += f"v_mul_u32_u24 v{12+i}, {pf[4+i]-pf[i]}, v19\nv_add_u32 v{12+i}, {pf[i]}, v{12+i}\nv_add_u32 v{12+i}, v18, v{12+i}\n"
    return t


def k1(a, o):
    LD = o.k1ld
    ST = o.k1st
    na, nb, nc = [int(x) for x in o.k1n.split(",")]
    nd = 5 - na - nb - nc
    a(f"""
    s_cmp_ge_u32 s2, {G}
    s_cbranch_scc1 k2_end
    """)
    stamp(a, o, 0)
    if "dbg" in o.exp:
        a("s_memrealtime s[72:73]\ns_getreg_b32 s76, hwreg(HW_REG_XCC_ID)")
    a(f"""
    s_load_dwordx4 s[4:7], s[0:1], 8
    s_load_dwordx4 s[8:11], s[0:1], 24
    s_load_dwordx4 s[12:15], s[0:1], 40
    s_load_dwordx2 s[16:17], s[0:1], 56
    s_load_dwordx2 s[18:19], s[0:1], 80
    s_load_dwordx2 s[68:69], s[0:1], 0
    s_load_dwordx2 s[70:71], s[0:1], 64
    s_load_dwordx2 s[{sDP}:{sDP+1}], s[0:1], 72
    v_lshlrev_b32 v1, 2, v0
    v_lshlrev_b32 v2, 3, v0
    v_lshlrev_b32 v3, 4, v0
    v_and_b32 v46, 0x3fc, v1
    v_mov_b64 v[48:49], 0
    v_mov_b64 v[50:51], 0
    v_lshrrev_b32 v62, 6, v0
    v_and_b32 v63, 63, v0
    ds_write_b32 v46, v48 offset:{L1_HIST}
    {f"ds_write_b128 v3, v[48:51] offset:{L_XS}" if o.zone else ""}
    v_readfirstlane_b32 s62, v62
    {chunk_sizes(o)}
    v_mov_b32 v{VTID}, v0
    s_movk_i32 s52, 4096
    s_movk_i32 s53, 8192
    s_movk_i32 s54, 16384
    s_mov_b32 s55, 32768
    s_mov_b32 s56, 65536
    s_mov_b32 s57, 49152
    s_mov_b64 s[60:61], vcc
    {"s_lshl_b32 s3, s92, 2" if o.skew else f"s_mul_i32 s3, s2, {(ZF or CH)*4}"}
    {"s_lshl_b32 s58, s92, 3" if o.skew else f"s_mul_i32 s58, s2, {(ZF or CH)*8}"}
    {"s_lshl_b32 s59, s92, 5" if o.skew else f"s_mul_i32 s59, s2, {(ZF or CH)*32}"}
    s_mov_b32 s{sSPIN}, 0
    s_cmp_lt_u32 s2, 4
    s_cselect_b32 s63, s2, 6
    s_cmp_eq_u32 s62, 13
    s_cselect_b32 s63, s63, 6
    s_waitcnt lgkmcnt(0)
    """)
    if o.zone:
        a(f"""
        s_cmp_lg_u32 s62, 15
        s_cbranch_scc1 k1_ncl
        """)
        srd(a, 88, sDP, None, 256)
        a(f"""
        s_lshr_b32 s64, s98, 2
        s_and_b32 s65, s64, 3
        s_lshl_b32 s65, s65, 6
        s_add_u32 s65, s65, 4
        s_lshr_b32 s64, s64, 2
        s_lshl_b32 s64, s64, 2
        s_and_b32 s98, s98, 3
        s_or_b32 s98, s98, s64
        s_lshl_b32 s98, 1, s98
        v_mov_b32 v20, s98
        s_mov_b64 exec, 1
        buffer_atomic_or v20, off, s[88:91], s65 sc0 sc1
        s_mov_b64 exec, -1
        k1_ncl:
        s_lshl_b32 s64, s97, 2
        """)
    srd(a, 24, 6, "s3", "s64" if o.zone else "s88" if o.skew else CH * 4)
    a(f"""
    s_cmp_ge_u32 s63, 4
    s_cbranch_scc1 k1_noimg0
    v_and_b32 v64, 31, v63
    v_lshrrev_b32 v65, 5, v63
    v_lshlrev_b32 v64, 2, v64
    """)
    srd(a, 48, 16, None, 8192)
    a(f"""
    v_lshl_add_u32 v64, v65, 11, v64
    s_and_b32 s64, s63, 1
    s_lshl_b32 s64, s64, 12
    s_lshr_b32 s65, s63, 1
    s_lshl_b32 s65, s65, 7
    s_add_u32 s64, s64, s65
    """)
    for i in range(8):
        a(f"buffer_load_dword v{66+i}, v64, s[48:51], s64 offen offset:{256*i}")
    a("k1_noimg0:")
    so4 = ["0", "s52", "s92" if o.zone else "s53"]
    so8 = ["0", "s53", "s93" if o.zone else "s54"]
    so16 = ["0", "s54", "s55", "s57", "s56"]
    for i in range(3):
        a(f"buffer_load_dword v{4+i}, v1, s[24:27], {so4[i]} offen {LD}")
    if o.zone:
        a("s_lshl_b32 s64, s97, 3")
    srd(a, 20, 4, "s3", "s26" if o.zone else "s88" if o.skew else CH * 4)
    srd(a, 28, 8, "s58", "s64" if o.zone else "s89" if o.skew else CH * 8)
    srd(a, 36, 12, None, 2048)
    srd(a, 40, 14, None, 128)
    for i in range(3):
        a(f"buffer_load_dword v{7+i}, v1, s[20:23], {so4[i]} offen {LD}")
    a(f"""
    v_lshlrev_b32 v61, 4, v63
    s_lshl_b32 s64, s62, 7
    s_add_u32 m0, s64, {L1_WR}
    s_mov_b64 exec, 0xff
    buffer_load_dwordx4 v61, s[36:39], s64 offen lds
    s_mov_b32 m0, {L1_CG}
    s_nop 0
    buffer_load_dwordx4 v61, s[40:43], 0 offen lds
    s_mov_b64 exec, -1
    """)
    for i in range(3):
        a(f"buffer_load_dwordx2 v[{10+2*i}:{11+2*i}], v2, s[28:31], {so8[i]} offen {LD}")
    if o.zone:
        a("s_lshl_b32 s64, s97, 5")
    srd(a, 32, 10, "s59", "s64" if o.zone else "s90" if o.skew else CH * 32)
    jj = [0]
    if o.zone:
        assert na + nb == 3 and nc == 1 and nd == 1

    def ld_ef(n):
        for _ in range(n):
            j = jj[0]
            if o.zone and j == 3:
                a(f"""
                s_add_u32 m0, m0, 16384
                s_cmp_ge_u32 s62, {2*o.zone}
                s_cselect_b32 s3, s96, 0
                s_cselect_b32 s4, s97, 1
                s_add_u32 s3, s3, 65536
                s_cmp_eq_u32 s4, 0
                s_cbranch_scc1 k1_z4
                buffer_load_dwordx4 v3, s[32:35], s3 offen {LD} lds
                k1_z4:
                """)
                if ZN6:
                    a(f"""
                    s_cmp_lt_u32 s62, {ZN6}
                    s_cselect_b32 s97, s97, 0
                    s_cmp_eq_u32 s97, 0
                    s_cbranch_scc1 k1_z5
                    s_add_u32 m0, m0, 16384
                    s_add_u32 s3, s96, 81920
                    buffer_load_dwordx4 v3, s[32:35], s3 offen {LD} lds
                    s_sub_u32 m0, m0, 16384
                    k1_z5:
                    """)
                a("s_sub_u32 m0, m0, 16384\ns_nop 0")
                jj[0] += 1
                continue
            if o.zone and j == 4:
                a(f"buffer_load_dwordx4 v3, s[32:35], {so16[3]} offen {LD} lds")
                jj[0] += 1
                continue
            a(f"buffer_load_dwordx4 v3, s[32:35], {so16[j]} offen {LD} lds")
            if j < 4:
                a("s_add_u32 m0, m0, 16384\ns_nop 0")
            jj[0] += 1
    a(f"""
    {"" if o.zone else f"ds_write_b128 v3, v[48:51] offset:{L_XS}"}
    s_lshl_b32 s3, s62, 10
    s_add_u32 m0, s3, {L1_RAW}
    s_lshl_b32 s66, s2, 10
    s_mov_b32 s67, {L1_YI}
    v_mov_b32 v47, 1
    v_mov_b32 v60, {1<<28}
    s_movk_i32 s10, {HALF}
    s_barrier
    """)
    ld_ef(na)
    if o.zone:
        a(f"s_mul_i32 s59, s2, {CHS*32}")
    a(f"s_add_u32 s59, s59, {WS_EF}")
    srd(a, 36, 18, "s59", "s90" if o.skew else (ZF or CH) * 32)
    a(f"s_mul_i32 s58, {'s92, 12' if o.skew else f's2, {CHS*12}'}\ns_add_u32 s58, s58, {WS_YI}")
    srd(a, 40, 18, "s58", "s91" if o.skew else (ZF or CH) * 12)
    srd(a, 44, 18, WS_TB, TB_SZ)
    a(f"s_waitcnt vmcnt({8+na})")
    stamp(a, o, 1)
    for i in range(3):
        a(f"v_mul_u32_u24 v{16+i}, {BMUL}, v{4+i}")
    for i in range(3):
        a(f"v_lshrrev_b32 v{16+i}, 20, v{16+i}")
    for i in range(3):
        a(f"v_lshlrev_b32 v{40+i}, 2, v{16+i}")
    a(f"""
    ds_add_rtn_u32 v43, v40, v47 offset:{L1_HIST}
    ds_add_rtn_u32 v44, v41, v47 offset:{L1_HIST}
    """)
    if o.zone:
        a(f"""
        v_mov_b32 v21, {L_WON}
        s_cmp_lg_u32 s62, 15
        s_cbranch_scc1 k1_zw
        v_readfirstlane_b32 s3, v20
        s_and_b32 s3, s3, s98
        s_cselect_b32 s3, 1, 2
        v_mov_b32 v20, s3
        ds_write_b32 v21, v20
        k1_zw:
        s_cmp_lt_u32 s62, {o.zone}
        s_cbranch_scc1 k1_zd
        s_cmp_eq_u64 s[60:61], 0
        s_cbranch_scc1 k1_zd
        k1_zs:
        ds_read_b32 v20, v21
        s_waitcnt lgkmcnt(0)
        v_readfirstlane_b32 s3, v20
        s_cmp_eq_u32 s3, 0
        s_cbranch_scc1 k1_zs
        s_cmp_eq_u32 s3, 2
        s_cselect_b64 s[60:61], s[60:61], 0
        k1_zd:
        """)
    a(f"""
    s_mov_b64 exec, s[60:61]
    s_cbranch_execz k1_a
    ds_add_rtn_u32 v45, v42, v47 offset:{L1_HIST}
    k1_a:
    s_mov_b64 exec, -1
    """)
    ld_ef(nb)
    for i in range(3):
        a(f"v_mul_u32_u24 v{16+i}, 320007, v{16+i}")
    for i in range(3):
        a(f"v_add_u32 v{16+i}, 8160, v{16+i}")
    for i in range(3):
        a(f"v_lshrrev_b32 v{16+i}, 13, v{16+i}")
    for i in range(3):
        a(f"v_sub_u32 v{4+i}, v{4+i}, v{16+i}")
    for i in range(3):
        a(f"v_lshlrev_b32 v{4+i}, 18, v{4+i}")
    a(f"""
    s_waitcnt lgkmcnt(0)
    s_barrier
    ds_read_b128 v[48:51], v61 offset:{L1_HIST}
    {"ds_read_b32 v20, v21" if o.zone else ""}
    s_waitcnt vmcnt({5+na+nb})
    """)
    for i in range(3):
        a(f"v_cmp_le_u32 s[{4+2*i}:{5+2*i}], s10, v{7+i}")
    for i in range(3):
        a(f"v_cndmask_b32 v{16+i}, 0, v60, s[{4+2*i}:{5+2*i}]")
    for i in range(3):
        a(f"v_or3_b32 v{7+i}, v{7+i}, v{4+i}, v{16+i}")
    a(f"""
    s_waitcnt lgkmcnt(0)
    v_add_u32 v54, v48, v49
    v_add_u32 v55, v54, v50
    v_add_u32 v56, v55, v51
    v_mov_b32 v57, v56
    {"v_readfirstlane_b32 s97, v20" if o.zone else "s_nop 0"}
    s_nop 0
    """)
    scan(a, "v_add_u32", [57])
    if o.zone:
        a(f"""
        s_lshr_b32 s97, s97, 1
        s_cmp_eq_u32 s97, 1
        s_cmov_b32 s38, {(ZF+ZZ)*32}
        s_cmov_b32 s42, {(ZF+ZZ)*12}
        """)
    a(f"""
    v_sub_u32 v52, v57, v56
    v_add_u32 v53, v52, v48
    v_add_u32 v54, v52, v54
    v_add_u32 v55, v52, v55
    ds_write_b128 v61, v[52:55] offset:{L1_ST}
    ds_read_b32 v56, v40 offset:{L1_ST}
    ds_read_b32 v57, v41 offset:{L1_ST}
    ds_read_b32 v58, v42 offset:{L1_ST}
    v_lshl_or_b32 v48, v48, 16, v52
    v_lshl_or_b32 v49, v49, 16, v53
    v_lshl_or_b32 v50, v50, 16, v54
    v_lshl_or_b32 v51, v51, 16, v55
    v_add_u32 v17, 1024, v0
    v_add_u32 v18, 2048, v0
    s_waitcnt lgkmcnt(0)
    """)
    for i in range(3):
        a(f"v_add_u32 v{43+i}, v{43+i}, v{56+i}")
    for i in range(3):
        a(f"v_mad_u32_u24 v{40+i}, v{43+i}, 12, s67")
        a(f"v_lshlrev_b32 v{43+i}, 1, v{43+i}")
    stamp(a, o, 2)
    a(f"""
    ds_write_b16 v43, v0 offset:{L1_INV}
    ds_write_b16 v44, v17 offset:{L1_INV}
    s_waitcnt vmcnt({na+nb})
    """)
    for i in range(2):
        a(f"ds_write2_b32 v{40+i}, v{10+2*i}, v{11+2*i} offset0:0 offset1:1")
        a(f"ds_write_b32 v{40+i}, v{7+i} offset:8")
    a(f"""
    s_mov_b64 exec, s[60:61]
    s_cbranch_execz k1_b
    ds_write_b16 v45, v18 offset:{L1_INV}
    ds_write2_b32 v42, v14, v15 offset0:0 offset1:1
    ds_write_b32 v42, v9 offset:8
    k1_b:
    s_mov_b64 exec, -1
    s_cmp_lg_u32 s62, 0
    s_cbranch_scc1 k1_c
    buffer_store_dwordx4 v[48:51], v61, s[44:47], s66 offen sc1
    {mbaddr(o, "s4", 0, "s5")}
    v_lshlrev_b32 v64, {15 if o.mbg else 7}, v63
    v_mov_b32 v65, 0
    s_mov_b64 exec, 3
    buffer_store_dword v65, v64, s[44:47], s4 offen sc1
    s_mov_b64 exec, -1
    k1_c:
    """)
    ld_ef(nc)
    a(f"""
    v_and_b32 v1, -2, v0
    v_and_b32 v2, 1, v0
    v_lshlrev_b32 v2, 4, v2
    v_add_u32 v2, {L1_RAW}, v2
    v_and_b32 v4, 31, v63
    v_lshrrev_b32 v5, 5, v63
    v_lshlrev_b32 v4, 2, v4
    v_lshl_add_u32 v4, v5, 10, v4
    v_add_u32 v4, {L1_WR}, v4
    s_waitcnt lgkmcnt(0)
    s_barrier
    ds_read_b128 v[24:27], v3 offset:{L1_YI}
    ds_read_b128 v[28:31], v3 offset:{L1_YI+16384}
    """)
    for j in range(5):
        a(f"ds_read_u16 v{32+j}, v1 offset:{L1_INV+1024*j}")
    if ZN6:
        a(f"ds_read_u16 v37, v1 offset:{L1_INV+5120}")
    for i in range(4):
        a(f"ds_read2_b32 v[{104+2*i}:{105+2*i}], v4 offset0:{64*i} offset1:{64*i+32}")
    a(f"""
    s_waitcnt lgkmcnt({11 if ZN6 else 10})
    buffer_store_dwordx4 v[24:27], v3, s[40:43], 0 offen {ST}
    s_waitcnt lgkmcnt({10 if ZN6 else 9})
    buffer_store_dwordx4 v[28:31], v3, s[40:43], s54 offen {ST}
    {"s_barrier" if "ybar" in o.exp else ""}
    """)
    ld_ef(nd)
    srd(a, sTB, 18, WS_TB, TB_SZ)
    srd(a, 48, sDP, None, 256)
    a(f"""
    s_cmp_lg_u32 s62, 12
    s_cbranch_scc1 k1_nocg
    v_and_b32 v64, 3, v63
    v_lshlrev_b32 v64, 1, v64
    s_waitcnt lgkmcnt(0)
    """)
    for h in range(2):
        for i in range(8):
            a(f"ds_read_u16 v{66+8*h+i}, v64 offset:{L1_CG+8*(8*h+i)}")
        a("s_waitcnt lgkmcnt(0)")
    for k in range(8):
        a(f"v_lshl_or_b32 v{84+k}, v{67+2*k}, 16, v{66+2*k}")
    a(f"""
    v_add_u32 v64, {L_CG}, v61
    s_mov_b64 exec, 15
    ds_write_b128 v64, v[84:87]
    ds_write_b128 v64, v[88:91] offset:64
    s_mov_b64 exec, -1
    k1_nocg:
    s_mov_b32 s4, 0xbfb8aa3b
    s_mov_b32 s5, 0xffff0000
    s_waitcnt lgkmcnt(0)
    """)
    for j in range(6 if ZN6 else 5):
        a(f"v_lshl_add_u32 v{32+j}, v{32+j}, 5, v2")
    for par in range(2):
        for k in range(4):
            for u in range(2):
                if par == 0:
                    a(f"v_lshlrev_b32 v{76+u}, 16, v{104+2*k+u}")
                else:
                    a(f"v_and_b32 v{76+u}, s5, v{104+2*k+u}")
            a(f"""
            v_mul_f32 v76, s4, v76
            v_mul_f32 v77, s4, v77
            v_cvt_pk_bf16_f32 v{W+4*par+k}, v76, v77
            """)
    if o.sig == "ret":
        a(f"s_waitcnt vmcnt({nd})")
        stamp(a, o, 5, True)
        arrive(a, 0, "k1_ns")
        a("s_waitcnt vmcnt(0)")
        if "pb3" in o.exp:
            stamp(a, o, 7, True)
        a(f"""
        s_cmp_eq_u32 s{sSIG}, 0
        s_cbranch_scc1 k1_nb1
        """)
        bcast(a, o, 0, "k1_nb1")
        a("s_barrier")
        stamp(a, o, 3)
        for j in range(5):
            a(f"ds_read_b128 v[{4+4*j}:{7+4*j}], v{32+j}")
        for j in range(5):
            a(f"s_waitcnt lgkmcnt({4-j})")
            a(f"buffer_store_dwordx4 v[{4+4*j}:{7+4*j}], v3, s[36:39], {so16[j]} offen {ST}")
    elif o.sig == "early":
        p = o.k1q
        a(f"s_waitcnt vmcnt({nd})")
        stamp(a, o, 5, True)
        a(f"""
        s_barrier
        s_cmp_lg_u32 s62, 0
        s_cbranch_scc1 k1_e0
        v_mov_b32 v64, 1
        {shard(o)}
        s_mov_b64 exec, 1
        buffer_atomic_add v64, off, s[48:51], s3 sc1
        s_mov_b64 exec, -1
        s_waitcnt vmcnt(1)
        s_branch k1_e1
        k1_e0:
        s_waitcnt vmcnt(0)
        k1_e1:
        {mbaddr(o, "s4", 0, "s5")}
        s_barrier
        """)
        stamp(a, o, 3)
        for j in range(5):
            a(f"ds_read_b128 v[{4+4*j}:{7+4*j}], v{32+j}")
        a(f"s_mov_b32 s{sLATE}, 0")
        bucket4(a)
        for j in range(6):
            if j == o.k1c:
                a(f"""
                s_cmp_lg_u32 s62, 0
                s_cbranch_scc1 k1_e5
                s_mov_b64 exec, 1
                buffer_load_dword v{EE}, off, s[{sTB}:{sTB+3}], s4 sc1
                s_mov_b64 exec, -1
                k1_e5:
                """)
            if j == p:
                a(f"""
                s_cmp_lg_u32 s62, 0
                s_cbranch_scc1 k1_e2
                s_waitcnt vmcnt({p - o.k1c})
                v_readfirstlane_b32 s3, v{EE}
                s_cmp_lg_u32 s3, 1
                s_cbranch_scc1 k1_e3
                s_mov_b32 s{sLATE}, 1
                """)
                stamp(a, o, 6, True)
                tgather(a, o, 63, 24)
                a("k1_e3:")
                if p < 5:
                    a(f"""
                    v_mov_b32 v64, s{sLATE}
                    v_mov_b32 v65, {L_FLAG+8}
                    ds_write_b32 v65, v64
                    s_waitcnt lgkmcnt(0)
                    """)
                a("k1_e2:")
                if p < 5:
                    a(f"""
                    s_barrier
                    v_mov_b32 v65, {L_FLAG+8}
                    ds_read_b32 v65, v65
                    """)
            if j < 5:
                a(f"s_waitcnt lgkmcnt({4-j + (1 if j >= p else 0)})")
                a(f"buffer_store_dwordx4 v[{4+4*j}:{7+4*j}], v3, s[36:39], {so16[j]} offen {ST}")
        if p < 5:
            a(f"s_waitcnt lgkmcnt(0)\nv_readfirstlane_b32 s{sLATE}, v65")
        a(f"""
        s_cmp_lg_u32 s62, 0
        s_cbranch_scc1 k1_e4
        s_cmp_lg_u32 s{sLATE}, 0
        s_cbranch_scc1 k1_e4
        s_mov_b64 exec, 1
        buffer_load_dword v{EE+1}, off, s[{sTB}:{sTB+3}], s4 sc1
        s_mov_b64 exec, -1
        k1_e4:
        """)
    elif o.sig == "hold":
        h = o.k1q
        a(f"s_waitcnt vmcnt({nd})")
        stamp(a, o, 5, True)
        a(f"""
        s_barrier
        s_cmp_lg_u32 s62, 0
        s_cbranch_scc1 k1_e0
        v_mov_b32 v64, 1
        {shard(o)}
        s_mov_b64 exec, 1
        buffer_atomic_add v64, off, s[48:51], s3 sc1
        s_mov_b64 exec, -1
        s_waitcnt vmcnt(1)
        s_branch k1_e1
        k1_e0:
        s_waitcnt vmcnt(0)
        k1_e1:
        s_barrier
        """)
        stamp(a, o, 3)
        for j in range(5):
            a(f"ds_read_b128 v[{4+4*j}:{7+4*j}], v{32+j}")
        bucket4(a)
        for j in range(5):
            if j == h:
                a(f"""
                s_cmp_lg_u32 s62, 1
                s_cbranch_scc1 k1_h1
                s_cmp_lg_u32 s2, {o.ww}
                s_cbranch_scc1 k1_h2
                """)
                watch(a, o, "h")
                a(f"s_mov_b32 s10, {TB_MB}")
                bstore(a, o, "s10")
                a(f"""
                s_branch k1_h2
                k1_h1:
                s_cmp_lg_u32 s62, 0
                s_cbranch_scc1 k1_h2
                """)
                poll(a, o, 0, "k1_pl1")
                stamp(a, o, 6, True)
                tgather(a, o, 63, 24)
                a(f"k1_h2:\ns_mov_b32 s{sLATE}, 1\ns_barrier")
            a(f"s_waitcnt lgkmcnt({4-j})")
            a(f"buffer_store_dwordx4 v[{4+4*j}:{7+4*j}], v3, s[36:39], {so16[j]} offen {ST}")
    else:
        p = o.k1p
        if "ya" in o.exp:
            a(f"s_waitcnt vmcnt({nd})")
            stamp(a, o, 5, True)
        if "ea" in o.exp:
            a(f"""
            s_waitcnt vmcnt({nd})
            s_barrier
            s_cmp_lg_u32 s62, 0
            s_cbranch_scc1 k1_e0
            v_mov_b32 v64, 1
            {shard(o)}
            s_mov_b64 exec, 1
            buffer_atomic_add v64, off, s[48:51], s3 sc1
            s_mov_b64 exec, -1
            s_waitcnt vmcnt(1)
            s_branch k1_e1
            k1_e0:
            s_waitcnt vmcnt(0)
            k1_e1:
            s_barrier
            """)
            p = 9
        else:
            a(f"s_waitcnt vmcnt({2 if nd == 0 else 0})\ns_barrier")
        stamp(a, o, 3)
        for j in range(5):
            a(f"ds_read_b128 v[{4+4*j}:{7+4*j}], v{32+j}")
        a("v_mov_b32 v64, 1")
        for j in range(5):
            if j == p:
                a(f"s_waitcnt vmcnt({p})")
                if "ya" not in o.exp:
                    stamp(a, o, 5, True)
                if not (p == 0 and nd > 0):
                    a("s_barrier")
                a(f"""
                s_cmp_lg_u32 s62, 0
                s_cbranch_scc1 k1_ns
                {shard(o)}
                s_mov_b64 exec, 1
                buffer_atomic_add v64, off, s[48:51], s3 sc1
                s_mov_b64 exec, -1
                k1_ns:
                """)
            if o.k1w >= 0 and j > o.k1w:
                a(f"s_waitcnt vmcnt({o.k1w})")
            a(f"s_waitcnt lgkmcnt({4-j})")
            a(f"buffer_store_dwordx4 v[{4+4*j}:{7+4*j}], v3, s[36:39], {so16[j]} offen {ST}")
        if ZN6:
            a(f"""
            s_cmp_eq_u32 s97, 0
            s_cbranch_scc1 k1_z6
            ds_read_b128 v[24:27], v37
            s_mov_b32 s3, 81920
            s_waitcnt lgkmcnt(0)
            buffer_store_dwordx4 v[24:27], v3, s[36:39], s3 offen {ST}
            k1_z6:
            """)
    a(f"""
    s_cmp_ge_u32 s63, 4
    s_cbranch_scc1 k1_arr
    s_mov_b32 s4, 0x05040100
    s_mov_b32 s5, 0x07060302
    s_lshl_b32 s58, s63, 11
    s_add_u32 s58, s58, {TB_WM}
    """)
    for k in range(4):
        a(f"v_perm_b32 v{84+k}, v{67+2*k}, v{66+2*k}, s4")
        a(f"v_perm_b32 v{88+k}, v{67+2*k}, v{66+2*k}, s5")
    a(f"""
    buffer_store_dwordx4 v[84:87], v61, s[44:47], s58 offen sc1
    buffer_store_dwordx4 v[88:91], v61, s[44:47], s58 offen offset:1024 sc1
    k1_arr:
    v_mov_b64 v[40:41], 0
    v_mov_b64 v[42:43], 0
    v_mov_b32 v44, {L_EF + CAP*32}
    ds_write_b128 v3, v[40:43] offset:{L_AGG}
    ds_write_b128 v3, v[40:43] offset:{L_AGG+16384}
    s_cmp_ge_u32 s62, 8
    s_cbranch_scc1 k1_z
    ds_write_b128 v3, v[40:43] offset:{L_AGG+32768}
    k1_z:
    """)
    if not (o.skew or o.zone):
        a(f"""
        s_mov_b64 exec, 1
        ds_write_b128 v44, v[40:43]
        ds_write_b128 v44, v[40:43] offset:16
        s_mov_b64 exec, -1
        """)


def k2(a, o):
    LD = o.k2ld
    XF = o.xld
    vL = VXO
    PW = o.pw
    a(f"""
    v_and_b32 v{vL}, 63, v0
    s_mov_b32 s{sWAVE}, s62
    s_and_b32 s3, s2, 7
    s_lshl_b32 s3, s3, 5
    s_lshr_b32 s10, s2, 3
    s_or_b32 s3, s3, s10
    s_lshl_b32 s{sB4}, s3, 2
    s_mul_i32 s{sN0}, s3, 320007
    s_add_u32 s10, s{sN0}, {320007+8160}
    s_add_u32 s{sN0}, s{sN0}, 8160
    s_lshr_b32 s{sN0}, s{sN0}, 13
    s_lshr_b32 s10, s10, 13
    s_min_u32 s10, s10, {N}
    s_sub_u32 s10, s10, s{sN0}
    s_lshl_b32 s10, s10, 9
    s_lshl_b32 s11, s{sN0}, 9
    s_mov_b32 s{sW0}, 0
    s_mov_b32 s{sONE}, 1.0
    s_mov_b32 s{sONE+1}, 1.0
    s_mov_b32 s{sXNR}, {0 if "nox" in o.exp else N*512}
    s_movk_i32 s{s512}, 512
    s_mov_b64 s[8:9], s[18:19]
    """)
    srd(a, sX, 68, None, N * 512)
    srd(a, sOUT, 70, "s11", "s10")
    srd(a, sYI, 8, WS_YI, G * CHS * 12)
    srd(a, sEF, 8, WS_EF, G * CHS * 32)
    LOCK = "lock" in o.exp
    HOLD = o.sig == "hold"
    LATE = (o.sig == "early" and o.k1q < 5) or HOLD

    def s2_arrive(x):
        stamp(a, o, 4)
        arrive(a, 128, f"k2_ns{x}")
        if o.timing:
            a("s_mov_b32 s100, s80")
        a(f"""
        s_cmp_eq_u32 s{sSIG}, 0
        s_cbranch_scc1 k2_nb0{x}
        s_waitcnt vmcnt(0)
        """)
        if o.sig == "ret" or x:
            bcast(a, o, 128, f"k2_nb0{x}")
            return
        a(f"""
        v_readfirstlane_b32 s3, v64
        s_and_b32 s3, s3, {G-1}
        s_mov_b32 s10, {mbword(o, 1)}
        s_cmp_eq_u32 s3, {G-1}
        s_cbranch_scc1 k2_bc{x}
        s_cmp_lg_u32 s3, 0
        s_cbranch_scc1 k2_nb0{x}
        """)
        watch(a, o, x)
        a(f"s_mov_b32 s10, {TB_MB}\nk2_bc{x}:")
        bstore(a, o, "s10")
        a(f"k2_nb0{x}:")
    if o.timing:
        a("s_waitcnt lgkmcnt(0)")
        for i in range(4):
            a(f"s_mov_b32 s{96+i}, s{72+2*i}")
    if HOLD:
        a(f"""
        s_cmp_lg_u32 s{sWAVE}, {PW}
        s_cbranch_scc1 k2_p1
        s_waitcnt vmcnt({5 - o.k1q})
        s_branch k2_tw
        """)
    else:
        if LATE:
            a(f"""
            s_cmp_eq_u32 s{sLATE}, 0
            s_cbranch_scc1 k2_el
            s_cmp_lg_u32 s{sWAVE}, {PW}
            s_cbranch_scc1 k2_p1
            s_waitcnt vmcnt({5 - o.k1q})
            s_branch k2_tw
            k2_el:
            """)
        if o.sig == "early":
            a(f"""
            s_cmp_lg_u32 s{sWAVE}, {PW}
            s_cbranch_scc1 k2_wa0
            s_cmp_lg_u32 s{sLATE}, 0
            s_cbranch_scc1 k2_wa4
            s_waitcnt vmcnt(1)
            s_branch k2_wa1
            k2_wa4:
            s_waitcnt vmcnt(4)
            s_branch k2_wa1
            k2_wa0:
            s_waitcnt vmcnt(0)
            k2_wa1:
            """)
        else:
            a("s_waitcnt vmcnt(0)")
        if "dbg" in o.exp:
            a("s_memrealtime s[74:75]")
        s2_arrive("")
        a(f"""
        s_cmp_lg_u32 s{sWAVE}, {PW}
        s_cbranch_scc1 k2_p1
        """)
        if o.sig == "early":
            if not LATE:
                a(f"s_cmp_lg_u32 s{sLATE}, 0\ns_cbranch_scc1 k2_tw")
            a(f"""
            s_waitcnt vmcnt(0)
            v_readfirstlane_b32 s3, v{EE+1}
            s_cmp_eq_u32 s3, 1
            s_cbranch_scc1 k2_tg
            """)
        poll(a, o, 0, "k2_pl1")

    def ph1_w0():
        a("k2_tg:")
        stamp(a, o, 6, True)
        tgather(a, o, vL, 24)
        if LATE:
            a("s_waitcnt vmcnt(0)")
        a(f"""
        k2_tw:
        {chunk_bases(o, vL)}
        v_lshlrev_b32 v19, 4, v{vL}
        v_lshlrev_b32 v18, 2, v{vL}
        v_add_u32 v19, {L_TT}, v19
        v_add_u32 v18, {L_TT}, v18
        {"" if LATE else "s_waitcnt vmcnt(0)"}
        """)
        if "pb3" not in o.exp:
            stamp(a, o, 7, True)
        for i in range(4):
            a(f"v_lshrrev_b32 v{4+i}, 16, v{24+i}")
        a(f"""
        v_add_u32 v10, v4, v5
        v_add_u32 v11, v10, v6
        v_add_u32 v16, v11, v7
        v_mov_b32 v17, v16
        """)
        fill = [f"v_and_b32 v{i}, 0xffff, v{24+i}" for i in range(4)] + [f"v_add_u32 v{12+i}, v{12+i}, v{i}" for i in range(4)]
        a(fill.pop(0) + "\n" + fill.pop(0))
        for d in DPPS:
            a(f"v_add_u32_dpp v17, v17, v17 {d}")
            if fill:
                a(fill.pop(0) + "\n" + fill.pop(0))
            else:
                a("s_nop 1")
        a(f"""
        v_sub_u32 v8, v17, v16
        ds_write_b32 v18, v17 offset:2048
        v_add_u32 v9, v8, v4
        v_add_u32 v10, v8, v10
        v_add_u32 v11, v8, v11
        """)
        for i in range(4):
            a(f"v_sub_u32 v{12+i}, v{12+i}, v{8+i}")
        a("ds_write_b128 v19, v[8:11]")
        for i in range(4):
            a(f"v_subrev_u32 v{4+i}, s{sW0}, v{8+i}")
        a("ds_write_b128 v19, v[12:15] offset:1024")
        for i in range(4):
            a(f"v_min_u32 v{4+i}, {CAP}, v{4+i}")
        for i in range(4):
            a(f"v_lshlrev_b32 v{4+i}, 2, v{4+i}")
        for i in range(4):
            a(f"ds_max_u32 v{4+i}, v{12+i} offset:{L_XS}")
        a(f"""
        k2_p1:
        s_mul_i32 s58, s{sWAVE}, {SEG}
        v_lshlrev_b32 v4, 4, v{vL}
        v_add_u32 v16, s58, v{vL}
        v_mov_b32 v19, {L_TT + 2048 + 252}
        v_add_u32 v4, {L_TT}, v4
        v_lshlrev_b32 v5, 2, v16
        v_add_u32 v17, 64, v16
        v_add_u32 v18, 128, v16
        s_add_u32 s59, s58, s{sW0}
        s_add_u32 s10, s58, {SEG}
        s_waitcnt lgkmcnt(0)
        s_barrier
        """)
        stamp(a, o, 0)
        if o.skew or o.zone:
            a(f"""
            v_mov_b32 v44, {L_EF + CAP*32}
            v_mov_b64 v[40:41], 0
            v_mov_b64 v[42:43], 0
            s_mov_b64 exec, 1
            ds_write_b128 v44, v[40:43]
            ds_write_b128 v44, v[40:43] offset:16
            s_mov_b64 exec, -1
            """)
        a(f"""
        ds_read_b128 v[8:11], v4
        ds_read_b32 v19, v19
        ds_read_b128 v[12:15], v4 offset:1024
        """)
        for i in range(3):
            a(f"ds_read_b32 v{i}, v5 offset:{L_XS+256*i}")
        a("s_waitcnt lgkmcnt(5)")
        for i in range(4):
            a(f"v_cmp_ge_u32 s[{62+2*i}:{63+2*i}], s59, v{8+i}")
        a(f"""
        s_waitcnt lgkmcnt(3)
        v_readfirstlane_b32 s{sTOT}, v19
        """)
        for i in range(4):
            a(f"v_cndmask_b32 v{4+i}, 0, v{12+i}, s[{62+2*i}:{63+2*i}]")
        a(f"""
        s_sub_u32 s{sLIM}, s{sTOT}, s{sW0}
        s_min_u32 s{sLIM}, s{sLIM}, {CAP}
        s_min_u32 s10, s10, s{sLIM}
        v_max3_u32 v4, v4, v5, v6
        v_max_u32 v3, v4, v7
        v_cmp_gt_u32 s[{sM}:{sM+1}], s10, v16
        v_cmp_gt_u32 s[{sM+2}:{sM+3}], s10, v17
        v_cmp_gt_u32 s[{sM+4}:{sM+5}], s10, v18
        s_waitcnt lgkmcnt(0)
        """)

    def ph1_all():
        a("k2_tg:")
        stamp(a, o, 6, True)
        tgather(a, o, vL, 24)
        a(f"""
        s_waitcnt vmcnt(0)
        k2_tw:
        v_lshlrev_b32 v1, 2, v{vL}
        v_add_u32 v1, {L_TT}, v1
        """)
        for i in range(4):
            a(f"ds_write_b32 v1, v{24+i} offset:{256*i}")
        if "pb3" not in o.exp:
            stamp(a, o, 7, True)
        a(f"""
        k2_p1:
        v_lshlrev_b32 v1, 4, v{vL}
        v_add_u32 v1, {L_TT}, v1
        s_mul_i32 s58, s{sWAVE}, {SEG}
        s_add_u32 s59, s58, s{sW0}
        s_waitcnt lgkmcnt(0)
        s_barrier
        """)
        stamp(a, o, 0)
        a(f"""
        ds_read_b128 v[0:3], v1
        v_mul_u32_u24 v12, {4*CH}, v{vL}
        v_add_u32 v13, {CH}, v12
        v_add_u32 v14, {2*CH}, v12
        v_add_u32 v15, {3*CH}, v12
        s_waitcnt lgkmcnt(0)
        """)
        for i in range(4):
            a(f"v_lshrrev_b32 v{4+i}, 16, v{i}")
        for i in range(4):
            a(f"v_and_b32 v{i}, 0xffff, v{i}")
        a(f"""
        v_add_u32 v10, v4, v5
        v_add_u32 v11, v10, v6
        v_add_u32 v16, v11, v7
        v_mov_b32 v17, v16
        """)
        for i in range(4):
            a(f"v_add_u32 v{12+i}, v{12+i}, v{i}")
        scan(a, "v_add_u32", [17])
        a(f"""
        v_sub_u32 v8, v17, v16
        v_readlane_b32 s{sTOT}, v17, 63
        v_add_u32 v9, v8, v4
        v_add_u32 v10, v8, v10
        v_add_u32 v11, v8, v11
        """)
        for i in range(4):
            a(f"v_sub_u32 v{12+i}, v{12+i}, v{8+i}")
        for i in range(4):
            a(f"v_cmp_ge_u32 s[{62+2*i}:{63+2*i}], s59, v{8+i}")
        for i in range(4):
            a(f"v_subrev_u32 v{8+i}, s{sW0}, v{8+i}")
        for i in range(4):
            a(f"v_min_u32 v{8+i}, {CAP}, v{8+i}")
        for i in range(4):
            a(f"v_lshlrev_b32 v{8+i}, 2, v{8+i}")
        for i in range(4):
            a(f"ds_max_u32 v{8+i}, v{12+i} offset:{L_XS}")
        a(f"""
        v_add_u32 v16, s58, v{vL}
        v_lshlrev_b32 v17, 2, v16
        """)
        for i in range(3):
            a(f"ds_read_b32 v{i}, v17 offset:{L_XS+256*i}")
        for i in range(4):
            a(f"v_cndmask_b32 v{4+i}, 0, v{12+i}, s[{62+2*i}:{63+2*i}]")
        a(f"""
        v_max3_u32 v4, v4, v5, v6
        v_max_u32 v3, v4, v7
        s_sub_u32 s{sLIM}, s{sTOT}, s{sW0}
        s_min_u32 s{sLIM}, s{sLIM}, {CAP}
        s_add_u32 s10, s58, {SEG}
        s_min_u32 s10, s10, s{sLIM}
        v_add_u32 v17, 64, v16
        v_add_u32 v18, 128, v16
        v_cmp_gt_u32 s[{sM}:{sM+1}], s10, v16
        v_cmp_gt_u32 s[{sM+2}:{sM+3}], s10, v17
        v_cmp_gt_u32 s[{sM+4}:{sM+5}], s10, v18
        s_waitcnt lgkmcnt(0)
        """)

    if "w0" in o.exp:
        ph1_w0()
    else:
        ph1_all()
    scan(a, "v_max_u32", [3, 0, 1, 2])
    a(f"""
    v_readlane_b32 s62, v3, 63
    v_readlane_b32 s63, v0, 63
    v_readlane_b32 s64, v1, 63
    v_lshrrev_b32 v7, 1, v{vL}
    v_lshlrev_b32 v7, 2, v7
    v_add_u32 v8, 128, v7
    s_max_u32 s63, s63, s62
    s_max_u32 s64, s64, s63
    v_max_u32 v0, s62, v0
    v_max_u32 v1, s63, v1
    v_max_u32 v2, s64, v2
    v_mov_b32 v3, 0xf00000
    """)
    for i in range(3):
        a(f"v_add3_u32 v{i}, v{i}, v{16+i}, s{sW0}")
    for i in range(3):
        a(f"v_cndmask_b32 v{i}, v3, v{i}, s[{sM+2*i}:{sM+2*i+1}]")
    for i in range(3):
        a(f"v_mul_u32_u24 v{4+i}, 12, v{i}")
    for i in range(3):
        a(f"buffer_load_dwordx3 v[{20+4*i}:{22+4*i}], v{4+i}, s[{sYI}:{sYI+3}], 0 offen {LD}")
    stamp(a, o, 1)
    for j in range(6):
        a(f"ds_bpermute_b32 v{32+j}, v{7+j%2}, v{j//2}")
    a(f"""
    v_and_b32 v9, 1, v{vL}
    v_lshlrev_b32 v9, 4, v9
    s_lshl_b32 s3, s58, 5
    s_add_u32 m0, s3, {L_EF}
    v_mov_b32 v62, 1
    s_waitcnt lgkmcnt(0)
    """)
    for j in range(6):
        a(f"v_lshl_or_b32 v{32+j}, v{32+j}, 5, v9")

    def dma(j):
        if j == 5:
            a(f"s_mov_b64 exec, {hex((1 << (2*(SEG-160))) - 1)}")
        a(f"buffer_load_dwordx4 v{32+j}, s[{sEF}:{sEF+3}], 0 offen {o.efld} lds")
        a("s_add_u32 m0, m0, 1024" if j < 5 else "s_mov_b64 exec, -1")
        a("s_nop 0")
    if LATE:
        a(f"""
        s_cmp_eq_u32 s{sLATE}, 0
        s_cbranch_scc1 k2_nb0l
        s_waitcnt vmcnt(3)
        """)
        srd(a, 48, sDP, None, 256)
        s2_arrive("l")
    a(f"s_waitcnt vmcnt(0)")
    for i in range(3):
        a(f"v_lshrrev_b32 v{40+i}, 24, v{22+4*i}")
    for i in range(3):
        a(f"v_bfe_u32 v{56+i}, v{22+4*i}, 16, 8")
    for i in range(3):
        a(f"v_lshlrev_b32 v{44+i}, v{40+i}, v62")
    for i in range(3):
        a(f"""
        s_mov_b64 exec, s[{sM+2*i}:{sM+2*i+1}]
        s_cbranch_execz k2_h
        ds_add_rtn_u32 v{59+i}, v{56+i}, v{44+i} offset:{L_CNT}
        """)
    a(f"""
    k2_h:
    s_mov_b64 exec, -1
    s_mov_b32 s3, 0x05040100
    """)
    for i in range(3):
        a(f"v_perm_b32 v{22+4*i}, v{16+i}, v{22+4*i}, s3")
    a(f"""
    v_lshlrev_b32 v0, 2, v{vL}
    s_mov_b32 s{sCG}, {L_CG}
    """)
    stamp(a, o, 2)
    a(f"""
    s_cmp_lg_u32 s{sWAVE}, {PW}
    s_cbranch_scc1 k2_np2
    s_cmp_lg_u32 s{sW0}, 0
    s_cbranch_scc1 k2_np2
    """)
    poll(a, o, 128, "k2_pl2")
    a("k2_np2:\ns_waitcnt lgkmcnt(0)\ns_barrier")
    stamp(a, o, 3)
    ka, kb, kc = [int(x) for x in o.k2n.split(",")]
    for j in range(ka):
        dma(j)
    a(f"""
    ds_read_b32 v64, v0 offset:{L_CNT}
    s_mov_b32 s62, {XHALF}
    """)
    for i in range(3):
        a(f"v_bfe_u32 v{59+i}, v{59+i}, v{40+i}, 16")
    a(f"""
    v_and_b32 v10, 31, v{vL}
    v_lshrrev_b32 v11, 5, v{vL}
    s_waitcnt lgkmcnt(0)
    v_add_u32 v65, 0x10001, v64
    v_and_b32 v65, 0xfffefffe, v65
    v_mov_b32 v66, v65
    v_and_b32 v68, 0xffff, v64
    v_and_b32 v70, 0xffff, v65
    """)
    scan(a, "v_add_u32", [66])
    a(f"""
    v_sub_u32 v67, v66, v65
    v_readlane_b32 s{sP}, v66, 63
    v_lshrrev_b32 v69, 16, v64
    v_lshrrev_b32 v71, 16, v65
    {"s_nop 0" if LOCK else "v_cmp_eq_u32 vcc, 0, v68"}
    s_and_b32 s4, s{sP}, 0xffff
    s_lshr_b32 s5, s{sP}, 16
    s_add_u32 s4, s4, 7
    s_add_u32 s5, s5, 7
    s_lshr_b32 s4, s4, 3
    s_lshr_b32 s5, s5, 3
    {"v_mov_b32 v12, 0" if LOCK else "v_cndmask_b32 v12, v62, 0, vcc" if "chain" in o.exp else "v_cndmask_b32 v12, 0, v62, vcc"}
    s_lshl_b32 s3, s4, 19
    v_add_u32 v67, s3, v67
    ds_write_b32 v0, v12 offset:{L_FLAG}
    """)
    for i in range(3):
        a(f"ds_bpermute_b32 v{i}, v{56+i}, v67")
    a(f"""
    s_lshr_b32 s6, s4, 4
    s_lshr_b32 s7, s5, 4
    """)
    if not LOCK:
        a(f"""
        s_lshl_b32 s10, s6, 3
        s_lshl_b32 s11, s7, 3
        v_cmp_lt_u32 vcc, s10, v70
        v_cmp_lt_u32 s[68:69], s11, v71
        """)
    a(f"""
    s_and_b32 s3, s4, 15
    s_mul_i32 s63, s6, s{sWAVE}
    s_min_u32 s10, s3, s{sWAVE}
    s_add_u32 s63, s63, s10
    s_cmp_lt_u32 s{sWAVE}, s3
    s_addc_u32 s64, s6, 0
    s_and_b32 s3, s5, 15
    s_add_u32 s3, s3, s{sWAVE}
    s_mul_i32 s65, s7, s{sWAVE}
    s_sub_u32 s10, s3, 16
    s_max_i32 s10, s10, 0
    s_add_u32 s65, s65, s10
    s_cmp_ge_u32 s3, 16
    s_addc_u32 s66, s7, 0
    """)
    if not LOCK:
        a(f"""
        s_or_b64 vcc, vcc, s[68:69]
        s_cmp_lg_u64 vcc, 0
        s_cselect_b32 s{sSLOW}, 1, 0
        """)
    a(f"""
    s_add_u32 s{sNG}, s64, s66
    s_add_u32 s3, s4, s65
    s_add_u32 s10, s63, s64
    s_sub_u32 s10, s10, s4
    s_lshl_b32 s10, s10, 3
    s_lshl_b32 s11, s65, 3
    s_bfm_b64 s[68:69], s64, 0
    s_bfm_b64 vcc, s66, 32
    s_mov_b64 exec, 0xffffffff
    v_add_u32 v12, s63, v10
    v_mov_b32 v13, s11
    s_not_b64 exec, exec
    v_add_u32 v12, s3, v10
    v_mov_b32 v13, s10
    s_mov_b64 exec, -1
    v_lshlrev_b32 v12, 1, v12
    s_or_b64 exec, vcc, s[68:69]
    s_cbranch_execz k2_nosh
    ds_write_b16 v12, v13 offset:{L_SH}
    k2_nosh:
    s_mov_b64 exec, -1
    s_waitcnt lgkmcnt(0)
    """)
    for i in range(3):
        a(f"v_bfe_u32 v{i}, v{i}, v{40+i}, 16")
    for i in range(3):
        a(f"v_add_u32 v{i}, v{i}, v{59+i}")
    a(f"""
    s_mov_b64 s[6:7], 0
    s_cmp_lt_u32 s{sWAVE}, 14
    s_cbranch_scc1 k2_nopad0
    s_sub_u32 s3, s{sWAVE}, 14
    s_mul_i32 s10, s3, s5
    s_add_u32 s10, s10, s4
    s_lshl_b32 s10, s10, 3
    s_lshl_b32 s3, s3, 4
    v_bfe_u32 v12, v64, s3, 16
    v_bfe_u32 v13, v67, s3, 16
    v_subrev_u32 v14, 40, v{vL}
    v_cmp_gt_u32 vcc, 8, v14
    v_max_i32 v14, 0, v14
    v_add3_u32 v3, v12, v13, v14
    v_and_b32 v12, 1, v12
    v_cmp_gt_u32 s[68:69], s10, v3
    v_cmp_eq_u32 s[6:7], 1, v12
    s_and_b64 vcc, vcc, s[68:69]
    s_or_b64 s[6:7], s[6:7], vcc
    k2_nopad0:
    """)
    for i in range(4):
        a(f"v_lshrrev_b32 v{4+i}, 2, v{i}")
    for i in range(4):
        a(f"v_and_b32 v{4+i}, 0x7fe, v{4+i}")
    a("s_barrier")
    for i in range(4):
        a(f"ds_read_i16 v{4+i}, v{4+i} offset:{L_SH}")
    for j in range(ka, ka + kb):
        dma(j)
    a(f"""
    v_and_b32 v70, 0xffff, v66
    v_lshrrev_b32 v71, 16, v66
    s_lshl_b32 s10, s63, 3
    s_lshl_b32 s11, s65, 3
    v_cmp_lt_u32 s[{sNM}:{sNM+1}], s10, v70
    v_cmp_lt_u32 vcc, 0, v68
    v_cmp_lt_u32 s[{sNB}:{sNB+1}], s11, v71
    v_cmp_lt_u32 s[68:69], 0, v69
    s_mov_b64 s[{sBM}:{sBM+1}], 0
    s_mov_b32 s{sBM+2}, 0
    s_mov_b32 s{sEA}, 0
    s_and_b64 s[{sNM}:{sNM+1}], s[{sNM}:{sNM+1}], vcc
    s_and_b64 s[{sNB}:{sNB+1}], s[{sNB}:{sNB+1}], s[68:69]
    s_mov_b64 s[68:69], s[{sNM}:{sNM+1}]
    s_lshl_b32 s67, s63, 2
    s_add_u32 s67, s67, 1
    s_lshl_b32 s11, s64, 2
    """)

    def bm(tag, vend, cnt):
        a(f"""
        k2_bl{tag}:
        s_ff1_i32_b64 s3, s[68:69]
        s_cmp_lt_i32 s3, 0
        s_cbranch_scc1 k2_bld{tag}
        v_readlane_b32 s10, v{vend}, s3
        s_bitset0_b64 s[68:69], s3
        s_lshr_b32 s10, s10, 1
        s_sub_u32 s10, s10, s67
        s_cmp_ge_u32 s10, s11
        s_cbranch_scc1 k2_bld{tag}
        {f"s_add_u32 s{sEA}, s{sEA}, 1" if cnt else ""}
        s_cmp_ge_u32 s10, 64
        s_cbranch_scc1 k2_bh{tag}
        s_bitset1_b64 s[{sBM}:{sBM+1}], s10
        s_branch k2_bl{tag}
        k2_bh{tag}:
        s_bitset1_b32 s{sBM+2}, s10
        s_branch k2_bl{tag}
        k2_bld{tag}:
        s_sub_u32 s10, s11, 1
        s_cmp_ge_u32 s10, 64
        s_cbranch_scc1 k2_bh2{tag}
        s_bitcmp0_b64 s[{sBM}:{sBM+1}], s10
        s_branch k2_bdone{tag}
        k2_bh2{tag}:
        s_bitcmp0_b32 s{sBM+2}, s10
        k2_bdone{tag}:
        """)
    bm("a", 70, True)
    a(f"""
    s_cselect_b32 s{sOPA}, s3, -1
    s_cmp_eq_u32 s64, 0
    s_cselect_b32 s{sOPA}, -1, s{sOPA}
    s_cmp_ge_i32 s{sOPA}, 0
    {"" if LOCK else f"s_cselect_b32 s{sPK}, 1, 0"}
    s_cbranch_scc0 k2_nopk
    {f"s_add_u32 s{sEA}, s{sEA}, 1" if LOCK else ""}
    s_cmp_ge_u32 s10, 64
    s_cbranch_scc1 k2_pkh
    s_bitset1_b64 s[{sBM}:{sBM+1}], s10
    s_branch k2_nopk
    k2_pkh:
    s_bitset1_b32 s{sBM+2}, s10
    k2_nopk:
    """)
    if "chain" in o.exp:
        a(f"""
        s_cmp_eq_u32 s{sSLOW}, 0
        s_cselect_b32 s3, s{sPK}, 0
        s_cmp_eq_u32 s3, 0
        s_cbranch_scc1 k2_noreg
        s_lshl_b32 s3, s{sOPA}, 2
        v_mov_b32 v12, s3
        s_mov_b64 exec, 1
        ds_add_u32 v12, v62 offset:{L_FLAG}
        s_mov_b64 exec, -1
        k2_noreg:
        """)
    a(f"""
    s_mov_b64 s[68:69], s[{sNB}:{sNB+1}]
    s_sub_u32 s67, s65, s64
    s_lshl_b32 s67, s67, 2
    s_add_u32 s67, s67, 1
    s_lshl_b32 s11, s{sNG}, 2
    """)
    bm("b", 71, False)
    a(f"""
    s_cselect_b32 s{sOPEN}, s66, 0
    s_add_u32 s65, s65, s63
    """)
    for j in range(ka + kb, ka + kb + kc):
        dma(j)
    a("s_waitcnt lgkmcnt(0)")
    for i in range(4):
        a(f"v_add_u32 v{i}, v{i}, v{4+i}")
    for i in range(4):
        a(f"""
        v_and_b32 v{4+i}, 1, v{i}
        v_lshrrev_b32 v{12+i}, 1, v{i}
        v_lshlrev_b32 v{12+i}, 2, v{12+i}
        v_mad_u32_u24 v{4+i}, v{4+i}, s62, v{12+i}
        v_lshlrev_b32 v{i}, 3, v{i}
        """)
    for i in range(3):
        a(f"""
        s_mov_b64 exec, s[{sM+2*i}:{sM+2*i+1}]
        s_cbranch_execz k2_w0
        ds_write_b32 v{4+i}, v{22+4*i} offset:{L_XS}
        ds_write_b64 v{i}, v[{20+4*i}:{21+4*i}] offset:{L_YS}
        """)
    a(f"""
    k2_w0:
    s_mov_b64 exec, s[6:7]
    s_cbranch_execz k2_nopad
    v_mov_b32 v13, {hex(0x7fff | CAP << 16)}
    v_mov_b64 v[14:15], 0
    ds_write_b32 v7, v13 offset:{L_XS}
    ds_write_b64 v3, v[14:15] offset:{L_YS}
    k2_nopad:
    s_mov_b64 exec, -1
    """)
    for j in range(ka + kb + kc, 6):
        dma(j)
    a(f"""
    s_lshl_b32 s3, s65, 4
    s_add_u32 s3, s3, {L_XS}
    v_mov_b32 v12, s3
    v_mad_u32_u24 v{VX}, v11, s62, v12
    v_lshrrev_b32 v13, 3, v10
    v_lshl_add_u32 v12, v13, 4, v12
    v_and_b32 v13, 3, v10
    v_lshl_add_u32 v12, v13, 2, v12
    v_bfe_u32 v13, v10, 2, 1
    v_mad_u32_u24 v{VEF}, v13, s62, v12
    s_lshl_b32 s3, s65, 6
    s_add_u32 s3, s3, {L_YS}
    v_lshlrev_b32 v12, 3, v11
    v_lshl_add_u32 v12, v10, 4, v12
    v_add_u32 v{VY}, s3, v12
    v_lshlrev_b32 v12, 4, v11
    v_add_u32 v{VHB}, {L_EF}, v12
    v_lshlrev_b32 v{VJ4}, 4, v{vL}
    v_lshlrev_b32 v{VXO}, 4, v10
    """)
    for k in range(4):
        a(f"v_mov_b64 {v(ACC+2*k,2)}, 0")
    a(f"""
    v_and_or_b32 v{ZE+8}, v{VXO}, 48, s{sCG}
    s_mov_b32 s{sREM}, s{sNG}
    s_lshr_b32 s{sTH}, s{sNG}, 1
    s_mov_b32 s{sPR}, 3
    {"s_setprio 3" if "prio" in o.exp else ""}
    s_waitcnt lgkmcnt(0)
    s_barrier
    """)
    stamp(a, o, 5, "pc")
    XS = f"s[{sX}:{sX+3}]"

    def xadr(r):
        a(f"v_mad_u32_u16 v{r}, v{r}, s{s512}, v{VXO}")

    def efnext(off):
        a(f"""
        v_mad_u32_u16 v{EE}, v{VRI}, 32, v{VHB} op_sel:[1,0,0,0]
        ds_read_b128 {v(EF,4)}, v{EE}
        ds_read_b32 v{VRI}, v{VEF} offset:{off}
        """)
    a(f"""
    ds_read_b128 {v(XI,4)}, v{VX}
    ds_read_b128 {v(XI+4,4)}, v{VX} offset:16
    ds_read_b32 v{VRI}, v{VEF}
    ds_read_b64 {v(YY,2)}, v{VY}
    ds_read_b128 {v(ZE,4)}, v{ZE+8}
    ds_read_b128 {v(ZE+4,4)}, v{ZE+8} offset:64
    s_cmp_gt_u32 s{sREM}, 0
    s_cselect_b32 s{sX+2}, s{sXNR}, 0
    s_waitcnt lgkmcnt(5)
    """)
    def x03(k0, k1):
        for k in range(k0, k1):
            xadr(XI + k)
            a(f"buffer_load_dwordx4 {v(X+4*k,4)}, v{XI+k}, {XS}, 0 offen {XF}")
        if k1 == 4:
            a(f"""
            s_cmp_gt_u32 s{sREM}, 1
            s_cselect_b32 s{sX+2}, s{sXNR}, 0
            """)
    x03(0, min(o.nx, 4))
    a("s_waitcnt lgkmcnt(4)")

    def x47():
        for k in range(4, 8):
            xadr(XI + k)
            a(f"buffer_load_dwordx4 {v(X+4*k,4)}, v{XI+k}, {XS}, 0 offen {XF}")
        a(f"ds_read_b128 {v(XI,4)}, v{VX} offset:32")
    if o.nx == 8:
        x47()
    stamp(a, o, 6, "pc")
    a(f"s_waitcnt vmcnt({o.nx})")
    stamp(a, o, 7, "pc")
    a("s_barrier")
    stamp(a, o, 4)
    a(f"""
    s_cmp_eq_u32 s{sNG}, 0
    s_cbranch_scc1 k2_done
    s_waitcnt lgkmcnt(0)
    """)
    efnext(64)
    if o.nx < 4:
        x03(o.nx, 4)
    if o.nx <= 4:
        x47()

    def group_start(g):
        b = XI + 4 * (g % 2)
        nb = XI + 4 * ((g + 1) % 2)
        if "noadd" in o.exp:
            a("s_nop 3")
        else:
            for k in range(4):
                xadr(b + k)
        a(f"ds_read_b128 {v(nb,4)}, v{VX} offset:{16*(g+3)}")
        a(f"s_cmp_gt_u32 s{sREM}, 2\ns_cselect_b32 s{sX+2}, s{sXNR}, 0")

    def mf(d, ar, br, c):
        a(f"v_mfma_f32_32x32x16_bf16 {v(d,16)}, {v(ar,4)}, {v(br,4)}, {c}")

    def rprol():
        a(f"""
        v_exp_f32 v{EE}, v{ZE}
        v_exp_f32 v{EE+1}, v{ZE+1}
        v_exp_f32 v{EE+2}, v{ZO}
        v_exp_f32 v{EE+3}, v{ZO+1}
        v_pk_add_f32 {v(EE,2)}, {v(EE,2)}, s[{sONE}:{sONE+1}]
        v_pk_add_f32 {v(EE+2,2)}, {v(EE+2,2)}, s[{sONE}:{sONE+1}]
        v_rcp_f32 v{EE}, v{EE}
        v_rcp_f32 v{EE+1}, v{EE+1}
        v_rcp_f32 v{EE+2}, v{EE+2}
        v_rcp_f32 v{EE+3}, v{EE+3}
        v_pk_mul_f32 {v(ZE,2)}, {v(ZE,2)}, {v(EE,2)}
        v_pk_mul_f32 {v(ZO,2)}, {v(ZO,2)}, {v(EE+2,2)}
        """)

    a("k2_blk:")
    for t in range(32):
        g, r = t // 4, t % 16
        if t == 0:
            a("s_waitcnt lgkmcnt(0)")
            for i in range(4):
                a(f"v_mfma_f32_4x4x4_16b_bf16 {v(ZO+4*i,4)}, {v(YY,2)}, {v(ZE+2*i,2)}, 0")
            a(f"ds_read_b64 {v(YY,2)}, v{VY} offset:512")
            a(f"v_add_u32 v{VY}, 512, v{VY}")
            mf(ZE, EF, W, "0")
            for m in range(4):
                a(f"v_cvt_pk_bf16_f32 v{TA+2*m}, v{ZO+m}, v{ZO+4+m}")
            for m in range(4):
                a(f"v_cvt_pk_bf16_f32 v{TA+2*m+1}, v{ZO+8+m}, v{ZO+12+m}")
            mf(ZO, EF, W + 4, "0")
            efnext(128)
            group_start(g)
            a("s_nop 3")
            rprol()
        elif t == 16:
            a("s_waitcnt lgkmcnt(0)")
            mf(ZE, EF, W, "0")
            mf(ZO, EF, W + 4, "0")
            efnext(192)
            a(f"v_add_u32 v{VEF}, 128, v{VEF}")
            group_start(g)
            a("s_nop 2")
            rprol()
        elif t % 4 == 0:
            a("s_waitcnt lgkmcnt(0)")
            group_start(g)
            if t == 28:
                a(f"""
                v_and_or_b32 v{ZE+8}, v{VXO}, 48, s{sCG}
                ds_read_b128 {v(ZE,4)}, v{ZE+8}
                ds_read_b128 {v(ZE+4,4)}, v{ZE+8} offset:64
                """)
        k = t % 8
        xr = X + 4 * k
        ar = TA + 2 * (t % 4)
        p0 = r & ~1
        last = p0 == 14
        tr = "v_exp_f32" if r % 2 == 0 else "v_rcp_f32"

        def trn(e, z):
            if last or "notrans" in o.exp:
                return
            src = z if r % 2 == 0 else e
            a(f"{tr} v{e}, v{src}")

        def mid(e, z):
            if last:
                return
            if "v2mid" in o.exp:
                for u in range(2):
                    a(f"v_add_f32 v{e+u}, 1.0, v{e+u}" if r % 2 == 0 else f"v_mul_f32 v{z+u}, v{z+u}, v{e+u}")
            elif r % 2 == 0:
                a(f"v_pk_add_f32 {v(e,2)}, {v(e,2)}, s[{sONE}:{sONE+1}]")
            else:
                a(f"v_pk_mul_f32 {v(z,2)}, {v(z,2)}, {v(e,2)}")

        sel = "op_sel_hi:[0,1,1]" if r % 2 == 0 else "op_sel:[1,0,0] op_sel_hi:[1,1,1]"

        def fma(acc, z, tp):
            if "nofma" in o.exp:
                return
            if "v2fma" in o.exp:
                for u in range(2):
                    a(f"v_fmac_f32 v{acc+u}, v{z+r%2}, v{tp+u}")
                return
            a(f"v_pk_fma_f32 {v(acc,2)}, {v(z,2)}, {v(tp,2)}, {v(acc,2)} {sel}")

        cb = "" if "nocbsz" in o.exp else f"cbsz:3 abid:{t//4}"
        a("s_waitcnt vmcnt(7)")
        if "nomf" not in o.exp:
            a(f"v_mfma_f32_4x4x4_16b_bf16 {v(TP,4)}, {v(ar,2)}, {v(xr,2)}, 0 {cb}")
        trn(EE, ZE + p0 + 2)
        trn(EE + 1, ZE + p0 + 3)
        if "nomf" not in o.exp:
            a(f"v_mfma_f32_4x4x4_16b_bf16 {v(TP+4,4)}, {v(ar,2)}, {v(xr+2,2)}, 0 {cb}")
        if "noload" not in o.exp:
            a(f"buffer_load_dwordx4 {v(xr,4)}, v{XI+4*(g%2)+t%4}, {XS}, 0 offen {XF}")
        trn(EE + 2, ZO + p0 + 2)
        trn(EE + 3, ZO + p0 + 3)
        mid(EE, ZE + p0 + 2)
        if last:
            a("s_nop 2")
        fma(ACC, ZE + p0, TP)
        fma(ACC + 2, ZE + p0, TP + 2)
        mid(EE + 2, ZO + p0 + 2)
        fma(ACC + 4, ZO + p0, TP + 4)
        fma(ACC + 6, ZO + p0, TP + 6)
        if "nobr" in o.exp:
            a(f"k2_bk{t}:")
        else:
            a(f"s_bitcmp1_b32 s{sBM}, {t}\ns_cbranch_scc1 k2_fl{t}\nk2_bk{t}:")
        if t % 4 == 3:
            if "prio" in o.exp:
                a(f"s_sub_u32 s{sREM}, s{sREM}, 1\ns_cmp_eq_u32 s{sREM}, s{sTH}\ns_cbranch_scc1 k2_th{g}\nk2_tb{g}:")
            else:
                a(f"s_sub_u32 s{sREM}, s{sREM}, 1\ns_cmp_eq_u32 s{sREM}, 0\ns_cbranch_scc1 k2_done")
    a(f"""
    s_mov_b32 s{sBM}, s{sBM+1}
    s_mov_b32 s{sBM+1}, s{sBM+2}
    v_add_u32 v{VX}, 128, v{VX}
    s_branch k2_blk
    """)
    if "prio" in o.exp:
        for g in range(8):
            a(f"k2_th{g}:\ns_cmp_eq_u32 s{sTH}, 0\ns_cbranch_scc1 k2_done\ns_call_b64 s[{sRET}:{sRET+1}], k2_thr\ns_branch k2_tb{g}")
        a(f"""
        k2_thr:
        s_lshr_b32 s{sTH}, s{sTH}, 1
        s_sub_u32 s{sPR}, s{sPR}, 1
        s_cmp_eq_u32 s{sPR}, 2
        s_cbranch_scc1 k2_p2
        s_cmp_eq_u32 s{sPR}, 1
        s_cbranch_scc1 k2_p1x
        s_mov_b32 s{sTH}, 0
        s_setprio 0
        s_setpc_b64 s[{sRET}:{sRET+1}]
        k2_p2:
        s_setprio 2
        s_setpc_b64 s[{sRET}:{sRET+1}]
        k2_p1x:
        s_setprio 1
        s_setpc_b64 s[{sRET}:{sRET+1}]
        """)
    for t in range(32):
        a(f"k2_fl{t}:\ns_call_b64 s[{sRET}:{sRET+1}], k2_flush\ns_branch k2_bk{t}")
    def node_addr(sn):
        a(f"""
        s_lshl_b32 s58, s{sn}, 10
        s_and_b32 s59, s{sn}, 7
        s_lshl_b32 s59, s59, 4
        s_or_b32 s58, s58, s59
        s_lshl_b32 s59, s{sn}, 2
        v_xor_b32 v{TP}, s58, v{VJ4}
        """)

    def reduce_acc(dst):
        for q in range(4):
            a(f"v_permlane32_swap_b32 v{ACC+q}, v{ACC+4+q}")
        a(f"""
        v_pk_add_f32 {v(dst,2)}, {v(ACC,2)}, {v(ACC+4,2)}
        v_pk_add_f32 {v(dst+2,2)}, {v(ACC+2,2)}, {v(ACC+6,2)}
        v_mov_b64 {v(ACC+4,2)}, 0
        v_mov_b64 {v(ACC+6,2)}, 0
        """)

    def rmw(src):
        a(f"""
        v_pk_add_f32 {v(TP+4,2)}, {v(TP+4,2)}, {v(src,2)}
        v_pk_add_f32 {v(TP+6,2)}, {v(TP+6,2)}, {v(src+2,2)}
        v_mov_b64 {v(src,2)}, 0
        v_mov_b64 {v(src+2,2)}, 0
        ds_write_b128 v{TP}, {v(TP+4,4)} offset:{L_AGG}
        """)
    RET = f"s_setpc_b64 s[{sRET}:{sRET+1}]"
    CHAIN = "chain" in o.exp
    SPIN = ""
    if o.spin:
        SPIN = f"""s_add_u32 s{sSPIN}, s{sSPIN}, 1
        s_cmp_lt_u32 s{sSPIN}, {o.spin}
        s_cbranch_scc1 k2_flw
        s_waitcnt lgkmcnt(0)
        v_mov_b32 v{TP+2}, {"s4" if CHAIN else 1}"""
    DONE = f"""
    s_mov_b64 exec, 1
    ds_sub_u32 v{TP+1}, v{TP+3} offset:{L_FLAG}
    s_mov_b64 exec, -1
    """
    def lock_flush():
        TAKE = f"""
        s_mov_b64 exec, 1
        ds_wrxchg_rtn_b32 v{TP+2}, v{TP+1}, v{VX} offset:{L_FLAG}
        s_mov_b64 exec, -1
        ds_read_b128 {v(TP+4,4)}, v{TP} offset:{L_AGG}
        """
        a(f"""
        k2_open:
        s_cmp_eq_u32 s{sOPEN}, 0
        s_cbranch_scc1 k2_openret
        s_cmp_eq_u64 s[{sNB}:{sNB+1}], 0
        s_cbranch_scc0 k2_flb
        k2_openret:
        {RET}
        k2_flush:
        s_cmp_eq_u32 s{sEA}, 0
        s_cbranch_scc1 k2_flb
        s_sub_u32 s{sEA}, s{sEA}, 1
        s_ff1_i32_b64 s{sCUR}, s[{sNM}:{sNM+1}]
        s_bitset0_b64 s[{sNM}:{sNM+1}], s{sCUR}
        s_branch k2_flb3
        k2_flb:
        s_ff1_i32_b64 s{sCUR}, s[{sNB}:{sNB+1}]
        s_bitset0_b64 s[{sNB}:{sNB+1}], s{sCUR}
        k2_flb3:
        """)
        node_addr(sCUR)
        a(f"v_mov_b32 v{TP+1}, s59")
        a(TAKE)
        reduce_acc(ACC)
        a(f"""
        k2_flw:
        s_waitcnt lgkmcnt(0)
        v_readfirstlane_b32 s3, v{TP+2}
        s_cmp_lg_u32 s3, 0
        s_cbranch_scc1 k2_flr
        """)
        rmw(ACC)
        a(f"""
        s_mov_b64 exec, 1
        ds_write_b32 v{TP+1}, v{ACC} offset:{L_FLAG}
        s_mov_b64 exec, -1
        {RET}
        k2_flr:
        """)
        a(TAKE)
        if o.spin:
            a(f"""
            s_add_u32 s{sSPIN}, s{sSPIN}, 1
            s_cmp_lt_u32 s{sSPIN}, {o.spin}
            s_cbranch_scc1 k2_flw
            s_waitcnt lgkmcnt(0)
            v_mov_b32 v{TP+2}, 0
            s_nop 0
            """)
        a("s_branch k2_flw")
    if LOCK:
        lock_flush()
        a0 = a
        a = A()
    a(f"""
    k2_flush:
    s_cmp_eq_u32 s{sEA}, 0
    s_cbranch_scc1 k2_flb
    s_sub_u32 s{sEA}, s{sEA}, 1
    s_ff1_i32_b64 s{sCUR}, s[{sNM}:{sNM+1}]
    s_bitset0_b64 s[{sNM}:{sNM+1}], s{sCUR}
    """)
    node_addr(sCUR)
    a(f"ds_read_b128 {v(TP+4,4)}, v{TP} offset:{L_AGG}")
    reduce_acc(ACC)
    if CHAIN:
        a(f"v_mov_b32 v{TP+3}, 1")
    a(f"v_mov_b32 v{TP+1}, s59\ns_waitcnt lgkmcnt(0)")
    rmw(ACC)
    if CHAIN:
        a(DONE)
    else:
        a(f"""
        s_mov_b64 exec, 1
        ds_write_b32 v{TP+1}, v{VX} offset:{L_FLAG}
        s_mov_b64 exec, -1
        """)
    a(f"""
    {RET}
    k2_flb:
    s_cmp_eq_u32 s{sPK}, 0
    s_cbranch_scc1 k2_flb2
    s_mov_b32 s{sPK}, 0
    """)
    if CHAIN:
        a(f"""
        s_mov_b32 s{sCUR}, s{sOPA}
        s_mov_b32 s4, 1
        s_cmp_eq_u32 s{sSLOW}, 0
        s_cbranch_scc1 k2_flb3
        """)
    reduce_acc(PARK)
    a(f"""
    v_mov_b64 {v(ACC,2)}, 0
    v_mov_b64 {v(ACC+2,2)}, 0
    {RET}
    k2_flb2:
    {"s_mov_b32 s4, 0" if CHAIN else ""}
    k2_flb2x:
    s_ff1_i32_b64 s{sCUR}, s[{sNB}:{sNB+1}]
    s_bitset0_b64 s[{sNB}:{sNB+1}], s{sCUR}
    k2_flb3:
    """)
    node_addr(sCUR)
    a(f"""
    v_mov_b32 v{TP+1}, s59
    ds_read_b32 v{TP+2}, v{TP+1} offset:{L_FLAG}
    ds_read_b128 {v(TP+4,4)}, v{TP} offset:{L_AGG}
    """)
    reduce_acc(ACC)
    if CHAIN:
        a(f"v_mov_b32 v{TP+3}, 1")
    a(f"""
    k2_flw:
    s_waitcnt lgkmcnt(0)
    {f"v_cmp_ne_u32 vcc, s4, v{TP+2}" if CHAIN else f"v_cmp_eq_u32 vcc, 0, v{TP+2}"}
    s_cbranch_vccnz k2_flr
    """)
    rmw(ACC)
    if CHAIN:
        a(DONE)
    a(f"""
    {RET}
    k2_flr:
    ds_read_b32 v{TP+2}, v{TP+1} offset:{L_FLAG}
    ds_read_b128 {v(TP+4,4)}, v{TP} offset:{L_AGG}
    {SPIN}
    s_branch k2_flw
    k2_opena:
    s_cmp_lt_i32 s{sOPA}, 0
    s_cbranch_scc1 k2_openret
    """)
    node_addr(sOPA)
    if not CHAIN:
        a(f"""
        s_cmp_eq_u32 s{sSLOW}, 0
        s_cbranch_scc0 k2_opas
        ds_read_b128 {v(TP+4,4)}, v{TP} offset:{L_AGG}
        s_waitcnt lgkmcnt(0)
        """)
        rmw(PARK)
        a(f"{RET}\nk2_opas:")
    for q in range(4):
        a(f"ds_add_f32 v{TP}, v{PARK+q} offset:{L_AGG+4*q}")
    a(f"""
    {RET}
    k2_open:
    s_cmp_eq_u32 s{sOPEN}, 0
    s_cbranch_scc1 k2_openret
    s_cmp_eq_u64 s[{sNB}:{sNB+1}], 0
    s_cbranch_scc1 k2_openret
    {"s_mov_b32 s4, -1" if CHAIN else ""}
    s_cmp_eq_u32 s{sSLOW}, 0
    s_cbranch_scc1 k2_flb2x
    s_ff1_i32_b64 s{sCUR}, s[{sNB}:{sNB+1}]
    """)
    node_addr(sCUR)
    reduce_acc(ACC)
    for q in range(4):
        a(f"ds_add_f32 v{TP}, v{ACC+q} offset:{L_AGG+4*q}")
    a(f"""
    k2_openret:
    {RET}
    """)

    if LOCK:
        a = a0
        CHAIN = True

    def pre_open(x):
        if LOCK:
            a(f"s_call_b64 s[{sRET}:{sRET+1}], k2_open")
            return
        a(f"""
        s_cmp_eq_u32 s{sSLOW}, 0
        s_cbranch_scc0 k2_po{x}
        s_call_b64 s[{sRET}:{sRET+1}], k2_open
        k2_po{x}:
        """)

    def post_open(x, bar):
        if LOCK:
            return
        a(f"""
        s_cmp_eq_u32 s{sSLOW}, 0
        s_cbranch_scc1 k2_pq{x}
        s_call_b64 s[{sRET}:{sRET+1}], k2_opena
        s_call_b64 s[{sRET}:{sRET+1}], k2_open
        s_waitcnt lgkmcnt(0)
        {"s_barrier" if bar else ""}
        k2_pq{x}:
        """)
    a(f"""
    k2_done:
    s_waitcnt vmcnt(0)
    s_add_u32 s{sW0}, s{sW0}, {CAP}
    v_and_b32 v{vL}, 63, v{VTID}
    s_cmp_lt_u32 s{sW0}, s{sTOT}
    s_cbranch_scc0 k2_last
    """)
    if CHAIN:
        pre_open("w")
        a("s_waitcnt lgkmcnt(0)\ns_barrier")
        post_open("w", False)
    else:
        a(f"""
        s_waitcnt lgkmcnt(0)
        s_barrier
        s_call_b64 s[{sRET}:{sRET+1}], k2_opena
        s_waitcnt lgkmcnt(0)
        s_barrier
        s_call_b64 s[{sRET}:{sRET+1}], k2_open
        s_waitcnt lgkmcnt(0)
        s_barrier
        """)
    a(f"""
    v_lshlrev_b32 v1, 4, v{VTID}
    v_mov_b64 v[8:9], 0
    v_mov_b64 v[10:11], 0
    ds_write_b128 v1, v[8:11] offset:{L_XS}
    s_mov_b32 s{sLATE}, 0
    s_waitcnt lgkmcnt(0)
    s_barrier
    s_cmp_lg_u32 s{sWAVE}, {PW}
    s_cbranch_scc1 k2_p1
    s_branch k2_tg
    k2_last:
    """)
    if "dbg" in o.exp:
        a(f"""
        s_cmp_lg_u32 s{sWAVE}, 15
        s_cbranch_scc1 k2_nodbg
        s_memrealtime s[78:79]
        s_waitcnt lgkmcnt(0)
        s_sub_u32 s3, s2, {o.dbg}
        s_cmp_ge_u32 s3, 15
        s_cbranch_scc1 k2_nodbg
        s_and_b32 s72, s72, 0xfff
        s_sub_u32 s74, s74, s72
        s_and_b32 s74, s74, 0xfff
        s_lshl_b32 s74, s74, 12
        s_and_b32 s76, s76, 15
        s_lshl_b32 s76, s76, 24
        s_or_b32 s72, s72, s74
        s_or_b32 s72, s72, s76
        s_lshl_b32 s3, s3, 2
        s_add_u32 s3, s3, 4
        s_mov_b32 s80, s{sDP}
        s_mov_b32 s81, s{sDP+1}
        s_mov_b32 s82, 256
        s_mov_b32 s83, 0x20000
        v_mov_b32 v1, s72
        s_nop 4
        buffer_store_dword v1, off, s[80:83], s3
        k2_nodbg:
        """)
    PD = o.timing and "pd" in o.exp
    if PD:
        a("s_memrealtime s[72:73]")
    stamp(a, o, 5)
    a(f"""
    s_cmp_ge_u32 s{sWAVE}, 5
    s_cbranch_scc1 k2_nowm
    v_lshlrev_b32 v64, 4, v{vL}
    s_mov_b32 s58, {TB_WM}
    s_mov_b32 s59, {TB_WM+4096}
    """)
    for q in range(8):
        a(f"buffer_load_dwordx4 {v(4*q,4)}, v64, s[{sTB}:{sTB+3}], s{58+q//4} offen offset:{1024*(q%4)} sc1")
    a("k2_nowm:")
    if CHAIN:
        pre_open("l")
    a(f"""
    v_and_b32 v64, 31, v{vL}
    v_lshrrev_b32 v65, 5, v{vL}
    v_lshrrev_b32 v66, 2, v64
    v_mul_u32_u24 v66, 1040, v66
    v_lshl_add_u32 v66, v65, 7, v66
    v_and_b32 v67, 3, v64
    v_lshl_add_u32 v66, v67, 2, v66
    s_lshl_b32 s3, s{sWAVE}, 13
    v_add_u32 v113, s3, v66
    v_lshlrev_b32 v64, 4, v64
    v_lshl_add_u32 v112, v65, 9, v64
    """)
    for i in range(1, 8):
        a(f"v_xor_b32 v{113+i}, {16*i}, v113")
    a(f"""
    s_lshl_b32 s3, s{sWAVE}, 12
    s_mov_b32 s10, 0xbf317218
    s_mov_b32 s11, 0xbf317218
    s_waitcnt lgkmcnt(0)
    s_barrier
    """)
    stamp(a, o, 6)
    if CHAIN:
        if PD:
            a("s_memrealtime s[74:75]\ns_memrealtime s[76:77]")
        post_open("l", True)
        if PD:
            a("s_memrealtime s[78:79]")
    else:
        a(f"""
        {"s_memrealtime s[74:75]" if PD else ""}
        s_call_b64 s[{sRET}:{sRET+1}], k2_opena
        s_waitcnt lgkmcnt(0)
        s_barrier
        {"s_memrealtime s[76:77]" if PD else ""}
        s_call_b64 s[{sRET}:{sRET+1}], k2_open
        s_waitcnt lgkmcnt(0)
        s_barrier
        {"s_memrealtime s[78:79]" if PD else ""}
        """)
    a(f"""
    s_cmp_ge_u32 s{sWAVE}, 5
    s_cbranch_scc1 {"k2_tm" if o.timing else "k2_end"}
    """)
    for i in range(8):
        for u in range(2):
            a(f"ds_read2st64_b32 {v(32+4*i+2*u,2)}, v{113+i} offset0:{2*u} offset1:{2*u+1}")
    for k in range(4):
        a(f"s_waitcnt lgkmcnt({12-4*k})")
        for r in range(32 + 8 * k, 40 + 8 * k, 2):
            a(f"v_pk_mul_f32 {v(r,2)}, {v(r,2)}, s[10:11]")
        for sx in range(4):
            a(f"v_cvt_pk_bf16_f32 v{64+4*sx+k}, v{32+8*k+sx}, v{36+8*k+sx}")
    if PD:
        a("s_memrealtime s[80:81]")
    a("s_waitcnt vmcnt(0)\ns_nop 0")
    if PD:
        a("s_memrealtime s[82:83]")
    for sx in range(4):
        mf(80, 64 + 4 * sx, 8 * sx, "0" if sx == 0 else v(80, 16))
        mf(96, 64 + 4 * sx, 8 * sx + 4, "0" if sx == 0 else v(96, 16))
    a("s_nop 10")
    for rq in range(4):
        b = 32 + 4 * rq
        a(f"""
        v_cvt_pk_bf16_f32 v{b}, v{80+4*rq}, v{81+4*rq}
        v_cvt_pk_bf16_f32 v{b+1}, v{82+4*rq}, v{83+4*rq}
        v_cvt_pk_bf16_f32 v{b+2}, v{96+4*rq}, v{97+4*rq}
        v_cvt_pk_bf16_f32 v{b+3}, v{98+4*rq}, v{99+4*rq}
        buffer_store_dwordx4 {v(b,4)}, v112, s[{sOUT}:{sOUT+3}], s3 offen offset:{1024*rq} {o.outst}
        """)
    if PD:
        a("s_memrealtime s[84:85]")
    if o.timing:
        a("k2_tm:\ns_waitcnt vmcnt(0)")
        if PD:
            a("s_memrealtime s[86:87]")
        stamp(a, o, 7)
        a(f"s_mov_b64 exec, 1")
        stamp_store(a, o, 1, 8, 8, sWAVE)
        stamp_store(a, o, 0, 5, 8, sWAVE, lambda i: 96 + i)
    a("k2_end:\ns_endpgm")


def desc(name, vg, sg):
    return f""".p2align 6
.amdhsa_kernel {name}
  .amdhsa_next_free_vgpr {vg}
  .amdhsa_next_free_sgpr {sg}
  .amdhsa_accum_offset {(vg+3)//4*4}
  .amdhsa_group_segment_fixed_size 0
  .amdhsa_kernarg_size 88
  .amdhsa_user_sgpr_count 2
  .amdhsa_user_sgpr_kernarg_segment_ptr 1
  .amdhsa_system_sgpr_workgroup_id_x 1
.end_amdhsa_kernel
"""


def main():
    p = argparse.ArgumentParser()
    p.add_argument("-o", default="cdna_kernels/" + NAME + ".s")
    p.add_argument("--timing", action="store_true")
    p.add_argument("--k1ld", default="nt")
    p.add_argument("--k1st", default="sc1")
    p.add_argument("--k2ld", default="sc1")
    p.add_argument("--xld", default="")
    p.add_argument("--outst", default="sc1")
    p.add_argument("--exp", default="prio,ybar,ea,w0,lock")
    p.add_argument("--spin", type=int, default=0)
    p.add_argument("--skew", default="")
    p.add_argument("--zone", type=int, default=0)
    p.add_argument("--dbg", type=int, default=0)
    p.add_argument("--psl", type=int, default=4)
    p.add_argument("--pmax", type=int, default=100000)
    p.add_argument("--k1n", default="1,2,1")
    p.add_argument("--pw", type=int, default=0)
    p.add_argument("--pd", type=int, default=1)
    p.add_argument("--wd", type=int, default=1)
    p.add_argument("--wsl", type=int, default=0)
    p.add_argument("--efld", default="sc1")
    p.add_argument("--k2n", default="3,0,3")
    p.add_argument("--sig", default="watch")
    p.add_argument("--k1p", type=int, default=0)
    p.add_argument("--nx", type=int, default=2)
    p.add_argument("--k1q", type=int, default=2)
    p.add_argument("--k1c", type=int, default=1)
    p.add_argument("--s1sh", type=int, default=3)
    p.add_argument("--s1st", type=int, default=64)
    p.add_argument("--s1sf", type=int, default=0)
    p.add_argument("--k1w", type=int, default=-1)
    p.add_argument("--ww", type=int, default=0)
    p.add_argument("--mbg", type=int, default=16)
    p.add_argument("--mbs", type=int, default=128)
    p.add_argument("--mbx", type=int, default=1)
    o = p.parse_args()
    if o.zone:
        zone_layout(o.zone)
    o.exp = set(o.exp.split(","))
    K = NAME + "_kernel"
    a = A()
    o.ph2 = True
    k1(a, o)
    k2(a, o)
    t = f"""; TFN tensor-product message passing in one launch of 256 co-resident workgroups.
; Kernarg: 0 x, 8 src, 16 dst, 24 Y, 32 edge_feat, 40 w_rad, 48 cg, 56 w_mix, 64 out, 72 debug, 80 ws
; @launch grid=({G},1,1) block=(1024,1,1) lds={LDS_SZ}
.amdgcn_target "amdgcn-amd-amdhsa--gfx950"
.text
.globl {K}
.p2align 8
.type {K},@function
{K}:
{a.text()}
.section .rodata,"a"
{desc(K, 128, 102)}"""
    open(o.o, "w").write(t)


main()
```
